```python
import torch

def _softmax(x, axis=-1):
    return torch.softmax(x, dim=axis)
def _gelu(x):
    return torch.nn.functional.gelu(x, approximate="tanh")
def _silu(x):
    return torch.nn.functional.silu(x)
def _sigmoid(x):
    return torch.sigmoid(x)
def _layernorm(x, axis=-1, eps=1e-5):
    m = x.mean(dim=axis, keepdim=True)
    v = x.var(dim=axis, keepdim=True, unbiased=False)
    return (x - m) / torch.sqrt(v + eps)
def _scatter_add(tgt, idx, src, axis=0):
    return tgt.clone().index_add_(axis, idx, src)
def _segment_sum(src, seg, n):
    out = torch.zeros((n,) + src.shape[1:], dtype=src.dtype)
    return out.index_add_(0, seg, src)
def _pad(x, pw):
    flat = tuple(v for pair in reversed(pw) for v in pair)
    return torch.nn.functional.pad(x, flat)

kernel_name = 'standalone__controlnet__diffusion'

def setup_inputs():

    _w = (lambda a: (lambda t: t.to(torch.bfloat16) if t.is_floating_point() else t)(torch.as_tensor(a)))
    B, HW, C = 2, 64, 512
    sc = C ** -0.5
    return {
        "x_frozen": _w((lambda *s: torch.randn(*s, dtype=torch.bfloat16) * 0.1)(B, HW, HW, C)),
        "x": _w((lambda *s: torch.randn(*s, dtype=torch.bfloat16) * 0.2)(B, HW, HW, C)),
        "c": _w((lambda *s: torch.randn(*s, dtype=torch.bfloat16) * 0.8)(B, HW, HW, C)),
        "w_z1": _w((lambda *s: torch.randn(*s, dtype=torch.bfloat16) * 0.8)(C, C) * sc),
        "w_z2": _w((lambda *s: torch.randn(*s, dtype=torch.bfloat16) * 0.2)(C, C) * sc),
        "w_conv": _w((lambda *s: torch.randn(*s, dtype=torch.bfloat16) * 0.2)(3, 3, C, C) * sc / 3.0),
    }

def reference(x_frozen, x, c, w_z1, w_z2, w_conv):
    B, H, W, C = x.shape
    h_in = x + torch.einsum("bhwc,cd->bhwd", c, w_z1)
    h = _silu(_layernorm(h_in, axis=-1))
    hp = _pad(h, ((0, 0), (1, 1), (1, 1), (0, 0)))
    acc = h * 0.0
    for di in range(3):
        for dj in range(3):
            acc = acc + torch.einsum("bhwc,cd->bhwd", hp[:, di:di + H, dj:dj + W, :], w_conv[di, dj])
    h = h_in + acc
    return x_frozen + torch.einsum("bhwc,cd->bhwd", h, w_z2)
```

```python
class Asm:
    def __init__(self):
        self.lines = []
        self._lab = 0
    def __call__(self, s=""):
        for l in s.split("\n"):
            self.lines.append(l)
    def label(self, name):
        self.lines.append(name + ":")
    def newlabel(self, base="L"):
        self._lab += 1
        return f"{base}_{self._lab}"
    def text(self):
        return "\n".join(self.lines) + "\n"

def kernel_begin(a, name):
    a(".text")
    a(f".globl {name}")
    a(".p2align 8")
    a(f".type {name},@function")
    a(f"{name}:")

def kernel_desc(a, name, vgpr, sgpr, accum):
    a('.section .rodata,"a"')
    a(".p2align 6")
    a(f".amdhsa_kernel {name}")
    a(f"  .amdhsa_next_free_vgpr {vgpr}")
    a(f"  .amdhsa_next_free_sgpr {sgpr}")
    a(f"  .amdhsa_accum_offset {accum}")
    a("  .amdhsa_group_segment_fixed_size 0")
    a("  .amdhsa_kernarg_size 72")
    a("  .amdhsa_user_sgpr_count 2")
    a("  .amdhsa_user_sgpr_kernarg_segment_ptr 1")
    a("  .amdhsa_system_sgpr_workgroup_id_x 1")
    a(".end_amdhsa_kernel")

def vr(b, n=1):
    return f"v{b}" if n == 1 else f"v[{b}:{b+n-1}]"
def ar(b, n=1):
    return f"a{b}" if n == 1 else f"a[{b}:{b+n-1}]"
def sr(b, n=1):
    return f"s{b}" if n == 1 else f"s[{b}:{b+n-1}]"
```

```python
from asmlib import *
from sched import *
from layouts import *

TILE = 21760
ROWB = 2176
S_H, S_WS, S_XF, S_OUT = 4, 8, 12, 16
sU, sE, sZ, sHA, sHB, sW, sCnt, sSgn = 20, 21, 22, 23, 24, 25, 26, 27
sInv = 28
sMask = 30
sO = 32
sP, sNB, sHBk, sR0 = 36, 37, 38, 39
sScl = 40
sT = 64
sFix = 80
vL = 1
vD = 8
vX, vY = 14, 15
vVA, vVB = 16, 56
vRaw = 96
vZ = 120
vXF = 136
vXU = 168
vOut = 232
vEW = 233
vER = 237
vT = 240
vSc = 254
aU, aE = 128, 224

def acc(o, f): return ar((o*4+f)*4, 4)

def gen_k2(a, name, stamp=False, opts=None):
    opts = opts or {}
    kernel_begin(a, name)
    a(f"s_cmp_ge_u32 s2, 256")
    a(f"s_cbranch_scc1 {name}_end")
    def st(k, dyn=None):
        if not stamp: return
        a("s_memrealtime s[84:85]"); a("s_memtime s[86:87]"); a("s_waitcnt lgkmcnt(0)")
        if dyn is None:
            a(f"v_writelane_b32 v7, s84, {k}"); a(f"v_writelane_b32 v239, s86, {k}")
        else:
            a(f"s_sub_u32 s88, {k}, s{dyn}"); a("s_lshl_b64 exec, 1, s88"); a("v_mov_b32 v7, s84"); a("v_mov_b32 v239, s86"); a("s_mov_b64 exec, -1")
    st(0)
    a(f"s_load_dwordx2 s[{S_XF}:{S_XF+1}], s[0:1], 0")
    a(f"s_load_dwordx2 s[{S_OUT}:{S_OUT+1}], s[0:1], 48")
    a(f"s_load_dwordx2 s[{S_WS}:{S_WS+1}], s[0:1], 64")
    a(f"v_lshrrev_b32 v{vT}, 6, v0")
    a(f"s_and_b32 s{sT}, s2, 7")
    a(f"v_readfirstlane_b32 s{sP}, v{vT}")
    a(f"s_lshr_b32 s{sT+1}, s2, 3")
    a(f"s_and_b32 s{sNB}, s{sT}, 1")
    a(f"s_lshl_b32 s{sNB}, s{sNB}, 2")
    a(f"s_and_b32 s{sT+2}, s{sT+1}, 3")
    a(f"s_or_b32 s{sNB}, s{sNB}, s{sT+2}")
    a(f"s_bfe_u32 s{sHBk}, s{sT+1}, 0x10002")
    a(f"s_lshr_b32 s{sT+2}, s{sT+1}, 3")
    a(f"s_lshr_b32 s{sT+3}, s{sT}, 1")
    a(f"s_lshl_b32 s{sT+3}, s{sT+3}, 2")
    a(f"s_add_u32 s{sT+3}, s{sT+3}, s{sT+2}")
    a(f"s_lshl_b32 s{sR0}, s{sT+3}, 3")
    a(f"v_and_b32 v{vT+1}, 63, v0")
    a(f"v_lshlrev_b32 v{vL}, 4, v{vT+1}")
    a(f"s_mul_i32 s{sT+4}, s{sP}, 340")
    a(f"s_lshl_b32 s{sT+8}, s{sR0}, 12"); a(f"s_lshl_b32 s{sT+5}, s{sHBk}, 10"); a(f"s_add_u32 s{sT+8}, s{sT+8}, s{sT+5}")
    a(f"s_lshl_b32 s{sT+5}, s{sHBk}, 2"); a(f"s_sub_u32 s{sT+5}, 68, s{sT+5}")
    a(f"s_and_b32 s{sT+6}, s{sR0}, 63")
    a(f"s_cmp_eq_u32 s{sT+6}, 0"); a(f"s_cselect_b32 s{sT+9}, 136, 0")
    a(f"s_cmp_eq_u32 s{sT+6}, 56"); a(f"s_movk_i32 s{sT+6}, 1400"); a(f"s_cselect_b32 s{sT+6}, 1224, s{sT+6}")
    a(f"s_sub_u32 s{sT+6}, s{sT+6}, s{sT+9}")
    a(f"s_movk_i32 s{sT+7}, 964"); a(f"s_movk_i32 s{sT+12}, 896"); a(f"s_movk_i32 s{sT+13}, -136")
    a(f"v_add_u32 v{vT+2}, s{sT+4}, v{vT+1}")
    a(f"v_mov_b32 v{vT+8}, 0x40000000")
    for q in range(1410): assert (q*964) >> 16 == q // 68
    def dma_off(j):
        q, z, r, o, t1, t2 = vT+2, vT+3, vT+4, vT+5, vT+6, vT+7
        if j: a(f"v_add_u32 v{q}, 64, v{q}")
        a(f"v_mul_u32_u24 v{z}, s{sT+7}, v{q}")
        a(f"v_lshl_add_u32 v{o}, v{q}, 4, s{sT+8}")
        a(f"v_lshrrev_b32 v{r}, 17, v{z}"); a(f"v_lshrrev_b32 v{z}, 16, v{z}")
        a(f"v_subrev_u32 v{t2}, s{sT+9}, v{q}")
        a(f"v_mad_i32_i24 v{t1}, v{r}, s{sT+13}, v{q}")
        a(f"v_cmp_gt_u32 s[{sT+10}:{sT+11}], s{sT+6}, v{t2}")
        a(f"v_subrev_u32 v{t1}, s{sT+5}, v{t1}")
        a(f"v_mad_u32_u24 v{o}, v{z}, s{sT+12}, v{o}")
        a(f"v_cmp_le_u32 vcc, 4, v{t1}")
        a(f"v_lshl_add_u32 v{o}, v{r}, 7, v{o}")
        if j in (1, 2, 3): a(f"s_sub_u32 s{sT+8}, s{sT+8}, 1024") if False else None
        a(f"s_and_b64 vcc, vcc, s[{sT+10}:{sT+11}]")
        if j & 3: a(f"v_subrev_u32 v{o}, {(j&3)*1024}, v{o}")
        a(f"v_cndmask_b32 v{vD+j}, v{vT+8}, v{o}, vcc")
    for j in range(6): dma_off(j)
    for j in range(1, 6): a(f"v_add_u32 v{vL+j}, {4096*j}, v{vL}")
    a(f"s_lshl_b32 s{sT+4}, s{sNB}, 2"); a(f"s_add_u32 s{sT+4}, s{sT+4}, s{sP}")
    a(f"s_mul_i32 s{sU}, s{sT+4}, 196608"); a(f"s_add_u32 s{sU}, s{sU}, {U_OFF}")
    a(f"s_lshl_b32 s{sT+4}, s{sT+3}, 1"); a(f"s_add_u32 s{sT+4}, s{sT+4}, s{sHBk}")
    a(f"s_lshl_b32 s{sT+4}, s{sT+4}, 2"); a(f"s_add_u32 s{sT+4}, s{sT+4}, s{sP}")
    a(f"s_lshl_b32 s{sE}, s{sT+4}, 16"); a(f"s_add_u32 s{sE}, s{sE}, {E_OFF}")
    a(f"s_add_u32 s{sT+4}, s{sP}, 1"); a(f"s_bfe_u32 s{sT+4}, s{sT+4}, 0x10001")
    a(f"s_lshl_b32 s{sT+4}, s{sT+4}, 15"); a(f"s_lshl_b32 s{sZ}, s{sNB}, 16")
    a(f"s_add_u32 s{sZ}, s{sZ}, s{sT+4}"); a(f"s_add_u32 s{sZ}, s{sZ}, {Z_OFF}")
    a(f"s_mul_i32 s{sW}, s{sP}, 5440"); a(f"s_add_u32 s{sW}, s{sW}, 0x10000")
    a(f"s_mov_b32 s{sMask}, 0xfffff"); a(f"s_mov_b32 s{sMask+1}, 0")
    a(f"s_mov_b64 s[{sFix}:{sFix+1}], 0")
    a("s_waitcnt lgkmcnt(0)")
    st(1)
    a(f"s_add_u32 s{S_H}, s{S_WS}, {H_OFF-4096}"); a(f"s_addc_u32 s{S_H+1}, s{S_WS+1}, 0")
    a(f"s_mov_b32 s{S_H+2}, {8*MB+4096}"); a(f"s_mov_b32 s{S_H+3}, 0x20000")
    a(f"s_mov_b32 s{S_WS+2}, 0x10000000"); a(f"s_mov_b32 s{S_WS+3}, 0x20000")
    a(f"s_mov_b32 s{S_XF+2}, {8*MB}"); a(f"s_mov_b32 s{S_XF+3}, 0x20000")
    a(f"s_mov_b32 s{S_OUT+2}, {8*MB}"); a(f"s_mov_b32 s{S_OUT+3}, 0x20000")
    a(f"s_lshr_b32 s{sScl}, s{sNB}, 1"); a(f"s_lshl_b32 s{sScl}, s{sScl}, 7")
    a(f"v_min_u32 v{vSc}, 23, v{vT+1}"); a(f"v_lshlrev_b32 v{vSc}, 2, v{vSc}")

    def dma_ops(j, soff, m0const, tag):
        ops = []
        if j in (0, 4): ops.append([other(f"s_add_u32 m0, s{sW}, {m0const + (4096 if j == 4 else 0)}")])
        ld = vmem(f"buffer_load_dwordx4 v{vD+j}, s[{S_H}:{S_H+3}], {soff} offen offset:{(j&3)*1024} lds", tag)
        if j == 5:
            ops.append([other(f"s_mov_b64 exec, s[{sMask}:{sMask+1}]"), ld, other("s_mov_b64 exec, -1")])
        else: ops.append([ld])
        return ops
    def u_load(X, k):
        kk = X*12 + k
        return vmem(f"buffer_load_dwordx4 {ar(aU+4*kk,4)}, v{vL+kk//4}, s[{S_WS}:{S_WS+3}], s{sU} offen offset:{(kk%4)*1024}", f"U{kk}")
    def e_load(o):
        return vmem(f"buffer_load_dwordx4 {ar(aE+4*o,4)}, v{vL+o//4}, s[{S_WS}:{S_WS+3}], s{sE} offen offset:{(o%4)*1024}", f"E{o}")
    def z_load(f):
        return vmem(f"buffer_load_dwordx4 {vr(vZ+4*f,4)}, v{vL}, s[{S_WS}:{S_WS+3}], s{sZ} offen offset:{f*1024}", f"Z{f}")
    def v_row(dst, r, half, k):
        rw = vRaw + 8*(k % 3)
        off = half*TILE + r*ROWB
        rd = [ds(f"ds_read_b128 {vr(rw,4)}, v{vX} offset:{off}", f"Ra{k%3}"), ds(f"ds_read_b128 {vr(rw+4,4)}, v{vY} offset:{off}", f"Rb{k%3}")]
        pk = [other(f"v_pk_fma_f16 v{dst+4*r+i}, v{rw+4+i}, s{sSgn}, v{rw+i}") for i in range(4)]
        return rd, wait(lg=f"Rb{k%3}"), pk
    def conv(X, rowmajor=False):
        V = vVA if X == 0 else vVB
        out = []
        order = [(di, f, o) for di in range(3) for f in range(4) for o in range(8)] if not rowmajor else \
                [(di, f, o) for o in range(8) for di in range(3) for f in range(4)]
        for di, f, o in order:
            out.append(mfma(f"v_mfma_f32_16x16x32_f16 {acc(o,f)}, {ar(aU+4*(X*12+di*4+f),4)}, {vr(V+4*(o+di),4)}, {acc(o,f)}"))
        return out
    def bpart():
        return [mfma(f"v_mfma_f32_16x16x32_bf16 {acc(o,f)}, {vr(vZ+4*f,4)}, {ar(aE+4*o,4)}, {acc(o,f)}") for f in range(4) for o in range(8)]
    def place_v(B, dst, half, lo, hi, k0):
        step = (hi - lo) / 10.0
        for r in range(10):
            rd, w, pk = v_row(dst, r, half, k0 + r)
            p = lo + r*step
            B.put(p, rd[0]); B.put(p+1, rd[1])
            lat = opts.get("lds_lat", 9)
            B.put(p+lat, [w, pk[0]])
            for i in range(1, 4): B.put(p+lat+i, pk[i])

    NM = 224
    LEAD = opts.get("lead", 64)
    ug = opts.get("ugroup", 2)
    def edf_items():
        it = []
        for j in range(6): it.append((0, ("HA", j)))
        for k in range(12): it.append((8*(k//ug*ug), ("U", k)))
        for j in range(6): it.append((96, ("HB", j)))
        for k in range(12): it.append((96 + 8*(k//ug*ug), ("U", 12+k)))
        for o in range(8): it.append((192, ("E", o)))
        for f in range(4): it.append((192 + 8*f, ("Z", f)))
        it.sort(key=lambda x: x[0])
        sp = NM / len(it)
        off = min(d - i*sp for i, (d, _) in enumerate(it)) - LEAD
        return [(off + i*sp, w) for i, (d, w) in enumerate(it)]
    def item_ops(w):
        k, j = w
        if k == "HA":
            g = dma_ops(j, f"s{sHA}", 0, f"HA{j}")
            if j == 0: g = [[other(f"s_xor_b32 s{sW}, s{sW}, 0x10000")]] + g
            if j == 5: g.append([other(f"s_add_u32 s{sHA}, s{sHA}, {1*MB}")])
        elif k == "HB":
            g = dma_ops(j, f"s{sHB}", TILE, f"HB{j}")
            if j == 5: g.append([other(f"s_add_u32 s{sHB}, s{sHB}, {1*MB}")])
        elif k == "U":
            g = [[u_load(j // 12, j % 12)]]
            if j == 23: g.append([other(f"s_add_u32 s{sU}, s{sU}, 24576")])
        elif k == "E":
            g = [[e_load(j)]]
            if j == 7: g.append([other(f"s_add_u32 s{sE}, s{sE}, 8192")])
        else:
            g = [[z_load(j)]]
            if j == 3: g.append([other(f"s_add_u32 s{sZ}, s{sZ}, 4096")])
        return g
    ITEMS = edf_items()
    WRAP = [w for p, w in ITEMS if p < 0]
    INIT = [w for p, w in ITEMS if p >= 0]

    def body(final):
        if not final:
            B = Block(conv(0) + conv(1) + bpart())
            for k in range(0, 12, ug):
                if k: B.fix(8*k-1, wait(vm=f"U{k+ug-1}")); B.fix(96+8*k-1, wait(vm=f"U{12+k+ug-1}"))
            B.fix(-1, [wait(vm=["HA5", f"U{ug-1}"]), other("s_barrier")])
            B.fix(95, [wait(vm=["HB5", f"U{12+ug-1}"]), other("s_barrier")])
            B.fix(191, wait(vm=["E7", "Z0"]))
            for f in range(1, 4): B.fix(191+8*f, wait(vm=f"Z{f}"))
            place_v(B, vVB, 0, 0, 84, 0)
            place_v(B, vVA, 1, 96, 210, 10)
            for p, w in ITEMS:
                for i, ops in enumerate(item_ops(w)): B.put((p % NM) + 0.9*i if (p % NM) + 0.9*i < NM-0.2 else NM-0.2, ops)
            B.put(220, other(f"v_xor_b32 v{vX}, 0x10000, v{vX}"))
            B.put(221, other(f"v_xor_b32 v{vY}, 0x10000, v{vY}"))
            B.put(223.9, other(f"s_sub_u32 s{sCnt}, s{sCnt}, 1"))
        else:
            W = opts.get("tailw", 16)
            if W == 16:
                tail = []
                cB = conv(1, rowmajor=True); bp = bpart()
                for o in range(8): tail += cB[12*o:12*o+12] + [bp[f*8+o] for f in range(4)]
                t0 = 96
            else:
                tail = bpart() + conv(1, rowmajor=True); t0 = 128
            B = Block(conv(0) + tail)
            for k in range(0, 12, ug):
                if k: B.fix(8*k-1, wait(vm=f"U{k+ug-1}"))
            B.fix(-1, [wait(vm=["HA5", f"U{ug-1}"]), other("s_barrier")])
            rest = [w for w in INIT if w[0] != "HB"]
            if W != 16: rest.sort(key=lambda w: 0 if (w[0] == "U" and w[1] < 12) else 1 if w[0] in "EZ" else 2)
            sp = opts.get("fin_sp", 4.0)
            for i, w in enumerate(rest):
                B.put(1 + i*sp, item_ops(w)[0])
            hb = [f"HB{j}" for k, j in WRAP if k == "HB"][-1:]
            if W == 16:
                for d in range(3): B.fix(95+4*d, wait(vm=f"U{15+4*d}"))
                B.fix(107, [wait(vm=["E0", "Z3"] + hb), other("s_barrier")])
                B.fix(123, wait(vm=["E7"]))
            else:
                B.fix(95, [wait(vm=["E7", "Z3"] + hb), other("s_barrier")])
                B.fix(127, wait(vm="U23"))
            place_v(B, vVB, 0, 0, 84, 0)
            x0 = 1 + len(rest)*sp
            for i in range(8):
                ro, h, y = i >> 2, (i >> 1) & 1, i & 1
                B.put((x0 if opts.get("xf_late") else 0.5) + 4*i, vmem(f"buffer_load_dwordx4 {vr(vXF+4*i,4)}, v{vOut}, s[{S_XF}:{S_XF+3}], s{sO+ro*2+h} offen offset:{y*1024}", f"XF{i}"))
            for o in range(7):
                for f in range(4):
                    B.put(t0+W*(o+1)+5+(f*3 if W == 16 else f), ex_write(o, f))
            if opts.get("unpack_in_loop"):
                u0 = opts["unpack_in_loop"]
                for i in range(32):
                    ops = [other(f"v_lshlrev_b32 v{vXU+2*i}, 16, v{vXF+i}")]
                    if i == 0: ops = [wait(vm="XF7")] + ops
                    B.put(u0+i*(222-u0)/32, ops)
                    B.put(u0+(i+0.5)*(222-u0)/32, other(f"v_and_b32 v{vXU+2*i+1}, 0xffff0000, v{vXF+i}"))
        seq = B.layout(cap=1, slack=opts.get("slack", 3))
        return seq, B
    def ex_write(o, f):
        return ds(f"ds_write_b128 v{vEW + (f&1) + 2*(o>>2)}, {acc(o,f)} offset:{(o&3)*16384 + (f>>1)*128}", "W")

    loop_seq, LB = body(False)
    fin_seq, FB = body(True)
    def flat(groups):
        out = []
        for ops in groups:
            out += ops
            if " m0," in (ops[-1].text or ""): out.append(other("s_nop 0"))
        return out
    pro = []
    a.label(f"{name}_reload")
    pro.append(other(f"s_mov_b32 s{sHA}, 0"))
    for j in range(6): pro += flat(dma_ops(j, f"s{sHA}", 0, f"H0{j}"))
    pro.append(vmem(f"buffer_load_dword v{vSc+1}, v{vSc}, s[{S_WS}:{S_WS+3}], s{sScl} offen offset:{SCL_OFF}", "SC"))
    pro.append(other(f"s_mov_b32 s{sHA}, {MB//2}"))
    pro.append(other(f"s_mov_b32 s{sHB}, {MB}"))
    npre = opts.get("npre", 2)
    for w in WRAP[:npre]: pro += flat(item_ops(w))
    rows = [v_row(vVA, r, 0, r) for r in range(10)]
    pro2 = [wait(vm="SC"), other("s_barrier"),
            other(f"v_readfirstlane_b32 s{sT}, v{vSc+1}"), other("s_nop 1"),
            other(f"v_cmp_ne_u32 vcc, s{sT}, v{vSc+1}"),
            other(f"s_sub_u32 s{sInv}, 0x7f000000, s{sT}"), other(f"s_mov_b32 s{sInv+1}, s{sInv}"),
            other(f"s_andn2_b64 vcc, vcc, s[{sFix}:{sFix+1}]"),
            other(f"s_cbranch_scc1 {name}_fix")]
    pro2 += rows[0][0] + rows[1][0] + rows[2][0]
    rem = WRAP[npre:]
    for r in range(10):
        n0, n1 = r*len(rem)//10, (r+1)*len(rem)//10
        for w in rem[n0:n1]: pro2 += flat(item_ops(w))
        pro2 += [rows[r][1]] + rows[r][2]
        if r + 3 < 10: pro2 += rows[r+3][0]
    pro2 += [other(f"v_xor_b32 v{vX}, 0x10000, v{vX}"), other(f"v_xor_b32 v{vY}, 0x10000, v{vY}")]
    epi = [other("s_nop 4")]
    for f in range(4): epi.append(ex_write(7, f))
    epi += [wait(lg="ALL"), other("s_barrier")]
    M = [vVA, vVA+32]
    def ex_reads(g):
        ro, h = g >> 1, g & 1
        return [ds(f"ds_read_b128 {vr(M[g&1]+8*src+4*e,4)}, v{vER+e} offset:{ro*16384+src*4096+h*2048}", f"X{g}") for src in range(4) for e in range(2)]
    epi += ex_reads(0)
    if not opts.get("unpack_in_loop"):
        epi.append(wait(vm="XF7"))
        for i in range(32):
            epi += [other(f"v_lshlrev_b32 v{vXU+2*i}, 16, v{vXF+i}"), other(f"v_and_b32 v{vXU+2*i+1}, 0xffff0000, v{vXF+i}")]
    Y = vRaw
    for g in range(4):
        epi.append(wait(lg=f"X{g}"))
        if g < 3: epi += ex_reads(g+1)
        m = M[g & 1]
        y0 = Y + 8*(g & 1); y1 = y0 + 4
        for q in range(4):
            m0, m1, m2, m3 = [vr(m+8*s+2*q, 2) for s in range(4)]
            t, u = vr(vT, 2), vr(vT+2, 2)
            x0 = vr(vXU + 8*(2*g) + 2*q, 2); x1 = vr(vXU + 8*(2*g+1) + 2*q, 2)
            epi += [other(f"v_pk_add_f32 {t}, {m1}, {m2}"),
                    other(f"v_pk_add_f32 {u}, {m1}, {m2} neg_lo:[0,1] neg_hi:[0,1]"),
                    other(f"v_pk_add_f32 {t}, {t}, {m0}"),
                    other(f"v_pk_add_f32 {u}, {u}, {m3} neg_lo:[0,1] neg_hi:[0,1]"),
                    other(f"v_pk_fma_f32 {t}, {t}, s[{sInv}:{sInv+1}], {x0}"),
                    other(f"v_pk_fma_f32 {u}, {u}, s[{sInv}:{sInv+1}], {x1}"),
                    other(f"v_cvt_pk_bf16_f32 v{y0+q}, v{vT}, v{vT+1}"),
                    other(f"v_cvt_pk_bf16_f32 v{y1+q}, v{vT+2}, v{vT+3}")]
        epi += [vmem(f"buffer_store_dwordx4 {vr(y0,4)}, v{vOut}, s[{S_OUT}:{S_OUT+3}], s{sO+g} offen", "ST"),
                vmem(f"buffer_store_dwordx4 {vr(y1,4)}, v{vOut}, s[{S_OUT}:{S_OUT+3}], s{sO+g} offen offset:1024", "ST")]
    resolve([pro, pro2, loop_seq, loop_seq, loop_seq, fin_seq, epi])
    def fix_haz(seq):
        out = []
        for op in seq:
            if out and op.kind == "vmem" and op.text.endswith("lds") and out[-1].kind == "x" and " m0," in out[-1].text:
                out.append(other("s_nop 0"))
            out.append(op)
        return out
    loop_seq = fix_haz(loop_seq)
    for op in pro: a(op.render())
    st(2)
    for i in range(4): a(f"v_mov_b32 v{vRaw+i}, 0")
    a("s_nop 1")
    for i in range(8): a(f"v_mfma_f32_32x32x16_f16 a[{16*i}:{16*i+15}], {vr(vRaw,4)}, {vr(vRaw,4)}, 0")
    t_, g_ = vT, vT+1
    a(f"v_and_b32 v{t_}, 15, v0"); a(f"v_bfe_u32 v{g_}, v0, 4, 2")
    a(f"s_and_b32 s{sT}, s{sP}, 1"); a(f"s_xor_b32 s{sT}, s{sT}, 1")
    a(f"s_cmp_eq_u32 s{sP}, 2"); a(f"s_cselect_b32 s{sT+1}, 1, 0"); a(f"s_cselect_b32 s{sT+3}, 0, 1")
    a(f"s_cmp_lt_u32 s{sP}, 2"); a(f"s_cselect_b32 s{sT+2}, 1, 0")
    a(f"s_cmp_eq_u32 s{sP}, 1"); a(f"s_mov_b32 s{sSgn}, 0xbc00bc00"); a(f"s_cselect_b32 s{sSgn}, 0x3c003c00, s{sSgn}")
    for dst, par, du in ((vX, sT, sT+1), (vY, sT+2, sT+3)):
        a(f"v_add_u32 v{vT+2}, s{du}, v{t_}")
        a(f"v_subrev_u32 v{vT+3}, s{par}, v{vT+2}")
        a(f"v_lshrrev_b32 v{vT+3}, 1, v{vT+3}"); a(f"v_and_b32 v{vT+3}, 2, v{vT+3}")
        a(f"v_xor_b32 v{vT+3}, v{vT+3}, v{g_}")
        a(f"v_lshlrev_b32 v{vT+2}, 6, v{vT+2}"); a(f"v_lshl_add_u32 v{vT+2}, v{vT+3}, 4, v{vT+2}")
        a(f"s_mul_i32 s{sT+4}, s{par}, 1088"); a(f"s_add_u32 s{sT+4}, s{sT+4}, 0x10000")
        a(f"v_add_u32 v{dst}, s{sT+4}, v{vT+2}")
    a(f"s_lshl_b32 s{sT+4}, s{sP}, 12")
    a(f"v_and_b32 v{vT+2}, 7, v{t_}"); a(f"v_xor_b32 v{vT+2}, v{vT+2}, v{g_}")
    a(f"v_lshlrev_b32 v{vT+3}, 8, v{t_}"); a(f"v_add_u32 v{vT+3}, s{sT+4}, v{vT+3}")
    a(f"v_lshl_add_u32 v{vEW}, v{vT+2}, 4, v{vT+3}")
    a(f"v_xor_b32 v{vEW+1}, 64, v{vEW}")
    a(f"v_add_u32 v{vEW+2}, 0x10000, v{vEW}"); a(f"v_add_u32 v{vEW+3}, 0x10000, v{vEW+1}")
    a(f"v_bfe_u32 v{vT+2}, v0, 3, 3"); a(f"v_and_b32 v{vT+3}, 7, v0")
    a(f"v_lshlrev_b32 v{vT+4}, 1, v{vT+3}"); a(f"v_xor_b32 v{vT+4}, v{vT+4}, v{vT+2}")
    a(f"s_lshl_b32 s{sT+4}, s{sP}, 15")
    a(f"v_lshlrev_b32 v{vT+5}, 8, v{vT+2}"); a(f"v_add_u32 v{vT+5}, s{sT+4}, v{vT+5}")
    a(f"v_lshl_add_u32 v{vER}, v{vT+4}, 4, v{vT+5}"); a(f"v_xor_b32 v{vER+1}, 16, v{vER}")
    a(f"v_lshlrev_b32 v{vOut}, 11, v{vT+2}"); a(f"v_lshl_add_u32 v{vOut}, v{vT+3}, 4, v{vOut}")
    a(f"s_lshl_b32 s{sT+4}, s{sP}, 1"); a(f"s_add_u32 s{sT+4}, s{sT+4}, s{sR0}"); a(f"s_lshl_b32 s{sT+4}, s{sT+4}, 16")
    a(f"s_lshl_b32 s{sT+5}, s{sHBk}, 15"); a(f"s_add_u32 s{sT+4}, s{sT+4}, s{sT+5}")
    a(f"s_lshl_b32 s{sT+5}, s{sNB}, 7"); a(f"s_add_u32 s{sO}, s{sT+4}, s{sT+5}")
    a(f"s_add_u32 s{sO+1}, s{sO}, 16384"); a(f"s_add_u32 s{sO+2}, s{sO}, 65536"); a(f"s_add_u32 s{sO+3}, s{sO}, {65536+16384}")
    a(f"s_mov_b32 s{sCnt}, 6")
    st(3)
    p2 = merge_waits(pro2)
    for op in p2[:2]: a(op.render())
    st(4)
    for op in p2[2:]: a(op.render())
    st(5)
    a(".p2align 6")
    a.label(f"{name}_loop")
    ls = merge_waits(loop_seq)
    for op in ls[:2]: a(op.render())
    if stamp == 2: st(12, sCnt)
    for op in ls[2:]: a(op.render())
    a(f"s_cbranch_scc0 {name}_loop")
    fs = merge_waits(fin_seq)
    for op in fs[:2]: a(op.render())
    if stamp == 2: st(13)
    nm = 0
    for op in fs[2:]:
        a(op.render())
        if op.kind == "mfma":
            nm += 1
            if stamp == 2 and nm in (94, 110, 127, 176): a("s_waitcnt lgkmcnt(0)"); st({94: 17, 110: 18, 127: 19, 176: 20}[nm])
    ep = merge_waits(epi)
    for op in ep[:7]: a(op.render())
    st(14)
    for op in ep[7:]: a(op.render())
    st(15)
    if stamp:
        a("s_waitcnt vmcnt(0)")
        st(16)
        a(f"s_lshl_b32 s{sT}, s2, 2"); a(f"s_add_u32 s{sT}, s{sT}, s{sP}"); a(f"s_lshl_b32 s{sT}, s{sT}, 9"); a(f"s_add_u32 s{sT}, s{sT}, {24*MB}")
        a(f"v_lshrrev_b32 v2, 2, v{vL}")
        a(f"buffer_store_dword v7, v2, s[{S_WS}:{S_WS+3}], s{sT} offen")
        a(f"buffer_store_dword v239, v2, s[{S_WS}:{S_WS+3}], s{sT} offen offset:256")
    a.label(f"{name}_end")
    a("s_endpgm")
    a.label(f"{name}_fix")
    a("s_waitcnt vmcnt(0)")
    a(f"s_mov_b64 s[{sFix}:{sFix+1}], -1")
    assert all(w[0] == "HA" for w in WRAP[:npre])
    a(f"s_mov_b32 s{sT+2}, s{sU}"); a(f"s_mov_b32 s{sT+3}, s{sZ}")
    a(f"s_lshl_b32 s{sT+4}, s2, 2"); a(f"s_add_u32 s{sT+4}, s{sT+4}, s{sP}"); a(f"s_mul_i32 s{sU}, s{sT+4}, {PRIV_STRIDE}")
    a(f"s_add_u32 s{sU}, s{sU}, {PRIV_OFF}"); a(f"s_add_u32 s{sZ}, s{sU}, 196608")
    a(f"s_mov_b32 s{sT+4}, s{sU}")
    for i in range(1, 24):
        a(f"v_readlane_b32 s{sT+5}, v{vSc+1}, {i}"); a("s_nop 0"); a(f"s_min_u32 s{sT}, s{sT}, s{sT+5}")
    a(f"v_subrev_u32 v{vT+8}, s{sT}, v{vSc+1}")
    a(f"v_cmp_eq_u32 vcc, 0, v{vT+8}")
    a(f"v_min_u32 v{vT+8}, 0x3f000000, v{vT+8}"); a(f"v_sub_u32 v{vT+8}, 0x3f800000, v{vT+8}")
    a(f"s_ff1_i32_b64 s{sT+5}, vcc"); a(f"s_min_u32 s{sT+5}, s{sT+5}, 23"); a(f"s_lshl_b32 s{sT+5}, s{sT+5}, 2")
    a(f"v_mov_b32 v{vSc}, s{sT+5}")
    a(f"s_mov_b32 s{sT+6}, 0")
    a.label(f"{name}_fixU")
    a(f"s_mul_hi_u32 s{sT+7}, s{sT+6}, 0x55555556")
    a(f"s_mul_i32 s{sT+8}, s{sT+7}, 3"); a(f"s_sub_u32 s{sT+8}, s{sT+6}, s{sT+8}")
    a(f"s_lshr_b32 s{sT+7}, s{sT+7}, 1"); a(f"s_lshl_b32 s{sT+8}, s{sT+8}, 3"); a(f"s_add_u32 s{sT+7}, s{sT+7}, s{sT+8}")
    a("s_nop 3")
    a(f"v_readlane_b32 s{sT+9}, v{vT+8}, s{sT+7}")
    for f in range(4): a(f"buffer_load_dwordx4 {vr(16+4*f,4)}, v{vL}, s[{S_WS}:{S_WS+3}], s{sT+2} offen offset:{f*1024}")
    a(f"v_cvt_f16_f32 v{vT+9}, s{sT+9}"); a("s_nop 0"); a(f"v_pack_b32_f16 v{vT+9}, v{vT+9}, v{vT+9}")
    a("s_waitcnt vmcnt(0)")
    for i in range(16): a(f"v_pk_mul_f16 v{16+i}, v{16+i}, v{vT+9}")
    for f in range(4): a(f"buffer_store_dwordx4 {vr(16+4*f,4)}, v{vL}, s[{S_WS}:{S_WS+3}], s{sT+4} offen offset:{f*1024}")
    a("s_waitcnt vmcnt(0)")
    a(f"s_add_u32 s{sT+2}, s{sT+2}, 4096"); a(f"s_add_u32 s{sT+4}, s{sT+4}, 4096"); a(f"s_add_u32 s{sT+6}, s{sT+6}, 1")
    a(f"s_cmp_lt_u32 s{sT+6}, 48"); a(f"s_cbranch_scc1 {name}_fixU")
    a(f"s_add_u32 s{sT+6}, s{sP}, 1"); a(f"s_bfe_u32 s{sT+6}, s{sT+6}, 0x10001"); a(f"s_lshl_b32 s{sT+6}, s{sT+6}, 3")
    a(f"s_add_u32 s{sT+10}, s{sT+6}, 8")
    a.label(f"{name}_fixZ")
    a(f"s_lshr_b32 s{sT+7}, s{sT+6}, 1"); a(f"s_add_u32 s{sT+7}, s{sT+7}, 8")
    a("s_nop 3")
    a(f"v_readlane_b32 s{sT+9}, v{vT+8}, s{sT+7}")
    for f in range(4): a(f"buffer_load_dwordx4 {vr(16+4*f,4)}, v{vL}, s[{S_WS}:{S_WS+3}], s{sT+3} offen offset:{f*1024}")
    a("s_waitcnt vmcnt(0)")
    for i in range(16):
        a(f"v_lshlrev_b32 v{vT+9}, 16, v{16+i}"); a(f"v_and_b32 v{vT+10}, 0xffff0000, v{16+i}")
        a(f"v_mul_f32 v{vT+9}, s{sT+9}, v{vT+9}"); a(f"v_mul_f32 v{vT+10}, s{sT+9}, v{vT+10}")
        a(f"v_cvt_pk_bf16_f32 v{16+i}, v{vT+9}, v{vT+10}")
    for f in range(4): a(f"buffer_store_dwordx4 {vr(16+4*f,4)}, v{vL}, s[{S_WS}:{S_WS+3}], s{sT+4} offen offset:{f*1024}")
    a("s_waitcnt vmcnt(0)")
    a(f"s_add_u32 s{sT+3}, s{sT+3}, 4096"); a(f"s_add_u32 s{sT+4}, s{sT+4}, 4096"); a(f"s_add_u32 s{sT+6}, s{sT+6}, 1")
    a(f"s_cmp_lt_u32 s{sT+6}, s{sT+10}"); a(f"s_cbranch_scc1 {name}_fixZ")
    a(f"s_mul_i32 s{sW}, s{sP}, 5440"); a(f"s_add_u32 s{sW}, s{sW}, 0x10000")
    a(f"s_branch {name}_reload")
    kernel_desc(a, name, 512, 102, 256)
    return LB, FB

if __name__ == "__main__":
    import sys
    a = Asm()
    a("; @launch kernel=k2_kernel grid=(256,1,1) block=(256,1,1) lds=131072")
    a('.amdgcn_target "amdgcn-amd-amdhsa--gfx950"')
    opts = {}
    out = "k2_only.s"
    for x in sys.argv[1:]:
        if x.endswith(".s"): out = x
        elif "=" in x:
            k, v = x.split("="); opts[k] = float(v) if "." in v else int(v)
    LB, FB = gen_k2(a, "k2_kernel", stamp=(2 if "stamp2" in sys.argv else 1 if "stamp" in sys.argv else 0), opts=opts)
    open(out, "w").write(a.text())
    print("loop gap load:", LB.hist)
    print("final gap load:", FB.hist)
```

```python
import numpy as np
MB = 1 << 20
SCL_OFF = 0
H_OFF = 1*MB
E_OFF = 9*MB
U_OFF = 17*MB
Z_OFF = 23*MB
PRIV_OFF = 32*MB
PRIV_STRIDE = 224*1024

def perm_ch(g, e):
    return 4*g + e if e < 4 else 16 + 4*g + (e-4)
PERM = np.array([[perm_ch(g, e) for e in range(8)] for g in range(4)])

def bf16_round(x):
    u = np.ascontiguousarray(x, dtype=np.float32).view(np.uint32)
    return ((u + 0x7FFF + ((u >> 16) & 1)) >> 16).astype(np.uint16)
def bf16_f32(u16):
    return (u16.astype(np.uint32) << 16).view(np.float32)

def pack_H(h):
    h16 = h.astype(np.float16)
    out = np.zeros((16, 128, 2, 32, 4, 8), np.float16)
    for s in range(16):
        for g in range(4):
            ch = 32*s + PERM[g]
            v = h16[:, :, ch].reshape(128, 32, 2, 8)
            for idx in range(32):
                slot = g ^ (2*((idx >> 2) & 1))
                out[s, :, :, idx, slot, :] = v[:, idx, :, :]
    return out.view(np.uint16).reshape(-1)

def unpack_H(u16):
    a = u16.view(np.float16).reshape(16, 128, 2, 32, 4, 8)
    h = np.zeros((128, 32, 2, 512), np.float32)
    for s in range(16):
        for g in range(4):
            ch = 32*s + PERM[g]
            for idx in range(32):
                slot = g ^ (2*((idx >> 2) & 1))
                h[:, idx][:, :, ch] = a[s, :, :, idx, slot, :]
    return h.reshape(128, 64, 512)

def E_values(hin):
    e = hin.reshape(16, 8, 2, 16, 2, 512)
    e0 = e[..., 0, :]; e1 = e[..., 1, :]
    src = [e0[..., :256], (e0[..., 256:]+e1[..., 256:]), (e0[..., 256:]-e1[..., 256:]), -e1[..., :256]]
    out = np.zeros((16, 2, 4, 8, 8, 4, 16, 8), np.float32)
    for p in range(4):
        for ks in range(8):
            for g in range(4):
                ch = 32*ks + PERM[g]
                v = src[p][..., ch]
                out[:, :, p, ks, :, g, :, :] = v.transpose(0, 2, 1, 3, 4)
    return out
def pack_E(hin):
    return bf16_round(E_values(hin)).reshape(-1)

def U_values(wp):
    g0, g1, g2 = wp[:, 0], wp[:, 1], wp[:, 2]
    Up = [g0, 0.5*(g0+g1+g2), 0.5*(g0-g1+g2), g2]
    out = np.zeros((8, 4, 16, 3, 4, 4, 16, 8), np.float32)
    for p in range(4):
        u = Up[p].reshape(3, 16, 32, 8, 4, 16)
        for g in range(4):
            v = u[:, :, PERM[g]]
            out[:, p, :, :, :, g, :, :] = v.transpose(3, 1, 0, 4, 5, 2)
    return out
def Z_values(wz):
    z = wz.reshape(16, 32, 8, 4, 16)
    out = np.zeros((8, 16, 4, 4, 16, 8), np.float32)
    for g in range(4):
        out[:, :, :, g, :, :] = z[:, PERM[g]].transpose(2, 0, 3, 4, 1)
    return out

def tile_sigma(M):
    bits = np.float32(M).view(np.uint32)
    m = int(bits >> 23) - 127
    sig = (13 - m) - ((-6 - m) & 7)
    return max(-109, min(59, sig))

def pack_UZ(wp, wz, force_sigma=None):
    U = U_values(wp); Z = Z_values(wz)
    scl = np.zeros((4, 3, 8), np.float32)
    Uo = np.zeros(U.shape, np.float16); Zo = np.zeros(Z.shape, np.float32)
    for nq in range(4):
        for di in range(3):
            for kb in range(8):
                t = U[2*nq:2*nq+2, :, 2*kb:2*kb+2, di]
                sig = tile_sigma(np.abs(t).max())
                if force_sigma is not None: sig = force_sigma(nq, di, kb, sig)
                S = np.float32(2.0)**sig
                scl[nq, di, kb] = S
                r = bf16_f32(bf16_round(t*S))
                Uo[2*nq:2*nq+2, :, 2*kb:2*kb+2, di] = r.astype(np.float16)
                if di == 1:
                    Zo[2*nq:2*nq+2, 2*kb:2*kb+2] = Z[2*nq:2*nq+2, 2*kb:2*kb+2]*S*(0.5 if kb >= 4 else 1.0)
    return Uo.view(np.uint16).reshape(-1), bf16_round(Zo).reshape(-1), scl.reshape(-1)
```

```python
class Op:
    def __init__(self, text, kind="x", tag=None, vm=None, lg=None):
        self.text = text; self.kind = kind; self.tag = tag; self.vm = vm; self.lg = lg
        self.vmN = None; self.lgN = None
    def render(self):
        if self.kind == "wait":
            parts = []
            if self.vm is not None:
                assert self.vmN is not None, self.vm
                parts.append(f"vmcnt({min(self.vmN,63)})")
            if self.lg is not None:
                assert self.lgN is not None, self.lg
                parts.append(f"lgkmcnt({min(self.lgN,15)})")
            return "s_waitcnt " + " ".join(parts)
        return self.text

def vmem(text, tag=None): return Op(text, "vmem", tag)
def ds(text, tag=None): return Op(text, "ds", tag)
def wait(vm=None, lg=None): return Op(None, "wait", vm=vm, lg=lg)
def other(text): return Op(text, "x")
def mfma(text): return Op(text, "mfma")

class Block:
    def __init__(self, mfmas):
        self.mf = mfmas
        self.n = len(mfmas)
        self.fixed = {}
        self.soft = []
    def fix(self, gap, ops):
        self.fixed.setdefault(gap, []).extend(ops if isinstance(ops, list) else [ops])
    def put(self, pos, ops, deadline=None):
        self.soft.append((pos, len(self.soft), ops if isinstance(ops, list) else [ops], deadline))
    def layout(self, cap=1, slack=3, capf=None):
        gaps = {g: list(v) for g, v in self.fixed.items()}
        load = {g: len(v) for g, v in gaps.items()}
        cur = -1
        for pos, _, ops, dl in sorted(self.soft, key=lambda x: (x[0], x[1])):
            g0 = max(int(pos), cur)
            if capf: cap = capf(pos)
            g = g0
            while g < self.n-1 and load.get(g, 0) >= cap and g < int(pos) + slack and (dl is None or g < dl):
                g += 1
            if load.get(g, 0) >= cap:
                best = min(range(g0, g+1), key=lambda q: (load.get(q, 0), q))
                g = best
            assert dl is None or g <= dl, (ops[0].text, g, dl)
            g = min(g, self.n-1)
            lst = gaps.setdefault(g, [])
            nf = len(self.fixed.get(g, []))
            for o in ops:
                lst.insert(len(lst)-nf, o)
            load[g] = load.get(g, 0) + len(ops)
            cur = g
        seq = list(gaps.get(-1, []))
        for i, m in enumerate(self.mf):
            seq.append(m); seq.extend(gaps.get(i, []))
        self.hist = [load.get(g, 0) for g in range(-1, self.n)]
        return seq

def resolve(path):
    vm_log = []; lg_log = []
    for seq in path:
        for op in seq:
            if op.kind == "vmem": vm_log.append(op.tag)
            elif op.kind == "ds": lg_log.append(op.tag)
            elif op.kind == "wait":
                for attr, log, N in (("vm", vm_log, "vmN"), ("lg", lg_log, "lgN")):
                    t = getattr(op, attr)
                    if t is None: continue
                    tags = t if isinstance(t, (list, tuple)) else [t]
                    n = None
                    for tg in tags:
                        if tg == "ALL": k = 0
                        else:
                            idx = max((i for i, x in enumerate(log) if x == tg), default=None)
                            assert idx is not None, f"wait on {tg} never issued"
                            k = len(log) - 1 - idx
                        n = k if n is None else min(n, k)
                    old = getattr(op, N)
                    setattr(op, N, n if old is None else min(old, n))

def merge_waits(seq):
    out = []
    for op in seq:
        if out and op.kind == "wait" and out[-1].kind == "wait":
            p = out[-1]
            q = Op(None, "wait", vm=p.vm if p.vm is not None else op.vm, lg=p.lg if p.lg is not None else op.lg)
            vs = [x.vmN for x in (p, op) if x.vm is not None]; ls = [x.lgN for x in (p, op) if x.lg is not None]
            q.vmN = min(vs) if vs else None; q.lgN = min(ls) if ls else None
            out[-1] = q
        else: out.append(op)
    return out
```

```python
from asmlib import *
from sched import *
from layouts import *

LOG2E = 1.4426950408889634
def f32bits(x):
    import struct
    return struct.unpack("<I", struct.pack("<f", x))[0]

S_A, S_B, S_X, S_F, S_WS = 4, 8, 12, 16, 20
sW_, sJ, sXc = 24, 25, 26
sT = 28

def gen_k1(a, name, stamp=0, opts=None):
    opts = opts or {}
    kernel_begin(a, name)
    def st(k):
        if not stamp: return
        a("s_memrealtime s[84:85]"); a("s_memtime s[86:87]"); a("s_waitcnt lgkmcnt(0)")
        a(f"v_writelane_b32 v250, s84, {k}"); a(f"v_writelane_b32 v251, s86, {k}")
    def st_flush():
        if not stamp: return
        a("s_waitcnt vmcnt(0)"); st(15)
        a(f"s_lshl_b32 s{sT}, s2, 3"); a(f"s_add_u32 s{sT}, s{sT}, s{sW_}"); a(f"s_lshl_b32 s{sT}, s{sT}, 9"); a(f"s_add_u32 s{sT}, s{sT}, {25*MB}")
        a("v_and_b32 v2, 63, v0"); a("v_lshlrev_b32 v2, 2, v2")
        a(f"buffer_store_dword v250, v2, s[{S_WS}:{S_WS+3}], s{sT} offen")
        a(f"buffer_store_dword v251, v2, s[{S_WS}:{S_WS+3}], s{sT} offen offset:256")
    a("s_cmp_ge_u32 s2, 256")
    a(f"s_cbranch_scc1 {name}_end")
    st(0)
    a(f"s_load_dwordx2 s[{S_WS}:{S_WS+1}], s[0:1], 64")
    a(f"s_load_dwordx2 s[{S_X}:{S_X+1}], s[0:1], 8")
    a("v_lshrrev_b32 v1, 6, v0")
    a(f"s_and_b32 s{sXc}, s2, 7")
    a(f"v_readfirstlane_b32 s{sW_}, v1")
    a(f"s_lshr_b32 s{sJ}, s2, 3")
    a("v_and_b32 v1, 63, v0")
    a(f"s_mov_b32 s{S_WS+2}, 0x10000000"); a(f"s_mov_b32 s{S_WS+3}, 0x20000")
    a(f"s_mov_b32 s{S_X+2}, {8*MB}"); a(f"s_mov_b32 s{S_X+3}, 0x20000")
    a(f"s_cmp_ge_u32 s{sJ}, 28"); a(f"s_cbranch_scc1 {name}_pf")
    a(f"s_cmp_ge_u32 s{sJ}, 16"); a(f"s_cbranch_scc1 {name}_c")
    gen_a(a, name, st, opts)
    st_flush()
    a("s_endpgm")
    a.label(f"{name}_c")
    gen_c(a, name, st, opts)
    st_flush()
    a("s_endpgm")
    a.label(f"{name}_pf")
    if opts.get("pf", 1):
        a(f"s_sub_u32 s{sT}, s{sJ}, 28"); a(f"s_lshl_b32 s{sT+1}, s{sXc}, 2"); a(f"s_add_u32 s{sT}, s{sT}, s{sT+1}")
        a(f"s_lshl_b32 s{sT}, s{sT}, 18"); a(f"s_lshl_b32 s{sT+1}, s{sW_}, 15"); a(f"s_add_u32 s{sT}, s{sT}, s{sT+1}")
        a("v_lshlrev_b32 v2, 7, v1")
        a("s_waitcnt lgkmcnt(0)")
        for i in range(4):
            a(f"buffer_load_dword v{4+i}, v2, s[{S_X}:{S_X+3}], s{sT} offen"); a(f"s_add_u32 s{sT}, s{sT}, 8192")
    a("s_waitcnt vmcnt(0) lgkmcnt(0)")
    st_flush()
    a.label(f"{name}_end")
    a("s_endpgm")
    kernel_desc(a, name, 256 if stamp else 208, 96, 256 if stamp else 208)

def gen_a(a, name, st, opts):
    sR, sKp, sH0, sSo, sM, sWm, sCnt, sS = sT, sT+1, sT+2, sT+3, sT+4, sT+5, sT+6, sT+7
    sU0 = sT+8
    vC = 2
    vW = 4
    vTr = 8
    vCa, vCb, vCac, vCbc = 12, 13, 14, 15
    vAcc = 16
    vF = 80
    Wf = [80, 96]; Cf = 112
    acc = lambda T, tile: vr(vAcc + (T*4+tile)*4, 4)
    a(f"s_load_dwordx2 s[{S_A}:{S_A+1}], s[0:1], 16")
    a(f"s_load_dwordx2 s[{S_B}:{S_B+1}], s[0:1], 24")
    a(f"s_load_dwordx2 s[{S_F}:{S_F+1}], s[0:1], 0")
    a(f"s_lshl_b32 s{sR}, s{sXc}, 4"); a(f"s_add_u32 s{sR}, s{sR}, s{sJ}")
    a(f"s_lshr_b32 s{sKp}, s{sJ}, 1"); a(f"s_and_b32 s{sH0}, s{sJ}, 1")
    a(f"s_mov_b32 s{S_A+2}, {8*MB}"); a(f"s_mov_b32 s{S_A+3}, 0x20000")
    a(f"s_mov_b32 s{S_B+2}, {MB//2}"); a(f"s_mov_b32 s{S_B+3}, 0x20000")
    a(f"s_mov_b32 s{S_F+2}, {8*MB}"); a(f"s_mov_b32 s{S_F+3}, 0x20000")
    t0, t1, t2, t3 = 128, 129, 130, 131
    a(f"v_lshrrev_b32 v{t0}, 3, v1")
    a(f"v_and_b32 v{t1}, 7, v1")
    a(f"v_lshrrev_b32 v{t2}, 4, v1")
    a(f"v_xor_b32 v{t3}, v{t1}, v{t2}")
    a(f"v_lshlrev_b32 v{vC}, 11, v{t0}"); a(f"v_lshl_add_u32 v{vC}, v{t3}, 4, v{vC}")
    a(f"v_xor_b32 v{vC+1}, 64, v{vC}"); a(f"v_add_u32 v{vC+1}, 16384, v{vC+1}")
    a(f"s_lshl_b32 s{sSo}, s{sR}, 16"); a(f"s_lshl_b32 s{sU0}, s{sW_}, 7"); a(f"s_add_u32 s{sSo}, s{sSo}, s{sU0}")
    a(f"s_lshl_b32 s{sM}, s{sW_}, 13")
    a(f"s_add_u32 s{sWm}, s{sM}, 65536")
    a(f"v_and_b32 v{t3}, 1, v{t2}"); a(f"v_lshlrev_b32 v{t3}, 1, v{t3}"); a(f"v_xor_b32 v{t3}, v{t3}, v{t1}")
    a(f"v_lshlrev_b32 v{vW}, 10, v{t0}"); a(f"v_lshl_add_u32 v{vW}, v{t3}, 4, v{vW}"); a(f"v_add_u32 v{vW}, s{sU0}, v{vW}")
    a(f"v_xor_b32 v{vW+1}, 64, v{vW}"); a(f"v_add_u32 v{vW+1}, 7168, v{vW+1}")
    a(f"v_add_u32 v{vW+2}, 14336, v{vW}"); a(f"v_add_u32 v{vW+3}, 14336, v{vW+1}")
    def tile_dma(srd, tile, th, mbase, tag):
        hb, par = tile >> 1, tile & 1
        return [other(f"s_add_u32 m0, s{mbase}, {tile*2048+th*1024}"),
                other(f"s_add_u32 s{sU0+1}, s{sSo}, {hb*32768+par*1024}"),
                vmem(f"buffer_load_dwordx4 v{vC+th}, s[{srd}:{srd+3}], s{sU0+1} offen lds", tag)]
    def w_dma(slot, tag):
        ops = [other(f"s_add_u32 m0, s{sWm}, {slot*4096}"), other(f"s_xor_b32 s{sS}, s{sS}, 32768")]
        ops += [vmem(f"buffer_load_dwordx4 v{vW+i}, s[{S_B}:{S_B+3}], s{sS} offen offset:{i*1024} lds", tag) for i in range(4)]
        return ops
    a(f"s_lshl_b32 s{sS}, s{sJ}, 15"); a(f"s_xor_b32 s{sS}, s{sS}, 32768")
    a("s_waitcnt lgkmcnt(0)")
    st(1)
    pro = []
    for tile in range(4):
        for th in range(2): pro += tile_dma(S_A, tile, th, sM, "C")
    pro += w_dma(0, "W0") + w_dma(1, "W1")
    adv = [other(f"s_add_u32 s{sS}, s{sS}, 65536"), other(f"s_and_b32 s{sS}, s{sS}, 0x7ffff")]
    for op in pro: a(op.render())
    a(f"v_and_b32 v{t0}, 15, v1")
    a(f"v_lshrrev_b32 v{t1}, 1, v{t0}")
    a(f"v_xor_b32 v{t1}, v{t1}, v{t2}")
    a(f"v_lshlrev_b32 v{vCa}, 7, v{t0}"); a(f"v_lshl_add_u32 v{vCa}, v{t1}, 4, v{vCa}")
    a(f"s_lshl_b32 s{sU0}, s{sH0}, 6")
    a(f"v_xor_b32 v{vCa}, s{sU0}, v{vCa}"); a(f"v_xor_b32 v{vCb}, 64, v{vCa}")
    a(f"v_lshrrev_b32 v{t1}, 2, v{t0}")
    a(f"v_lshl_add_u32 v{t3}, v{t2}, 3, v{t1}")
    a(f"v_lshlrev_b32 v{vTr}, 7, v{t3}")
    a(f"v_and_b32 v{t3}, 3, v{t0}"); a(f"v_lshl_add_u32 v{vTr}, v{t3}, 3, v{vTr}")
    a(f"v_lshrrev_b32 v{t1}, 1, v{t1}"); a(f"v_and_b32 v{t3}, 1, v{t2}"); a(f"v_lshl_add_u32 v{t1}, v{t3}, 1, v{t1}")
    a(f"v_lshl_add_u32 v{vTr}, v{t1}, 5, v{vTr}"); a(f"v_add_u32 v{vTr}, s{sWm}, v{vTr}")
    for T in range(1, 4): a(f"v_xor_b32 v{vTr+T}, {T*32}, v{vTr}")
    a(f"s_lshl_b32 s{sKp}, s{sKp}, 13")
    a(f"v_add_u32 v{vCac}, s{sKp}, v{vCa}"); a(f"v_add_u32 v{vCbc}, s{sKp}, v{vCb}")
    for i in range(64): a(f"v_mov_b32 v{vAcc+i}, 0")
    a(f"s_mov_b32 s{sCnt}, 6")
    def w_reads(slot, dst):
        return [ds(f"ds_read_b64_tr_b16 {vr(dst+4*T+2*t,2)}, v{vTr+T} offset:{slot*4096+t*512}", f"wr{slot}") for T in range(4) for t in range(2)]
    def c_read(tile, addr): return ds(f"ds_read_b128 {vr(Cf+4*tile,4)}, v{addr} offset:{tile*2048}", f"cr{tile}")
    def step(slot, last):
        o = 1 - slot
        B = Block([mfma(f"v_mfma_f32_16x16x32_bf16 {acc(T,tile)}, {vr(Wf[slot]+4*T,4)}, {vr(Cf+4*tile,4)}, {acc(T,tile)}") for tile in range(4) for T in range(4)])
        B.fix(-1, wait(lg=[f"wr{slot}", "cr0"]))
        for tile in range(1, 4): B.fix(4*tile-1, wait(lg=f"cr{tile}"))
        if last == 0:
            ops = (adv if slot == 0 else []) + w_dma(slot, f"W{slot}")
        else:
            ops = sum([tile_dma(S_X, 2*slot+i, th, sWm, f"X{slot}") for i in range(2) for th in range(2)], [])
        for i, op in enumerate(ops): B.put(i*0.6, op)
        if not (last and slot == 1):
            B.put(5, wait(vm=f"W{o}"))
            for i, op in enumerate(w_reads(o, Wf[o])): B.put(5.5+i, op)
            nxt = vCbc if slot == 0 else vCac
            if slot == 1:
                B.put(2.5, [other(f"s_add_u32 s{sKp}, s{sKp}, 8192"), other(f"s_and_b32 s{sKp}, s{sKp}, 0xffff")])
                B.put(3.0, other(f"v_add_u32 v{vCac}, s{sKp}, v{vCa}"))
                B.put(15.2, other(f"v_add_u32 v{vCbc}, s{sKp}, v{vCb}"))
            if slot == 0: nxt = vCbc
            for tile in range(4): B.put(4*tile+3.9, c_read(tile, nxt))
        return B.layout(cap=2, slack=1)
    pre = [wait(vm="C"), other("s_barrier"), wait(vm="W0")] + w_reads(0, Wf[0]) + [c_read(t, vCac) for t in range(4)]
    loop = step(0, 0) + step(1, 0) + [other(f"s_sub_u32 s{sCnt}, s{sCnt}, 1")]
    fin = step(0, 1) + step(1, 1)
    sel = [Wf[0], Wf[0]+4]
    xf = Wf[0] + 8
    xr = [Wf[1] + 4*i for i in range(3)] + [Cf + 4*i for i in range(4)]
    tail = []
    resolve([pro, pre, loop, loop, fin])
    st(2)
    for op in merge_waits(pre): a(op.render())
    st(3)
    a.label(f"{name}_aloop")
    for op in merge_waits(loop): a(op.render())
    a(f"s_cbranch_scc0 {name}_aloop")
    for op in merge_waits(fin): a(op.render())
    st(4)
    if opts.get("touch", 1):
        a(f"v_lshlrev_b32 v{vW}, 7, v1"); a(f"s_lshl_b32 s{sU0}, s{sR}, 16"); a(f"s_lshl_b32 s{sU0+1}, s{sW_}, 13"); a(f"s_add_u32 s{sU0}, s{sU0}, s{sU0+1}")
        a(f"buffer_load_dword v200, v{vW}, s[{S_F}:{S_F+3}], s{sU0} offen")
    g_, i_ = 2, 3
    a(f"v_lshrrev_b32 v{g_}, 4, v1"); a(f"v_and_b32 v{i_}, 15, v1")
    a(f"v_lshrrev_b32 v6, 3, v{i_}"); a(f"v_sub_u32 v6, v{g_}, v6")
    a(f"v_and_b32 v7, 1, v{i_}"); a(f"v_lshlrev_b32 v7, 4, v7"); a(f"v_lshlrev_b32 v7, v7, 0x3f80") if False else None
    a(f"v_mov_b32 v8, 0x3f80"); a(f"v_lshlrev_b32 v7, v7, v8")
    a(f"v_bfe_u32 v8, v{i_}, 1, 2"); a(f"v_lshl_add_u32 v8, v6, 2, v8")
    for hh in range(2):
        for d in range(4):
            a(f"v_cmp_eq_u32 vcc, {8*hh+d}, v8"); a("s_nop 1"); a(f"v_cndmask_b32 v{sel[hh]+d}, 0, v7, vcc")
    a(f"s_lshl_b32 s{sU0}, s{sH0}, 6"); a(f"s_add_u32 s{sU0}, s{sU0}, 0")
    a(f"v_xor_b32 v{vCa}, s{sU0}, v{vCa}"); a(f"v_add_u32 v{vCa}, s{sWm}, v{vCa}"); a(f"v_xor_b32 v{vCb}, 64, v{vCa}")
    XR = [128+4*i for i in range(8)]
    a("s_waitcnt vmcnt(%d)" % (1 if opts.get("touch", 1) else 0))
    for tile in range(4):
        for h in range(2): a(f"ds_read_b128 {vr(XR[tile*2+h],4)}, v{vCa if h == 0 else vCb} offset:{tile*2048}")
    for tile in range(4):
        a(f"s_waitcnt lgkmcnt({6-2*tile})")
        for T in range(4): a(f"v_mfma_f32_16x16x32_bf16 {acc(T,tile)}, {vr(sel[T&1],4)}, {vr(XR[tile*2+(T>>1)],4)}, {acc(T,tile)}")
    st(5)
    vE = 4; vH = 5
    a(f"v_lshlrev_b32 v{vE}, 4, v1")
    a(f"s_lshr_b32 s{sU0}, s{sR}, 3"); a(f"s_lshl_b32 s{sU0}, s{sU0}, 19")
    a(f"s_and_b32 s{sU0+1}, s{sR}, 7"); a(f"s_lshl_b32 s{sU0+1}, s{sU0+1}, 10"); a(f"s_add_u32 s{sU0}, s{sU0}, s{sU0+1}")
    a(f"s_and_b32 s{sU0+1}, s{sW_}, 3"); a(f"s_lshl_b32 s{sU0+1}, s{sU0+1}, 14"); a(f"s_add_u32 s{sU0}, s{sU0}, s{sU0+1}")
    a(f"s_add_u32 s{sU0}, s{sU0}, {E_OFF}")
    A = lambda T, tile, j: vAcc + (T*4+tile)*4 + j
    P = [80, 84, 88, 92, 96, 100, 104, 108]
    a(f"s_cmp_ge_u32 s{sW_}, 4"); a(f"s_cbranch_scc1 {name}_eb")
    a("s_nop 1")
    k = 0
    for hb in range(2):
        for hp in range(2):
            for par in range(2):
                d = P[k % 8]; k += 1; n = "-" if par else ""
                for q in range(4):
                    T = 2*hp + (q >> 1); j = 2*(q & 1)
                    a(f"v_cvt_pk_bf16_f32 v{d+q}, {n}v{A(T,2*hb+par,j)}, {n}v{A(T,2*hb+par,j+1)}")
                a(f"s_add_u32 s{sU0+1}, s{sU0}, {hb*262144 + (3 if par else 0)*65536 + hp*8192}")
                a(f"buffer_store_dwordx4 {vr(d,4)}, v{vE}, s[{S_WS}:{S_WS+3}], s{sU0+1} offen")
    a(f"s_branch {name}_ej")
    a.label(f"{name}_eb")
    a("s_nop 1")
    k = 0
    for hb in range(2):
        for hp in range(2):
            for sg in range(2):
                d = P[k % 8]; k += 1
                for q in range(4):
                    T = 2*hp + (q >> 1); j = 2*(q & 1)
                    neg = " neg_lo:[0,1] neg_hi:[0,1]" if sg else ""
                    a(f"v_pk_add_f32 v[112:113], {vr(A(T,2*hb,j),2)}, {vr(A(T,2*hb+1,j),2)}{neg}")
                    a(f"v_cvt_pk_bf16_f32 v{d+q}, v112, v113")
                a(f"s_add_u32 s{sU0+1}, s{sU0}, {hb*262144 + (1+sg)*65536 + hp*8192}")
                a(f"buffer_store_dwordx4 {vr(d,4)}, v{vE}, s[{S_WS}:{S_WS+3}], s{sU0+1} offen")
    a.label(f"{name}_ej")
    st(6)
    S_ = [6, 7, 8, 9]; Q_ = [10, 11, 12, 13]; M_ = [112, 114, 116, 118]; tp = 120
    for tile in range(4):
        a(f"v_pk_add_f32 v[{tp}:{tp+1}], {vr(A(0,tile,0),2)}, {vr(A(0,tile,2),2)}")
        for T in range(1, 4):
            for j in (0, 2): a(f"v_pk_add_f32 v[{tp}:{tp+1}], v[{tp}:{tp+1}], {vr(A(T,tile,j),2)}")
        a(f"v_add_f32 v{S_[tile]}, v{tp}, v{tp+1}")
        a(f"v_mul_f32 v{M_[tile]}, 0x3d800000, v{S_[tile]}")
        first = True
        for T in range(4):
            for j in (0, 2):
                r = vr(A(T, tile, j), 2)
                a(f"v_pk_add_f32 {r}, {r}, {vr(M_[tile],2)} op_sel_hi:[1,0] neg_lo:[0,1] neg_hi:[0,1]")
                if first: a(f"v_pk_mul_f32 v[{tp}:{tp+1}], {r}, {r}"); first = False
                else: a(f"v_pk_fma_f32 v[{tp}:{tp+1}], {r}, {r}, v[{tp}:{tp+1}]")
        a(f"v_add_f32 v{Q_[tile]}, v{tp}, v{tp+1}")
    def merge(x, y, swap, n):
        a("s_nop 1")
        a(f"{swap} v{S_[x]}, v{S_[y]}"); a(f"{swap} v{Q_[x]}, v{Q_[y]}")
        a("s_nop 0")
        a(f"v_sub_f32 v{tp}, v{S_[x]}, v{S_[y]}"); a(f"v_add_f32 v{S_[x]}, v{S_[x]}, v{S_[y]}")
        a(f"v_mul_f32 v{tp+1}, {hex(f32bits(1.0/(2*n)))}, v{tp}"); a(f"v_add_f32 v{Q_[x]}, v{Q_[x]}, v{Q_[y]}")
        a(f"v_fmac_f32 v{Q_[x]}, v{tp}, v{tp+1}")
    merge(0, 2, "v_permlane32_swap_b32", 16); merge(1, 3, "v_permlane32_swap_b32", 16); merge(0, 1, "v_permlane16_swap_b32", 32)
    STAT = 131072
    a(f"v_mov_b32 v7, v{Q_[0]}")
    a(f"v_lshlrev_b32 v8, 6, v1"); a(f"s_lshl_b32 s{sU0}, s{sW_}, 3"); a(f"s_add_u32 s{sU0}, s{sU0}, {STAT}"); a(f"v_add_u32 v9, s{sU0}, v8")
    a(f"ds_write_b64 v9, v[6:7]")
    a(f"v_add_u32 v8, {STAT}, v8")
    a("s_waitcnt lgkmcnt(0)"); a("s_barrier")
    for i in range(4): a(f"ds_read_b128 {vr(80+4*i,4)}, v8 offset:{16*i}")
    a(f"v_and_b32 v6, 15, v1"); a(f"v_lshrrev_b32 v7, 4, v1")
    a(f"v_lshrrev_b32 v9, 1, v6"); a(f"v_and_b32 v9, 2, v9"); a(f"v_xor_b32 v9, v9, v7")
    a(f"v_lshlrev_b32 v{vH}, 6, v6"); a(f"v_lshl_add_u32 v{vH}, v9, 4, v{vH}")
    a(f"s_lshl_b32 s{sU0}, s{sR}, 12"); a(f"s_lshl_b32 s{sU0+1}, s{sW_}, 20"); a(f"s_add_u32 s{sU0}, s{sU0}, s{sU0+1}"); a(f"s_add_u32 s{sU0}, s{sU0}, {H_OFF}")
    a("s_waitcnt lgkmcnt(0)")
    a("v_pk_add_f32 v[6:7], v[80:81], v[82:83]")
    for i in range(2, 8): a(f"v_pk_add_f32 v[6:7], v[6:7], v[{80+2*i}:{81+2*i}]")
    a("v_mul_f32 v8, 0x3e000000, v6")
    a("v_mov_b32 v9, 0")
    for i in range(8):
        a(f"v_sub_f32 v10, v{80+2*i}, v8"); a("v_fmac_f32 v9, v10, v10")
    a("v_fmac_f32 v7, 0x3c800000, v9")
    a(f"v_mov_b32 v10, {hex(f32bits(1e-5))}")
    a("v_fmac_f32 v10, 0x3b000000, v7")
    a("v_rsq_f32 v10, v10")
    a("v_mul_f32 v6, 0x3b000000, v6")
    def bcast(x, y, z, u):
        a(f"v_mov_b32 v{z}, v{x}"); a("s_nop 1"); a(f"v_permlane32_swap_b32 v{x}, v{z}")
        a(f"v_mov_b32 v{y}, v{x}"); a(f"v_mov_b32 v{u}, v{z}"); a("s_nop 1")
        a(f"v_permlane16_swap_b32 v{x}, v{y}"); a(f"v_permlane16_swap_b32 v{z}, v{u}")
    bcast(6, 7, 8, 9); bcast(10, 11, 12, 13)
    a("s_nop 1")
    K = [80, 84, 88, 92]
    for tile in range(4):
        k = K[tile]
        a(f"v_sub_f32 v{k+1}, v{M_[tile]}, v{6+tile}"); a(f"v_mov_b32 v{k}, v{10+tile}")
        a(f"v_mul_f32 v{k+1}, v{k+1}, v{k}")
        a(f"v_mul_f32 v{k+2}, {hex(f32bits(-LOG2E))}, v{k}"); a(f"v_mul_f32 v{k+3}, {hex(f32bits(-LOG2E))}, v{k+1}")
    st(7)
    D = [96, 100, 104, 108]; kk = 0
    r8 = opts.get("hround", 1)
    if r8: a("s_mov_b32 s60, 0x00040004")
    for tile in range(4):
        k = K[tile]; hb, par = tile >> 1, tile & 1
        for hp in range(2):
            d = D[kk % 4]; kk += 1
            E2 = [112, 114, 116, 118] if False else [6, 8, 10, 12]
            for q in range(4):
                T = 2*hp + (q >> 1); j = 2*(q & 1); r = vr(A(T, tile, j), 2); e = E2[q]
                a(f"v_pk_fma_f32 v[{e}:{e+1}], {r}, {vr(k+2,2)}, {vr(k+2,2)} op_sel:[0,0,1] op_sel_hi:[1,0,1]")
                a(f"v_pk_fma_f32 {r}, {r}, {vr(k,2)}, {vr(k,2)} op_sel:[0,0,1] op_sel_hi:[1,0,1]")
                a(f"v_exp_f32 v{e}, v{e}"); a(f"v_exp_f32 v{e+1}, v{e+1}")
            for q in range(4):
                e = E2[q]
                a(f"v_pk_add_f32 v[{e}:{e+1}], v[{e}:{e+1}], 1.0 op_sel_hi:[1,0]")
                a(f"v_rcp_f32 v{e}, v{e}"); a(f"v_rcp_f32 v{e+1}, v{e+1}")
            for q in range(4):
                T = 2*hp + (q >> 1); j = 2*(q & 1); r = vr(A(T, tile, j), 2); e = E2[q]
                a(f"v_pk_mul_f32 v[{e}:{e+1}], v[{e}:{e+1}], {r}")
                a(f"v_cvt_pk_f16_f32 v{d+q}, v{e}, v{e+1}")
                if r8: a(f"v_pk_add_u16 v{d+q}, v{d+q}, s60"); a(f"v_and_b32 v{d+q}, 0xfff8fff8, v{d+q}")
            a(f"s_add_u32 s{sU0+1}, s{sU0}, {hp*524288 + par*2048 + hb*1024}")
            a(f"buffer_store_dwordx4 {vr(d,4)}, v{vH}, s[{S_WS}:{S_WS+3}], s{sU0+1} offen")
    st(8)

def gen_c(a, name, st, opts):
    sDi, sNq, sCh, sAo, sBo, sZc, sM = sT, sT+1, sT+2, sT+3, sT+4, sT+5, sT+6
    sU0 = sT+8
    vA = 2
    vB = 5
    vAr = 8
    vBr = 10
    vZr = 12
    vAcc = 16
    vZf = 64
    Af = [72, 96]; Bf = [120 - 0, 0]
    SLOT = 40960
    acc = lambda dj, kt, nt: vr(vAcc + ((dj*2+kt)*2+nt)*4, 4)
    a(f"s_load_dwordx2 s[{S_A}:{S_A+1}], s[0:1], 40")
    a(f"s_load_dwordx2 s[{S_B}:{S_B+1}], s[0:1], 32")
    a(f"s_sub_u32 s{sNq}, s{sJ}, 16"); a(f"s_lshr_b32 s{sDi}, s{sNq}, 2"); a(f"s_and_b32 s{sNq}, s{sNq}, 3")
    a(f"s_mov_b32 s{S_A+2}, {9*MB//2}"); a(f"s_mov_b32 s{S_A+3}, 0x20000")
    a(f"s_mov_b32 s{S_B+2}, {MB//2}"); a(f"s_mov_b32 s{S_B+3}, 0x20000")
    a(f"s_lshl_b32 s{sCh}, s{sNq}, 1"); a(f"s_mul_i32 s{sU0}, s{sDi}, 3"); a(f"s_add_u32 s{sCh}, s{sCh}, s{sU0}"); a(f"s_and_b32 s{sCh}, s{sCh}, 7")
    t0, t1, t2, t3 = 116, 117, 118, 119
    a(f"v_lshrrev_b32 v{t0}, 3, v1"); a(f"v_and_b32 v{t1}, 7, v1"); a(f"v_lshrrev_b32 v{t2}, 4, v1")
    a(f"s_and_b32 s{sU0}, s{sW_}, 1"); a(f"s_lshl_b32 s{sU0}, s{sU0}, 2")
    a(f"v_xor_b32 v{t3}, v{t1}, v{t2}"); a(f"v_xor_b32 v{t3}, s{sU0}, v{t3}")
    a(f"v_lshlrev_b32 v{vA}, 10, v{t0}"); a(f"v_lshl_add_u32 v{vA}, v{t3}, 4, v{vA}")
    a(f"s_mul_i32 s{sU0}, s{sDi}, 1572864"); a(f"s_lshl_b32 s{sU0+1}, s{sXc}, 16"); a(f"s_add_u32 s{sU0}, s{sU0}, s{sU0+1}")
    a(f"s_lshl_b32 s{sU0+1}, s{sW_}, 13"); a(f"s_add_u32 s{sU0}, s{sU0}, s{sU0+1}")
    a(f"v_add_u32 v{vA}, s{sU0}, v{vA}")
    a(f"v_add_u32 v{vA+1}, 524288, v{vA}"); a(f"v_add_u32 v{vA+2}, 1048576, v{vA}")
    a(f"v_and_b32 v{t3}, 15, v1"); a(f"s_and_b32 s{sU0}, s{sW_}, 1"); a(f"s_lshl_b32 s{sU0}, s{sU0}, 3")
    a(f"v_lshlrev_b32 v{t0}, 1, v{t2}"); a(f"v_xor_b32 v{t0}, s{sU0}, v{t0}"); a(f"v_xor_b32 v{t0}, v{t0}, v{t3}")
    a(f"v_lshlrev_b32 v{vB}, 10, v{t2}"); a(f"v_lshl_add_u32 v{vB}, v{t0}, 4, v{vB}")
    a(f"s_lshl_b32 s{sU0}, s{sW_}, 13"); a(f"s_lshl_b32 s{sU0+1}, s{sNq}, 8"); a(f"s_add_u32 s{sU0}, s{sU0}, s{sU0+1}")
    a(f"v_add_u32 v{vB}, s{sU0}, v{vB}"); a(f"v_add_u32 v{vB+1}, 3072, v{vB}")
    a(f"s_lshl_b32 s{sM}, s{sW_}, 10")
    def dma(slot, tag):
        ops = [other(f"s_lshl_b32 s{sAo}, s{sCh}, 7"), other(f"s_lshl_b32 s{sBo}, s{sCh}, 16")]
        for dj in range(3):
            ops += [other(f"s_add_u32 m0, s{sM}, {slot*SLOT+dj*8192}"), other("s_nop 0"),
                    vmem(f"buffer_load_dwordx4 v{vA+dj}, s[{S_A}:{S_A+3}], s{sAo} offen lds", tag)]
        ops += [other(f"s_lshl_b32 s{sU0}, s{sM}, 1"), other(f"s_add_u32 m0, s{sU0}, {slot*SLOT+24576}"), other("s_nop 0")]
        ops += [vmem(f"buffer_load_dwordx4 v{vB+i}, s[{S_B}:{S_B+3}], s{sBo} offen offset:{i*1024} lds", tag) for i in range(2)]
        ops += [other(f"s_add_u32 s{sCh}, s{sCh}, 1"), other(f"s_and_b32 s{sCh}, s{sCh}, 7")]
        return ops
    a(f"s_sub_u32 s{sZc}, s{sXc}, s{sCh}"); a(f"s_and_b32 s{sZc}, s{sZc}, 7")
    a("s_waitcnt lgkmcnt(0)")
    st(1)
    pro = dma(0, "D0") + dma(1, "D1")
    for op in pro: a(op.render())
    a(f"v_lshrrev_b32 v{t1}, 1, v{t3}"); a(f"v_xor_b32 v{t1}, v{t1}, v{t2}")
    a(f"v_lshlrev_b32 v{vAr}, 7, v{t3}"); a(f"v_lshl_add_u32 v{vAr}, v{t1}, 4, v{vAr}")
    a(f"s_lshr_b32 s{sU0}, s{sW_}, 2"); a(f"s_lshl_b32 s{sU0+1}, s{sU0}, 12"); a(f"v_add_u32 v{vAr}, s{sU0+1}, v{vAr}")
    a(f"v_xor_b32 v{vAr+1}, 64, v{vAr}")
    a(f"v_lshrrev_b32 v{t0}, 2, v{t3}")
    a(f"v_and_b32 v{t1}, 3, v{t3}"); a(f"v_lshlrev_b32 v{t1}, 3, v{t1}"); a(f"v_add_u32 v{t1}, 24576, v{t1}")
    a(f"s_and_b32 s{sU0+1}, s{sW_}, 3"); a(f"s_lshl_b32 s{sU0+1}, s{sU0+1}, 1")
    a(f"v_lshl_add_u32 v{vBr}, v{t2}, 3, v{t0}"); a(f"v_lshl_add_u32 v{vBr}, v{vBr}, 8, v{t1}")
    a(f"v_and_b32 v{vBr+1}, 1, v{t2}"); a(f"v_lshl_add_u32 v{vBr+1}, v{vBr+1}, 2, v{t0}"); a(f"v_xor_b32 v{vBr+1}, s{sU0+1}, v{vBr+1}")
    a(f"v_lshl_add_u32 v{vBr}, v{vBr+1}, 5, v{vBr}"); a(f"v_xor_b32 v{vBr+1}, 32, v{vBr}")
    a(f"v_lshl_add_u32 v{vZr}, v{t2}, 2, v{t0}"); a(f"v_lshl_add_u32 v{vZr}, v{vZr}, 8, v{t1}")
    a(f"s_lshl_b32 s{sU0}, s{sU0}, 13"); a(f"v_add_u32 v{vZr}, s{sU0}, v{vZr}")
    a(f"v_lshrrev_b32 v{vZr+1}, 1, v{t2}"); a(f"v_lshl_add_u32 v{vZr+1}, v{vZr+1}, 2, v{t0}"); a(f"v_xor_b32 v{vZr+1}, s{sU0+1}, v{vZr+1}")
    a(f"v_lshl_add_u32 v{vZr}, v{vZr+1}, 5, v{vZr}"); a(f"v_xor_b32 v{vZr+1}, 32, v{vZr}")
    for i in range(48): a(f"v_mov_b32 v{vAcc+i}, 0")
    st(2)
    AF = [72, 96]
    BF = [120, 128]
    seq = []
    for c in range(8):
        slot = c % 3
        seq += [wait(vm=f"D{c}"), other("s_barrier")]
        if c + 2 < 8: seq += dma((c+2) % 3, f"D{c+2}")
        lab = f"{name}_z{c}"
        so = slot*SLOT
        if slot == 2:
            pass
        seq += [other(f"s_cmp_lg_u32 s{sZc}, {c}"), other(f"s_cbranch_scc1 {lab}")]
        seq += [other(f"ds_read_b64_tr_b16 {vr(vZf+4*nt+2*t,2)}, v{vZr+nt} offset:{t*4096}") for nt in range(2) for t in range(2)]
        seq += [other("s_waitcnt lgkmcnt(0)"), other(f"{lab}:")]
        rd = []
        for h in range(2):
            rd.append([ds(f"ds_read_b64_tr_b16 {vr(BF[h]+4*nt+2*t,2)}, v{vBr+nt} offset:{h*8192+t*1024}", f"r{h}") for nt in range(2) for t in range(2)] +
                      [ds(f"ds_read_b128 {vr(AF[h]+4*(dj*2+kt),4)}, v{vAr+h} offset:{dj*8192+kt*2048}", f"r{h}") for dj in range(3) for kt in range(2)])
        mm = [[mfma(f"v_mfma_f32_16x16x32_bf16 {acc(dj,kt,nt)}, {vr(AF[h]+4*(dj*2+kt),4)}, {vr(BF[h]+4*nt,4)}, {acc(dj,kt,nt)}") for dj in range(3) for kt in range(2) for nt in range(2)] for h in range(2)]
        seq += rd[0] + rd[1][:5] + [wait(lg="r0")]
        for i, m in enumerate(mm[0]):
            seq.append(m)
            if i < 5: seq.append(rd[1][5+i])
        seq += [wait(lg="r1")] + mm[1]
        step = SLOT if slot < 2 else -2*SLOT
        if c < 7:
            for r in (vAr, vAr+1, vBr, vBr+1, vZr, vZr+1):
                seq.append(other(f"v_add_u32 v{r}, {step & 0xffffffff}, v{r}"))
    resolve([pro, seq])
    for op in merge_waits(seq): a(op.render())
    st(4)
    A = lambda dj, kt, nt, j: vAcc + ((dj*2+kt)*2+nt)*4 + j
    U1, U2 = 72, 88
    a("s_nop 7")
    a("v_mov_b32 v2, 0")
    for kt in range(2):
        for nt in range(2):
            for j in (0, 2):
                o = (kt*2+nt)*4 + j
                g0, g1, g2 = [vr(A(dj, kt, nt, j), 2) for dj in range(3)]
                a(f"v_pk_add_f32 v[4:5], {g0}, {g2}")
                a(f"v_pk_add_f32 {vr(U1+o,2)}, v[4:5], {g1}")
                a(f"v_pk_add_f32 {vr(U2+o,2)}, v[4:5], {g1} neg_lo:[0,1] neg_hi:[0,1]")
                a(f"v_pk_mul_f32 {vr(U1+o,2)}, {vr(U1+o,2)}, 0.5 op_sel_hi:[1,0]")
                a(f"v_pk_mul_f32 {vr(U2+o,2)}, {vr(U2+o,2)}, 0.5 op_sel_hi:[1,0]")
                for r in (A(0, kt, nt, j), A(2, kt, nt, j), U1+o, U2+o):
                    a(f"v_max3_f32 v2, abs(v{r}), abs(v{r+1}), v2")
    for sh in (8, 4, 2, 1):
        a("s_nop 1"); a(f"v_max_f32_dpp v2, v2, v2 row_ror:{sh} row_mask:0xf bank_mask:0xf")
    a("v_mov_b32 v3, v2"); a("s_nop 1"); a("v_permlane32_swap_b32 v2, v3"); a("s_nop 0"); a("v_max_f32 v2, v2, v3")
    a("v_mov_b32 v3, v2"); a("s_nop 1"); a("v_permlane16_swap_b32 v2, v3"); a("s_nop 0"); a("v_max_f32 v2, v2, v3")
    MX = 3*SLOT
    a(f"s_lshl_b32 s{sU0}, s{sW_}, 2"); a(f"s_add_u32 s{sU0}, s{sU0}, {MX}"); a(f"v_mov_b32 v3, s{sU0}")
    a("ds_write_b32 v3, v2"); a(f"v_mov_b32 v3, {MX}")
    a("s_waitcnt lgkmcnt(0)"); a("s_barrier")
    a("ds_read_b128 v[4:7], v3"); a("ds_read_b128 v[8:11], v3 offset:16")
    a(f"s_lshl_b32 s{sU0}, s{sNq}, 1"); a(f"s_bfe_u32 s{sU0+1}, s{sW_}, 0x10001"); a(f"s_add_u32 s{sU0}, s{sU0}, s{sU0+1}")
    a(f"s_lshl_b32 s{sU0+1}, s{sXc}, 1"); a(f"s_lshr_b32 s{sU0+2}, s{sW_}, 2"); a(f"s_add_u32 s{sU0+1}, s{sU0+1}, s{sU0+2}")
    a(f"s_and_b32 s{sU0+2}, s{sW_}, 1"); a(f"s_lshl_b32 s{sU0+2}, s{sU0+2}, 11")
    a(f"s_mul_i32 s{sU0+3}, s{sU0}, 786432"); a(f"s_mul_i32 s{sU0+4}, s{sU0+1}, 12288"); a(f"s_add_u32 s{sU0+3}, s{sU0+3}, s{sU0+4}")
    a(f"s_lshl_b32 s{sU0+4}, s{sDi}, 12"); a(f"s_add_u32 s{sU0+3}, s{sU0+3}, s{sU0+4}"); a(f"s_add_u32 s{sU0+3}, s{sU0+3}, s{sU0+2}")
    a(f"s_add_u32 s{sU0+3}, s{sU0+3}, {U_OFF}")
    a(f"s_lshl_b32 s{sU0+4}, s{sU0}, 16"); a(f"s_lshl_b32 s{sU0+5}, s{sU0+1}, 12"); a(f"s_add_u32 s{sU0+4}, s{sU0+4}, s{sU0+5}")
    a(f"s_add_u32 s{sU0+4}, s{sU0+4}, s{sU0+2}"); a(f"s_add_u32 s{sU0+4}, s{sU0+4}, {Z_OFF}")
    a("v_lshlrev_b32 v12, 4, v1")
    a("s_waitcnt lgkmcnt(0)")
    a("v_max3_f32 v4, v4, v5, v6"); a("v_max3_f32 v4, v4, v7, v8"); a("v_max3_f32 v4, v4, v9, v10"); a("v_max_f32 v4, v4, v11")
    a("s_nop 0"); a(f"v_readfirstlane_b32 s{sU0+6}, v4"); a("s_nop 3")
    a(f"s_lshr_b32 s{sU0+6}, s{sU0+6}, 23")
    a(f"s_sub_u32 s{sU0+7}, 121, s{sU0+6}"); a(f"s_and_b32 s{sU0+7}, s{sU0+7}, 7")
    a(f"s_sub_u32 s{sU0+6}, 267, s{sU0+6}"); a(f"s_sub_u32 s{sU0+6}, s{sU0+6}, s{sU0+7}")
    a(f"s_max_u32 s{sU0+6}, s{sU0+6}, 18"); a(f"s_min_u32 s{sU0+6}, s{sU0+6}, 186")
    a(f"s_lshl_b32 s60, s{sU0+6}, 23"); a("s_mov_b32 s61, s60"); a("s_mov_b32 s62, 0x00040004")
    D = [104, 108, 112, 116]; kk = 0
    for p in range(4):
        for nt in range(2):
            d = D[kk % 4]; kk += 1
            for q in range(4):
                kt, j = q >> 1, 2*(q & 1)
                r = [A(0, kt, nt, j), U1+(kt*2+nt)*4+j, U2+(kt*2+nt)*4+j, A(2, kt, nt, j)][p]
                a(f"v_pk_mul_f32 v[4:5], {vr(r,2)}, s[60:61]")
                a(f"v_cvt_pk_f16_f32 v{d+q}, v4, v5")
                a(f"v_pk_add_u16 v{d+q}, v{d+q}, s62"); a(f"v_and_b32 v{d+q}, 0xfff8fff8, v{d+q}")
            a(f"s_add_u32 s{sU0+5}, s{sU0+3}, {p*196608}")
            a(f"buffer_store_dwordx4 {vr(d,4)}, v12, s[{S_WS}:{S_WS+3}], s{sU0+5} offen offset:{nt*1024}")
    a(f"s_lshl_b32 s{sU0+5}, s{sNq}, 5"); a(f"s_lshl_b32 s{sU0+6}, s{sDi}, 3"); a(f"s_add_u32 s{sU0+5}, s{sU0+5}, s{sU0+6}")
    a(f"s_add_u32 s{sU0+5}, s{sU0+5}, s{sXc}"); a(f"s_lshl_b32 s{sU0+5}, s{sU0+5}, 2")
    a("v_mov_b32 v4, s60"); a("v_mov_b32 v5, 0")
    a(f"s_cmp_lg_u32 s{sW_}, 0"); a(f"s_cbranch_scc1 {name}_ns")
    a("s_mov_b64 exec, 1"); a(f"buffer_store_dword v4, v5, s[{S_WS}:{S_WS+3}], s{sU0+5} offen offset:{SCL_OFF}"); a("s_mov_b64 exec, -1")
    a.label(f"{name}_ns")
    a(f"s_cmp_lg_u32 s{sDi}, 1"); a(f"s_cbranch_scc1 {name}_nz")
    a(f"s_cmp_ge_u32 s{sXc}, 4"); a(f"s_cselect_b32 s61, 0x800000, 0"); a("s_sub_u32 s60, s60, s61")
    for i in range(8):
        a(f"v_lshlrev_b32 v4, 16, v{vZf+i}"); a(f"v_and_b32 v5, 0xffff0000, v{vZf+i}")
        a("v_mul_f32 v4, s60, v4"); a("v_mul_f32 v5, s60, v5")
        a(f"v_cvt_pk_bf16_f32 v{vZf+i}, v4, v5")
    for nt in range(2): a(f"buffer_store_dwordx4 {vr(vZf+4*nt,4)}, v12, s[{S_WS}:{S_WS+3}], s{sU0+4} offen offset:{nt*1024}")
    a.label(f"{name}_nz")
    st(8)

if __name__ == "__main__":
    import sys
    import k2
    opts = {}; out = "full.s"
    for x in sys.argv[1:]:
        if x.endswith(".s"): out = x
        elif "=" in x:
            k, v = x.split("="); opts[k] = float(v) if "." in v else int(v)
    stamp = 1 if "stamp" in sys.argv else 0
    a = Asm()
    a("; @launch kernel=cn_k1_kernel grid=(256,1,1) block=(512,1,1) lds=135168")
    a("; @launch kernel=cn_k2_kernel grid=(256,1,1) block=(256,1,1) lds=131072")
    a('.amdgcn_target "amdgcn-amd-amdhsa--gfx950"')
    gen_k1(a, "cn_k1_kernel", stamp=stamp, opts=opts)
    o2 = dict(xf_late=1, lead=48, unpack_in_loop=180); o2.update(opts)
    k2.gen_k2(a, "cn_k2_kernel", stamp=stamp, opts=o2)
    open(out, "w").write(a.text())
```

```python
from asmlib import *
from sched import *
from layouts import *

LOG2E = 1.4426950408889634
def f32bits(x):
    import struct
    return struct.unpack("<I", struct.pack("<f", x))[0]

S_A, S_B, S_X, S_F, S_WS = 4, 8, 12, 16, 20
sW_, sJ, sXc = 24, 25, 26
sT = 28

def gen_k1(a, name, stamp=0, opts=None):
    opts = opts or {}
    kernel_begin(a, name)
    def st(k):
        if not stamp: return
        a("s_memrealtime s[84:85]"); a("s_memtime s[86:87]"); a("s_waitcnt lgkmcnt(0)")
        a(f"v_writelane_b32 v250, s84, {k}"); a(f"v_writelane_b32 v251, s86, {k}")
    def st_flush():
        if not stamp: return
        a("s_waitcnt vmcnt(0)"); st(15)
        a(f"s_lshl_b32 s{sT}, s2, 3"); a(f"s_add_u32 s{sT}, s{sT}, s{sW_}"); a(f"s_lshl_b32 s{sT}, s{sT}, 9"); a(f"s_add_u32 s{sT}, s{sT}, {25*MB}")
        a("v_and_b32 v2, 63, v0"); a("v_lshlrev_b32 v2, 2, v2")
        a(f"buffer_store_dword v250, v2, s[{S_WS}:{S_WS+3}], s{sT} offen")
        a(f"buffer_store_dword v251, v2, s[{S_WS}:{S_WS+3}], s{sT} offen offset:256")
    a("s_cmp_ge_u32 s2, 256")
    a(f"s_cbranch_scc1 {name}_end")
    st(0)
    a(f"s_load_dwordx2 s[{S_WS}:{S_WS+1}], s[0:1], 64")
    a(f"s_load_dwordx2 s[{S_X}:{S_X+1}], s[0:1], 8")
    a("v_lshrrev_b32 v1, 6, v0")
    a(f"s_and_b32 s{sXc}, s2, 7")
    a(f"v_readfirstlane_b32 s{sW_}, v1")
    a(f"s_lshr_b32 s{sJ}, s2, 3")
    a("v_and_b32 v1, 63, v0")
    a(f"s_mov_b32 s{S_WS+2}, 0x10000000"); a(f"s_mov_b32 s{S_WS+3}, 0x20000")
    a(f"s_mov_b32 s{S_X+2}, {8*MB}"); a(f"s_mov_b32 s{S_X+3}, 0x20000")
    a(f"s_cmp_ge_u32 s{sJ}, 28"); a(f"s_cbranch_scc1 {name}_pf")
    a(f"s_cmp_ge_u32 s{sJ}, 16"); a(f"s_cbranch_scc1 {name}_c")
    gen_a(a, name, st, opts)
    st_flush()
    a("s_endpgm")
    a.label(f"{name}_c")
    helper_touch(a, name + "_c", "c", opts)
    if opts.get("noc"): a("s_waitcnt vmcnt(0) lgkmcnt(0)"); st(1); st(2); st(4); st(8)
    else: gen_c(a, name, st, opts)
    st_flush()
    a("s_endpgm")
    a.label(f"{name}_pf")
    helper_touch(a, name + "_p", "p", opts)
    if opts.get("xft", 0) == 2:
        a(f"s_load_dwordx2 s[{S_F}:{S_F+1}], s[0:1], 0"); a(f"s_mov_b32 s{S_F+2}, {8*MB}"); a(f"s_mov_b32 s{S_F+3}, 0x20000")
        a(f"s_sub_u32 s72, s{sJ}, 28"); a(f"s_lshl_b32 s74, s{sXc}, 2"); a("s_add_u32 s72, s72, s74"); a("s_lshl_b32 s72, s72, 18")
        a(f"s_lshl_b32 s74, s{sW_}, 15"); a("s_add_u32 s72, s72, s74"); a("s_waitcnt lgkmcnt(0)"); a("s_barrier")
        for i in range(4): a(f"buffer_load_dword v213, v210, s[{S_F}:{S_F+3}], s72 offen"); a("s_add_u32 s72, s72, 8192")
    else: xf_touch(a, opts)
    a("s_waitcnt vmcnt(0) lgkmcnt(0)")
    st_flush()
    a.label(f"{name}_end")
    a("s_endpgm")
    kernel_desc(a, name, 256 if stamp else 216, 96, 256 if stamp else 216)

def gen_a(a, name, st, opts):
    sR, sSo, sM, sWm, sS, sM2 = sT, sT+3, sT+4, sT+5, sT+7, sT+6
    sU0 = sT+8
    vC = 2
    vW = 4
    vTr = 8
    vCa, vCb, vXa, vXb = 12, 13, 14, 15
    vAcc = 16
    Wf = [80, 96]; Cf = 112; sel = [128, 132]
    acc = lambda T, tile: vr(vAcc + (T*4+tile)*4, 4)
    a(f"s_load_dwordx2 s[{S_A}:{S_A+1}], s[0:1], 16")
    a(f"s_load_dwordx2 s[{S_B}:{S_B+1}], s[0:1], 24")
    a(f"s_load_dwordx2 s[{S_F}:{S_F+1}], s[0:1], 0")
    a(f"s_lshl_b32 s{sR}, s{sXc}, 4"); a(f"s_add_u32 s{sR}, s{sR}, s{sJ}")
    a(f"s_mov_b32 s{S_A+2}, {8*MB}"); a(f"s_mov_b32 s{S_A+3}, 0x20000")
    a(f"s_mov_b32 s{S_B+2}, {MB//2}"); a(f"s_mov_b32 s{S_B+3}, 0x20000")
    a(f"s_mov_b32 s{S_F+2}, {8*MB}"); a(f"s_mov_b32 s{S_F+3}, 0x20000")
    t0, t1, t2, t3 = 136, 137, 138, 139
    a(f"v_lshrrev_b32 v{t0}, 3, v1")
    a(f"v_and_b32 v{t1}, 7, v1")
    a(f"v_lshrrev_b32 v{t2}, 4, v1")
    a(f"v_xor_b32 v{t3}, v{t1}, v{t2}")
    a(f"v_lshlrev_b32 v{vC}, 11, v{t0}"); a(f"v_lshl_add_u32 v{vC}, v{t3}, 4, v{vC}")
    a(f"v_xor_b32 v{vC+1}, 64, v{vC}"); a(f"v_add_u32 v{vC+1}, 16384, v{vC+1}")
    a(f"s_lshl_b32 s{sU0+2}, s{sR}, 16"); a(f"s_lshl_b32 s{sU0}, s{sW_}, 7"); a(f"s_add_u32 s{sSo}, s{sU0+2}, s{sU0}")
    NSL = opts.get("nsl", 3)
    a(f"s_mul_i32 s{sWm}, s{sW_}, {NSL*4096}"); a(f"s_add_u32 s{sWm}, s{sWm}, 65536")
    if opts.get("prio"):
        a(f"s_cmp_lt_u32 s{sW_}, 4"); a(f"s_cbranch_scc1 {name}_np"); a("s_setprio 1"); a.label(f"{name}_np")
    a(f"s_and_b32 s{sU0+1}, s{sW_}, 3"); a(f"s_lshr_b32 s{sU0+3}, s{sW_}, 2")
    a(f"s_lshl_b32 s{sM}, s{sU0+1}, 13"); a(f"s_lshl_b32 s{sU0+4}, s{sU0+3}, 12"); a(f"s_add_u32 s{sM}, s{sM}, s{sU0+4}")
    a(f"s_lshl_b32 s{sM2}, s{sU0+1}, 7"); a(f"s_lshl_b32 s{sU0+4}, s{sU0+3}, 15"); a(f"s_add_u32 s{sM2}, s{sM2}, s{sU0+4}"); a(f"s_add_u32 s{sM2}, s{sM2}, s{sU0+2}")
    a(f"v_and_b32 v{t3}, 1, v{t2}"); a(f"v_lshlrev_b32 v{t3}, 1, v{t3}"); a(f"v_xor_b32 v{t3}, v{t3}, v{t1}")
    a(f"v_lshlrev_b32 v{vW}, 10, v{t0}"); a(f"v_lshl_add_u32 v{vW}, v{t3}, 4, v{vW}"); a(f"v_add_u32 v{vW}, s{sU0}, v{vW}")
    a(f"v_xor_b32 v{vW+1}, 64, v{vW}"); a(f"v_add_u32 v{vW+1}, 7168, v{vW+1}")
    a(f"v_add_u32 v{vW+2}, 14336, v{vW}"); a(f"v_add_u32 v{vW+3}, 14336, v{vW+1}")
    def c_dma(half, tag):
        ops = []
        for par in range(2):
            for th in range(2):
                ops += [other(f"s_add_u32 m0, s{sM}, {half*32768+par*2048+th*1024}"),
                        other(f"s_add_u32 s{sU0+1}, s{sM2}, {half*512+par*1024}"),
                        vmem(f"buffer_load_dwordx4 v{vC+th}, s[{S_A}:{S_A+3}], s{sU0+1} offen lds", tag)]
        return ops
    ORDER = list(range(16))
    xpos = opts.get("xpos", 14)
    ORDER = ORDER[:xpos] + ["xa", "xb"] + ORDER[xpos:]
    NS = len(ORDER)
    def dma(i):
        k = ORDER[i]; slot = i % NSL
        if k in ("xa", "xb"):
            hb = 0 if k == "xa" else 1
            ops = []
            for par in range(2):
                for th in range(2):
                    ops += [other(f"s_add_u32 m0, s{sWm}, {slot*4096+par*2048+th*1024}"),
                            other(f"s_add_u32 s{sU0+1}, s{sSo}, {hb*32768+par*1024}"),
                            vmem(f"buffer_load_dwordx4 v{vC+th}, s[{S_X}:{S_X+3}], s{sU0+1} offen lds", f"D{i}")]
            return ops
        return [other(f"s_add_u32 m0, s{sWm}, {slot*4096}"), other(f"s_mov_b32 s{sS}, {k*32768}")] + \
               [vmem(f"buffer_load_dwordx4 v{vW+q}, s[{S_B}:{S_B+3}], s{sS} offen offset:{q*1024} lds", f"D{i}") for q in range(4)]
    def frag_reads(i):
        k = ORDER[i]; slot = i % NSL; dst = Wf[i & 1]
        if k in ("xa", "xb"):
            return [ds(f"ds_read_b128 {vr(dst+8*par+4*h,4)}, v{vXa+h} offset:{slot*4096+par*2048}", f"f{i}") for par in range(2) for h in range(2)]
        return [ds(f"ds_read_b64_tr_b16 {vr(dst+4*T+2*t,2)}, v{vTr+T} offset:{slot*4096+t*512}", f"f{i}") for T in range(4) for t in range(2)]
    def c_read(tile, k): return ds(f"ds_read_b128 {vr(Cf+4*tile,4)}, v{vCa+(k&1)} offset:{(k>>1)*8192+tile*2048}", f"cr{tile}")
    a("s_waitcnt lgkmcnt(0)")
    st(1)
    pro = c_dma(0, "C0") + [other("s_barrier")] + dma(0)
    for op in pro: a(op.render())
    a(f"v_and_b32 v{t0}, 15, v1")
    a(f"v_lshrrev_b32 v{t1}, 1, v{t0}")
    a(f"v_xor_b32 v{t1}, v{t1}, v{t2}")
    a(f"v_lshlrev_b32 v{vCa}, 7, v{t0}"); a(f"v_lshl_add_u32 v{vCa}, v{t1}, 4, v{vCa}")
    a(f"v_xor_b32 v{vCb}, 64, v{vCa}"); a(f"v_add_u32 v{vXa}, s{sWm}, v{vCa}"); a(f"v_add_u32 v{vXb}, s{sWm}, v{vCb}")
    a(f"v_lshrrev_b32 v{t1}, 2, v{t0}")
    a(f"v_lshl_add_u32 v{t3}, v{t2}, 3, v{t1}")
    a(f"v_lshlrev_b32 v{vTr}, 7, v{t3}")
    a(f"v_and_b32 v{t3}, 3, v{t0}"); a(f"v_lshl_add_u32 v{vTr}, v{t3}, 3, v{vTr}")
    a(f"v_lshrrev_b32 v{t1}, 1, v{t1}"); a(f"v_and_b32 v{t3}, 1, v{t2}"); a(f"v_lshl_add_u32 v{t1}, v{t3}, 1, v{t1}")
    a(f"v_lshl_add_u32 v{vTr}, v{t1}, 5, v{vTr}"); a(f"v_add_u32 v{vTr}, s{sWm}, v{vTr}")
    for T in range(1, 4): a(f"v_xor_b32 v{vTr+T}, {T*32}, v{vTr}")
    a(f"v_lshrrev_b32 v{t1}, 3, v{t0}"); a(f"v_sub_u32 v{t1}, v{t2}, v{t1}")
    a(f"v_bfe_u32 v{t3}, v{t0}, 1, 2"); a(f"v_lshl_add_u32 v{t1}, v{t1}, 2, v{t3}")
    a(f"v_and_b32 v{t3}, 1, v{t0}"); a(f"v_lshlrev_b32 v{t3}, 4, v{t3}"); a(f"v_mov_b32 v{t0}, 0x3f80"); a(f"v_lshlrev_b32 v{t3}, v{t3}, v{t0}")
    for hh in range(2):
        for d in range(4):
            a(f"v_cmp_eq_u32 vcc, {8*hh+d}, v{t1}"); a("s_nop 1"); a(f"v_cndmask_b32 v{sel[hh]+d}, 0, v{t3}, vcc")
    def step(i):
        k = ORDER[i]; slot = i & 1
        isx = k in ("xa", "xb")
        if isx:
            hb = 0 if k == "xa" else 1
            mm = [mfma(f"v_mfma_f32_16x16x32_bf16 {acc(T,2*hb+par)}, {vr(sel[T&1],4)}, {vr(Wf[slot]+8*par+4*(T>>1),4)}, {acc(T,2*hb+par)}") for par in range(2) for T in range(4)]
        else:
            c0 = (lambda T, tile: "0") if i == 0 else acc
            mm = [mfma(f"v_mfma_f32_16x16x32_bf16 {acc(T,tile)}, {vr(Wf[slot]+4*T,4)}, {vr(Cf+4*tile,4)}, {c0(T,tile)}") for tile in range(4) for T in range(4)]
        B = Block(mm); n = len(mm)
        head = [wait(lg=[f"f{i}"] + ([] if isx else ["cr0"]))]
        if k == 7: head += [wait(vm="C1"), other("s_barrier")]
        elif opts.get("abar") and i and i % opts["abar"] == 0: head += [other("s_barrier")]
        B.fix(-1, head)
        if not isx:
            for tile in range(1, 4): B.fix(4*tile-1, wait(lg=f"cr{tile}"))
        ops = dma(i+NSL) if i + NSL < NS else []
        if i == opts.get("c2pos", 1): ops = ops + c_dma(1, "C1")
        if i == NS-2 and opts.get("touch", 0):
            ops = [other(f"v_lshlrev_b32 v{t0}, 7, v1"), other(f"s_lshl_b32 s{sU0}, s{sW_}, 13"), other(f"s_add_u32 s{sU0}, s{sU0}, s{sU0+2}"),
                   vmem(f"buffer_load_dword v200, v{t0}, s[{S_F}:{S_F+3}], s{sU0} offen", "touch")]
        sc = n/16
        for q, op in enumerate(ops): B.put(q*0.6*sc*(6/max(6, len(ops))), op)
        if i + 1 < NS:
            B.put(5*sc, wait(vm=f"D{i+1}"))
            for q, op in enumerate(frag_reads(i+1)): B.put((5.5+q)*sc, op)
        if not isx and k < 15:
            for tile in range(4): B.put(4*tile+3.9, c_read(tile, k+1))
        return B.layout(cap=2, slack=1)
    pre = [wait(vm="C0"), other("s_barrier")] + dma(1) + [c_read(t, 0) for t in range(4)] + [wait(vm="D0")] + frag_reads(0) + sum([dma(i) for i in range(2, NSL)], [])
    steps = sum([step(i) for i in range(NS)], [])
    resolve([pro, pre, steps])
    st(2)
    if opts.get("fine"):
        a("s_waitcnt vmcnt(7)"); st(9); a("s_waitcnt vmcnt(4)"); st(10); a("s_waitcnt vmcnt(0)"); st(11)
    for op in merge_waits(pre): a(op.render())
    st(3)
    for op in merge_waits(steps):
        if opts.get("nomfma") and op.kind == "mfma": continue
        if opts.get("nocr") and op.kind == "ds" and op.tag.startswith("cr"): continue
        if opts.get("nods") and op.kind == "ds": continue
        a(op.render())
    st(4)
    A = lambda T, tile, j: vAcc + (T*4+tile)*4 + j
    a("s_nop 7")
    S_ = [6, 7, 8, 9]; Q_ = [10, 11, 12, 13]; M_ = [112, 114, 116, 118]; tp = 120
    TS = [96, 98, 100, 102]; TD = [104, 106, 108, 110]
    for tile in range(4): a(f"v_pk_add_f32 {vr(TS[tile],2)}, {vr(A(0,tile,0),2)}, {vr(A(0,tile,2),2)}")
    for tile in range(4): a(f"v_pk_mul_f32 {vr(TD[tile],2)}, {vr(A(0,tile,0),2)}, {vr(A(0,tile,0),2)}")
    for T in range(4):
        for j in (0, 2):
            if T >= 1:
                for tile in range(4): a(f"v_pk_add_f32 {vr(TS[tile],2)}, {vr(TS[tile],2)}, {vr(A(T,tile,j),2)}")
            if (T, j) != (0, 0):
                for tile in range(4): a(f"v_pk_fma_f32 {vr(TD[tile],2)}, {vr(A(T,tile,j),2)}, {vr(A(T,tile,j),2)}, {vr(TD[tile],2)}")
    for tile in range(4): a(f"v_add_f32 v{S_[tile]}, v{TS[tile]}, v{TS[tile]+1}")
    for tile in range(4): a(f"v_add_f32 v{Q_[tile]}, v{TD[tile]}, v{TD[tile]+1}")
    for tile in range(4): a(f"v_mul_f32 v{M_[tile]}, 0xbd800000, v{S_[tile]}")
    for tile in range(4): a(f"v_fmac_f32 v{Q_[tile]}, v{M_[tile]}, v{S_[tile]}")
    def merge(x, y, swap, n):
        a("s_nop 1")
        a(f"{swap} v{S_[x]}, v{S_[y]}"); a(f"{swap} v{Q_[x]}, v{Q_[y]}")
        a("s_nop 0")
        a(f"v_sub_f32 v{tp}, v{S_[x]}, v{S_[y]}"); a(f"v_add_f32 v{S_[x]}, v{S_[x]}, v{S_[y]}")
        a(f"v_mul_f32 v{tp+1}, {hex(f32bits(1.0/(2*n)))}, v{tp}"); a(f"v_add_f32 v{Q_[x]}, v{Q_[x]}, v{Q_[y]}")
        a(f"v_fmac_f32 v{Q_[x]}, v{tp}, v{tp+1}")
    merge(0, 2, "v_permlane32_swap_b32", 16); merge(1, 3, "v_permlane32_swap_b32", 16); merge(0, 1, "v_permlane16_swap_b32", 32)
    a(f"v_mov_b32 v7, v{Q_[0]}")
    a(f"v_lshlrev_b32 v8, 3, v1"); a(f"v_add_u32 v9, s{sWm}, v8")
    a(f"ds_write_b64 v9, v[6:7]")
    a(f"v_add_u32 v8, 65536, v8"); a(f"v_add_u32 v14, {65536+4*NSL*4096}, v8") if False else None
    a(f"v_add_u32 v14, {4*NSL*4096}, v8")
    st(5)
    vE = 4; vH = 5
    a(f"v_lshlrev_b32 v{vE}, 4, v1")
    a(f"s_lshr_b32 s{sU0}, s{sR}, 3"); a(f"s_lshl_b32 s{sU0}, s{sU0}, 19")
    a(f"s_and_b32 s{sU0+1}, s{sR}, 7"); a(f"s_lshl_b32 s{sU0+1}, s{sU0+1}, 10"); a(f"s_add_u32 s{sU0}, s{sU0}, s{sU0+1}")
    a(f"s_and_b32 s{sU0+1}, s{sW_}, 3"); a(f"s_lshl_b32 s{sU0+1}, s{sU0+1}, 14"); a(f"s_add_u32 s{sU0}, s{sU0}, s{sU0+1}")
    a(f"s_add_u32 s{sU0}, s{sU0}, {E_OFF}")
    P = [140+4*i for i in range(8)]
    a(f"s_cmp_ge_u32 s{sW_}, 4"); a(f"s_cbranch_scc1 {name}_eb")
    a("s_nop 1")
    k = 0
    for hb in range(2):
        for hp in range(2):
            for par in range(2):
                d = P[k % 8]; k += 1; n = "-" if par else ""
                for q in range(4):
                    T = 2*hp + (q >> 1); j = 2*(q & 1)
                    a(f"v_cvt_pk_bf16_f32 v{d+q}, {n}v{A(T,2*hb+par,j)}, {n}v{A(T,2*hb+par,j+1)}")
                a(f"s_add_u32 s{sU0+1}, s{sU0}, {hb*262144 + (3 if par else 0)*65536 + hp*8192}")
                a(f"buffer_store_dwordx4 {vr(d,4)}, v{vE}, s[{S_WS}:{S_WS+3}], s{sU0+1} offen")
    a(f"s_branch {name}_ej")
    a.label(f"{name}_eb")
    a("s_nop 1")
    k = 0
    for hb in range(2):
        for hp in range(2):
            for sg in range(2):
                d = P[k % 8]; k += 1
                for q in range(4):
                    T = 2*hp + (q >> 1); j = 2*(q & 1)
                    neg = " neg_lo:[0,1] neg_hi:[0,1]" if sg else ""
                    a(f"v_pk_add_f32 v[124:125], {vr(A(T,2*hb,j),2)}, {vr(A(T,2*hb+1,j),2)}{neg}")
                    a(f"v_cvt_pk_bf16_f32 v{d+q}, v124, v125")
                a(f"s_add_u32 s{sU0+1}, s{sU0}, {hb*262144 + (1+sg)*65536 + hp*8192}")
                a(f"buffer_store_dwordx4 {vr(d,4)}, v{vE}, s[{S_WS}:{S_WS+3}], s{sU0+1} offen")
    a.label(f"{name}_ej")
    st(6)
    a("s_waitcnt lgkmcnt(0)"); a("s_barrier")
    for i in range(8): a(f"ds_read_b64 {vr(80+2*i,2)}, v{8 if i < 4 else 14} offset:{(i&3)*NSL*4096}")
    a(f"v_and_b32 v6, 15, v1"); a(f"v_lshrrev_b32 v7, 4, v1")
    a(f"v_lshrrev_b32 v9, 1, v6"); a(f"v_and_b32 v9, 2, v9"); a(f"v_xor_b32 v9, v9, v7")
    a(f"v_lshlrev_b32 v{vH}, 6, v6"); a(f"v_lshl_add_u32 v{vH}, v9, 4, v{vH}")
    a(f"s_lshl_b32 s{sU0}, s{sR}, 12"); a(f"s_lshl_b32 s{sU0+1}, s{sW_}, 20"); a(f"s_add_u32 s{sU0}, s{sU0}, s{sU0+1}"); a(f"s_add_u32 s{sU0}, s{sU0}, {H_OFF}")
    a("s_waitcnt lgkmcnt(0)")
    for i in range(4): a(f"v_pk_add_f32 v[{96+2*i}:{97+2*i}], v[{80+4*i}:{81+4*i}], v[{82+4*i}:{83+4*i}]")
    a("v_pk_add_f32 v[96:97], v[96:97], v[98:99]"); a("v_pk_add_f32 v[100:101], v[100:101], v[102:103]")
    a("v_pk_add_f32 v[6:7], v[96:97], v[100:101]")
    a("v_mul_f32 v8, 0x3e000000, v6")
    for i in range(8): a(f"v_sub_f32 v{96+i}, v{80+2*i}, v8")
    a("v_pk_mul_f32 v[10:11], v[96:97], v[96:97]"); a("v_pk_mul_f32 v[12:13], v[98:99], v[98:99]")
    a("v_pk_fma_f32 v[10:11], v[100:101], v[100:101], v[10:11]"); a("v_pk_fma_f32 v[12:13], v[102:103], v[102:103], v[12:13]")
    a("v_pk_add_f32 v[10:11], v[10:11], v[12:13]"); a("v_add_f32 v9, v10, v11")
    a("v_fmac_f32 v7, 0x3c800000, v9")
    a(f"v_mov_b32 v10, {hex(f32bits(1e-5))}")
    a("v_fmac_f32 v10, 0x3b000000, v7")
    a("v_rsq_f32 v10, v10")
    a("v_mul_f32 v6, 0x3b000000, v6")
    a("v_mov_b32 v8, v6"); a("v_mov_b32 v12, v10"); a("s_nop 0")
    a("v_permlane32_swap_b32 v6, v8"); a("v_permlane32_swap_b32 v10, v12")
    a("v_mov_b32 v7, v6"); a("v_mov_b32 v9, v8"); a("v_mov_b32 v11, v10"); a("v_mov_b32 v13, v12")
    a("v_permlane16_swap_b32 v6, v7"); a("v_permlane16_swap_b32 v8, v9"); a("s_nop 0") if False else None
    a("v_permlane16_swap_b32 v10, v11"); a("v_permlane16_swap_b32 v12, v13")
    K = [80, 82, 84, 86]
    for tile in range(4): a(f"v_mul_f32 v{K[tile]}, {hex(f32bits(-LOG2E))}, v{10+tile}")
    for tile in range(4): a(f"v_mul_f32 v{K[tile]+1}, -v{6+tile}, v{K[tile]}")
    st(7)
    D = [96, 100, 104, 108]; kk = 0
    r8 = opts.get("hround", 1)
    if r8: a("s_mov_b32 s60, 0x00040004")
    for tile in range(4):
        k = K[tile]; hb, par = tile >> 1, tile & 1
        for hp in range(2):
            d = D[kk % 4]; kk += 1
            E2 = [112, 114, 116, 118] if False else [6, 8, 10, 12]
            for q in range(4):
                T = 2*hp + (q >> 1); j = 2*(q & 1); r = vr(A(T, tile, j), 2); e = E2[q]
                a(f"v_pk_fma_f32 {r}, {r}, {vr(k,2)}, {vr(k,2)} op_sel:[0,0,1] op_sel_hi:[1,0,1]")
                a(f"v_exp_f32 v{e}, v{A(T,tile,j)}"); a(f"v_exp_f32 v{e+1}, v{A(T,tile,j)+1}")
            for q in range(4):
                e = E2[q]
                a(f"v_pk_add_f32 v[{e}:{e+1}], v[{e}:{e+1}], 1.0 op_sel_hi:[1,0]")
                a(f"v_rcp_f32 v{e}, v{e}"); a(f"v_rcp_f32 v{e+1}, v{e+1}")
            for q in range(4):
                T = 2*hp + (q >> 1); j = 2*(q & 1); r = vr(A(T, tile, j), 2); e = E2[q]
                a(f"v_pk_mul_f32 v[{e}:{e+1}], v[{e}:{e+1}], {r}")
                a(f"v_cvt_pk_f16_f32 v{d+q}, v{e}, v{e+1}")
                if r8: a(f"v_pk_add_u16 v{d+q}, v{d+q}, s60"); a(f"v_and_b32 v{d+q}, 0xfff8fff8, v{d+q}")
            a(f"s_add_u32 s{sU0+1}, s{sU0}, {hp*524288 + par*2048 + hb*1024}")
            a(f"buffer_store_dwordx4 {vr(d,4)}, v{vH}, s[{S_WS}:{S_WS+3}], s{sU0+1} offen")
    st(8)

def xf_touch(a, opts):
    if opts.get("xft", 0) != 1: return
    a(f"s_load_dwordx2 s[{S_F}:{S_F+1}], s[0:1], 0"); a(f"s_mov_b32 s{S_F+2}, {8*MB}"); a(f"s_mov_b32 s{S_F+3}, 0x20000")
    a(f"s_sub_u32 s72, s{sJ}, 16"); a(f"s_lshl_b32 s74, s{sXc}, 4"); a("s_add_u32 s72, s72, s74"); a("s_lshl_b32 s72, s72, 16")
    a(f"s_lshl_b32 s74, s{sW_}, 13"); a("s_add_u32 s72, s72, s74"); a("v_lshlrev_b32 v210, 7, v1")
    a("s_waitcnt lgkmcnt(0)")
    a(f"buffer_load_dword v213, v210, s[{S_F}:{S_F+3}], s72 offen")

def helper_touch(a, name, role, opts):
    mode = opts.get("help", 2)
    if not mode: return
    a(f"s_load_dwordx4 s[64:67], s[0:1], 16")
    a(f"s_sub_u32 s72, s{sJ}, 16")
    a("v_lshlrev_b32 v210, 7, v1")
    a(f"s_lshl_b32 s73, s72, 13")
    a(f"s_mul_i32 s75, s72, 24576"); a(f"s_lshl_b32 s74, s{sW_}, 13"); a("s_add_u32 s75, s75, s74"); a(f"s_add_u32 s75, s75, {131072-8192}")
    a(f"s_lshl_b32 s74, s{sXc}, 4"); a("s_add_u32 s72, s72, s74"); a("s_lshl_b32 s72, s72, 16")
    a(f"s_and_b32 s74, s{sW_}, 3"); a("s_lshl_b32 s74, s74, 14"); a("s_add_u32 s72, s72, s74")
    a("v_and_b32 v211, 3, v1"); a("v_lshrrev_b32 v212, 2, v1"); a("v_lshlrev_b32 v211, 7, v211"); a("v_lshl_add_u32 v211, v212, 10, v211"); a("v_add_u32 v211, 512, v211")
    a("s_waitcnt lgkmcnt(0)")
    a("s_mov_b32 s68, s66"); a("s_mov_b32 s69, s67"); a(f"s_mov_b32 s70, {MB//2}"); a("s_mov_b32 s71, 0x20000")
    a(f"s_mov_b32 s66, {8*MB}"); a("s_mov_b32 s67, 0x20000")
    a(f"s_cmp_lg_u32 s{sW_}, 0"); a(f"s_cbranch_scc1 {name}_h1")
    a("buffer_load_dword v213, v210, s[68:71], s73 offen")
    if mode >= 2: a("s_waitcnt vmcnt(0)")
    a.label(f"{name}_h1")
    if mode >= 2: a("s_barrier")
    a(f"s_cmp_eq_u32 s{sW_}, 0"); a(f"s_cbranch_scc1 {name}_h3")
    a(f"s_cmp_ge_u32 s{sW_}, 4"); a(f"s_cbranch_scc1 {name}_h2")
    a("buffer_load_dword v213, v210, s[68:71], s75 offen")
    a(f"s_branch {name}_h3")
    a.label(f"{name}_h2")
    a("buffer_load_dword v213, v211, s[64:67], s72 offen")
    a.label(f"{name}_h3")
    a(f"s_lshl_b32 s72, s{sXc}, 20")
    a("s_barrier")
    if role == "c":
        a(f"s_sub_u32 s74, s{sJ}, 16"); a("s_lshl_b32 s74, s74, 15"); a("s_add_u32 s72, s72, s74"); a(f"s_lshl_b32 s74, s{sW_}, 12"); a("s_add_u32 s72, s72, s74")
        a("s_mov_b32 exec_hi, 0"); a(f"buffer_load_dword v214, v210, s[{S_X}:{S_X+3}], s72 offen"); a("s_mov_b64 exec, -1")
    else:
        a(f"s_sub_u32 s74, s{sJ}, 28"); a("s_mul_i32 s74, s74, 163840"); a("s_add_u32 s72, s72, s74"); a(f"s_mul_i32 s74, s{sW_}, 20480"); a("s_add_u32 s72, s72, s74")
        a("s_add_u32 s72, s72, 393216")
        a(f"buffer_load_dword v214, v210, s[{S_X}:{S_X+3}], s72 offen"); a("s_add_u32 s72, s72, 8192")
        a(f"buffer_load_dword v215, v210, s[{S_X}:{S_X+3}], s72 offen"); a("s_add_u32 s72, s72, 8192")
        a("s_mov_b32 exec_hi, 0"); a(f"buffer_load_dword v215, v210, s[{S_X}:{S_X+3}], s72 offen"); a("s_mov_b64 exec, -1")
    if mode >= 3: a("s_waitcnt vmcnt(0)")
    if mode >= 2: a("s_barrier")

def gen_c(a, name, st, opts):
    sDi, sNq, sCh, sAo, sBo, sZc, sM = sT, sT+1, sT+2, sT+3, sT+4, sT+5, sT+6
    sU0 = sT+8
    vA = 2
    vB = 5
    vAr = 8
    vBr = 10
    vZr = 12
    vAcc = 16
    vZf = 64
    Af = [72, 96]; Bf = [120 - 0, 0]
    SLOT = 40960
    acc = lambda dj, kt, nt: vr(vAcc + ((dj*2+kt)*2+nt)*4, 4)
    a(f"s_load_dwordx2 s[{S_A}:{S_A+1}], s[0:1], 40")
    a(f"s_load_dwordx2 s[{S_B}:{S_B+1}], s[0:1], 32")
    a(f"s_sub_u32 s{sNq}, s{sJ}, 16"); a(f"s_lshr_b32 s{sDi}, s{sNq}, 2"); a(f"s_and_b32 s{sNq}, s{sNq}, 3")
    a(f"s_mov_b32 s{S_A+2}, {9*MB//2}"); a(f"s_mov_b32 s{S_A+3}, 0x20000")
    a(f"s_mov_b32 s{S_B+2}, {MB//2}"); a(f"s_mov_b32 s{S_B+3}, 0x20000")
    a(f"s_lshl_b32 s{sCh}, s{sNq}, 1"); a(f"s_mul_i32 s{sU0}, s{sDi}, 3"); a(f"s_add_u32 s{sCh}, s{sCh}, s{sU0}"); a(f"s_and_b32 s{sCh}, s{sCh}, 7")
    t0, t1, t2, t3 = 116, 117, 118, 119
    a(f"v_lshrrev_b32 v{t0}, 3, v1"); a(f"v_and_b32 v{t1}, 7, v1"); a(f"v_lshrrev_b32 v{t2}, 4, v1")
    a(f"s_and_b32 s{sU0}, s{sW_}, 1"); a(f"s_lshl_b32 s{sU0}, s{sU0}, 2")
    a(f"v_xor_b32 v{t3}, v{t1}, v{t2}"); a(f"v_xor_b32 v{t3}, s{sU0}, v{t3}")
    a(f"v_lshlrev_b32 v{vA}, 10, v{t0}"); a(f"v_lshl_add_u32 v{vA}, v{t3}, 4, v{vA}")
    a(f"s_mul_i32 s{sU0}, s{sDi}, 1572864"); a(f"s_lshl_b32 s{sU0+1}, s{sXc}, 16"); a(f"s_add_u32 s{sU0}, s{sU0}, s{sU0+1}")
    a(f"s_lshl_b32 s{sU0+1}, s{sW_}, 13"); a(f"s_add_u32 s{sU0}, s{sU0}, s{sU0+1}")
    a(f"v_add_u32 v{vA}, s{sU0}, v{vA}")
    a(f"v_add_u32 v{vA+1}, 524288, v{vA}"); a(f"v_add_u32 v{vA+2}, 1048576, v{vA}")
    a(f"v_and_b32 v{t3}, 15, v1"); a(f"s_and_b32 s{sU0}, s{sW_}, 1"); a(f"s_lshl_b32 s{sU0}, s{sU0}, 3")
    a(f"v_lshlrev_b32 v{t0}, 1, v{t2}"); a(f"v_xor_b32 v{t0}, s{sU0}, v{t0}"); a(f"v_xor_b32 v{t0}, v{t0}, v{t3}")
    a(f"v_lshlrev_b32 v{vB}, 10, v{t2}"); a(f"v_lshl_add_u32 v{vB}, v{t0}, 4, v{vB}")
    a(f"s_lshl_b32 s{sU0}, s{sW_}, 13"); a(f"s_lshl_b32 s{sU0+1}, s{sNq}, 8"); a(f"s_add_u32 s{sU0}, s{sU0}, s{sU0+1}")
    a(f"v_add_u32 v{vB}, s{sU0}, v{vB}"); a(f"v_add_u32 v{vB+1}, 3072, v{vB}")
    a(f"s_lshl_b32 s{sM}, s{sW_}, 10")
    def dma(slot, tag):
        ops = [other(f"s_lshl_b32 s{sAo}, s{sCh}, 7"), other(f"s_lshl_b32 s{sBo}, s{sCh}, 16")]
        for dj in range(3):
            ops += [other(f"s_add_u32 m0, s{sM}, {slot*SLOT+dj*8192}"), other("s_nop 0"),
                    vmem(f"buffer_load_dwordx4 v{vA+dj}, s[{S_A}:{S_A+3}], s{sAo} offen lds", tag)]
        ops += [other(f"s_lshl_b32 s{sU0}, s{sM}, 1"), other(f"s_add_u32 m0, s{sU0}, {slot*SLOT+24576}"), other("s_nop 0")]
        ops += [vmem(f"buffer_load_dwordx4 v{vB+i}, s[{S_B}:{S_B+3}], s{sBo} offen offset:{i*1024} lds", tag) for i in range(2)]
        ops += [other(f"s_add_u32 s{sCh}, s{sCh}, 1"), other(f"s_and_b32 s{sCh}, s{sCh}, 7")]
        return ops
    a(f"s_sub_u32 s{sZc}, s{sXc}, s{sCh}"); a(f"s_and_b32 s{sZc}, s{sZc}, 7")
    a("s_waitcnt lgkmcnt(0)")
    st(1)
    pro = dma(0, "D0") + dma(1, "D1") + dma(2, "D2")
    for op in pro: a(op.render())
    a(f"v_lshrrev_b32 v{t1}, 1, v{t3}"); a(f"v_xor_b32 v{t1}, v{t1}, v{t2}")
    a(f"v_lshlrev_b32 v{vAr}, 7, v{t3}"); a(f"v_lshl_add_u32 v{vAr}, v{t1}, 4, v{vAr}")
    a(f"s_lshr_b32 s{sU0}, s{sW_}, 2"); a(f"s_lshl_b32 s{sU0+1}, s{sU0}, 12"); a(f"v_add_u32 v{vAr}, s{sU0+1}, v{vAr}")
    a(f"v_xor_b32 v{vAr+1}, 64, v{vAr}")
    a(f"v_lshrrev_b32 v{t0}, 2, v{t3}")
    a(f"v_and_b32 v{t1}, 3, v{t3}"); a(f"v_lshlrev_b32 v{t1}, 3, v{t1}"); a(f"v_add_u32 v{t1}, 24576, v{t1}")
    a(f"s_and_b32 s{sU0+1}, s{sW_}, 3"); a(f"s_lshl_b32 s{sU0+1}, s{sU0+1}, 1")
    a(f"v_lshl_add_u32 v{vBr}, v{t2}, 3, v{t0}"); a(f"v_lshl_add_u32 v{vBr}, v{vBr}, 8, v{t1}")
    a(f"v_and_b32 v{vBr+1}, 1, v{t2}"); a(f"v_lshl_add_u32 v{vBr+1}, v{vBr+1}, 2, v{t0}"); a(f"v_xor_b32 v{vBr+1}, s{sU0+1}, v{vBr+1}")
    a(f"v_lshl_add_u32 v{vBr}, v{vBr+1}, 5, v{vBr}"); a(f"v_xor_b32 v{vBr+1}, 32, v{vBr}")
    a(f"v_lshl_add_u32 v{vZr}, v{t2}, 2, v{t0}"); a(f"v_lshl_add_u32 v{vZr}, v{vZr}, 8, v{t1}")
    a(f"s_lshl_b32 s{sU0}, s{sU0}, 13"); a(f"v_add_u32 v{vZr}, s{sU0}, v{vZr}")
    a(f"v_lshrrev_b32 v{vZr+1}, 1, v{t2}"); a(f"v_lshl_add_u32 v{vZr+1}, v{vZr+1}, 2, v{t0}"); a(f"v_xor_b32 v{vZr+1}, s{sU0+1}, v{vZr+1}")
    a(f"v_lshl_add_u32 v{vZr}, v{vZr+1}, 5, v{vZr}"); a(f"v_xor_b32 v{vZr+1}, 32, v{vZr}")
    st(2)
    AF = [72, 96]
    BF = [120, 128]
    def rd(h, tag):
        return [ds(f"ds_read_b64_tr_b16 {vr(BF[h]+4*nt+2*t,2)}, v{vBr+nt} offset:{h*8192+t*1024}", tag) for nt in range(2) for t in range(2)] + \
               [ds(f"ds_read_b128 {vr(AF[h]+4*(dj*2+kt),4)}, v{vAr+h} offset:{dj*8192+kt*2048}", tag) for dj in range(3) for kt in range(2)]
    def mm(h, first):
        return [mfma(f"v_mfma_f32_16x16x32_bf16 {acc(dj,kt,nt)}, {vr(AF[h]+4*(dj*2+kt),4)}, {vr(BF[h]+4*nt,4)}, {'0' if first else acc(dj,kt,nt)}") for dj in range(3) for kt in range(2) for nt in range(2)]
    def zread(c):
        lab = f"{name}_z{c}"
        return [other(f"s_cmp_lg_u32 s{sZc}, {c}"), other(f"s_cbranch_scc1 {lab}")] + \
               [other(f"ds_read_b64_tr_b16 {vr(vZf+4*nt+2*t,2)}, v{vZr+nt} offset:{t*4096}") for nt in range(2) for t in range(2)] + \
               [other("s_waitcnt lgkmcnt(0)"), other(f"{lab}:")]
    seq = [wait(vm="D0"), other("s_barrier")] + rd(0, "r0")
    for c in range(8):
        B = Block(mm(0, c == 0))
        B.fix(-1, wait(lg="r0"))
        for q, op in enumerate(rd(1, "r1")): B.put(q, op)
        seq += B.layout(cap=1, slack=1) + zread(c)
        B = Block(mm(1, False))
        head = [wait(lg="r1")]
        if c < 7:
            head += [wait(vm=f"D{c+1}"), other("s_barrier")]
            step = SLOT if c % 3 < 2 else -2*SLOT
            head += [other(f"v_add_u32 v{r}, {step & 0xffffffff}, v{r}") for r in (vBr, vBr+1, vAr)]
            for q, op in enumerate(rd(0, "r0")): B.put(q*0.5, op)
            for q, r in enumerate((vAr+1, vZr, vZr+1)): B.put(9+q, other(f"v_add_u32 v{r}, {step & 0xffffffff}, v{r}"))
            if c + 3 < 8:
                for q, op in enumerate(dma(c % 3, f"D{c+3}")): B.put(5+q*0.3, op)
        B.fix(-1, head)
        seq += B.layout(cap=2, slack=1)
    resolve([pro, seq])
    nb_ = 0
    for op in merge_waits(seq):
        if op.text == "s_barrier":
            nb_ += 1
            if nb_ == 8: a("s_barrier"); xf_touch(a, opts); continue
        a(op.render())
    st(4)
    A = lambda dj, kt, nt, j: vAcc + ((dj*2+kt)*2+nt)*4 + j
    U1, U2 = 72, 88
    a("s_nop 7")
    a("v_mov_b32 v2, 0"); a("v_mov_b32 v3, 0")
    for kt in range(2):
        for nt in range(2):
            for j in (0, 2):
                o = (kt*2+nt)*4 + j
                g0, g1, g2 = [vr(A(dj, kt, nt, j), 2) for dj in range(3)]
                a(f"v_pk_add_f32 v[4:5], {g0}, {g2}")
                for r in (A(0, kt, nt, j), A(2, kt, nt, j)): a(f"v_max3_f32 v2, abs(v{r}), abs(v{r+1}), v2")
                a(f"v_pk_add_f32 {vr(U1+o,2)}, v[4:5], {g1}")
                a(f"v_pk_add_f32 {vr(U2+o,2)}, v[4:5], {g1} neg_lo:[0,1] neg_hi:[0,1]")
                for r in (U1+o, U2+o): a(f"v_max3_f32 v3, abs(v{r}), abs(v{r+1}), v3")
    a("v_mul_f32 v3, 0.5, v3"); a("v_max_f32 v2, v2, v3")
    for sh in (8, 4, 2, 1):
        a("s_nop 1"); a(f"v_max_f32_dpp v2, v2, v2 row_ror:{sh} row_mask:0xf bank_mask:0xf")
    a("v_mov_b32 v3, v2"); a("s_nop 1"); a("v_permlane32_swap_b32 v2, v3"); a("s_nop 0"); a("v_max_f32 v2, v2, v3")
    a("v_mov_b32 v3, v2"); a("s_nop 1"); a("v_permlane16_swap_b32 v2, v3"); a("s_nop 0"); a("v_max_f32 v2, v2, v3")
    MX = 3*SLOT
    a(f"s_lshl_b32 s{sU0}, s{sW_}, 2"); a(f"s_add_u32 s{sU0}, s{sU0}, {MX}"); a(f"v_mov_b32 v3, s{sU0}")
    a("ds_write_b32 v3, v2"); a(f"v_mov_b32 v3, {MX}")
    a("s_waitcnt lgkmcnt(0)"); a("s_barrier")
    a("ds_read_b128 v[4:7], v3"); a("ds_read_b128 v[8:11], v3 offset:16")
    a(f"s_lshl_b32 s{sU0}, s{sNq}, 1"); a(f"s_bfe_u32 s{sU0+1}, s{sW_}, 0x10001"); a(f"s_add_u32 s{sU0}, s{sU0}, s{sU0+1}")
    a(f"s_lshl_b32 s{sU0+1}, s{sXc}, 1"); a(f"s_lshr_b32 s{sU0+2}, s{sW_}, 2"); a(f"s_add_u32 s{sU0+1}, s{sU0+1}, s{sU0+2}")
    a(f"s_and_b32 s{sU0+2}, s{sW_}, 1"); a(f"s_lshl_b32 s{sU0+2}, s{sU0+2}, 11")
    a(f"s_mul_i32 s{sU0+3}, s{sU0}, 786432"); a(f"s_mul_i32 s{sU0+4}, s{sU0+1}, 12288"); a(f"s_add_u32 s{sU0+3}, s{sU0+3}, s{sU0+4}")
    a(f"s_lshl_b32 s{sU0+4}, s{sDi}, 12"); a(f"s_add_u32 s{sU0+3}, s{sU0+3}, s{sU0+4}"); a(f"s_add_u32 s{sU0+3}, s{sU0+3}, s{sU0+2}")
    a(f"s_add_u32 s{sU0+3}, s{sU0+3}, {U_OFF}")
    a(f"s_lshl_b32 s{sU0+4}, s{sU0}, 16"); a(f"s_lshl_b32 s{sU0+5}, s{sU0+1}, 12"); a(f"s_add_u32 s{sU0+4}, s{sU0+4}, s{sU0+5}")
    a(f"s_add_u32 s{sU0+4}, s{sU0+4}, s{sU0+2}"); a(f"s_add_u32 s{sU0+4}, s{sU0+4}, {Z_OFF}")
    a("v_lshlrev_b32 v12, 4, v1")
    a("s_waitcnt lgkmcnt(0)")
    a("v_max3_f32 v4, v4, v5, v6"); a("v_max3_f32 v4, v4, v7, v8"); a("v_max3_f32 v4, v4, v9, v10"); a("v_max_f32 v4, v4, v11")
    a("s_nop 0"); a(f"v_readfirstlane_b32 s{sU0+6}, v4"); a("s_nop 3")
    a(f"s_lshr_b32 s{sU0+6}, s{sU0+6}, 23")
    a(f"s_sub_u32 s{sU0+7}, 121, s{sU0+6}"); a(f"s_and_b32 s{sU0+7}, s{sU0+7}, 7")
    a(f"s_sub_u32 s{sU0+6}, 267, s{sU0+6}"); a(f"s_sub_u32 s{sU0+6}, s{sU0+6}, s{sU0+7}")
    a(f"s_max_u32 s{sU0+6}, s{sU0+6}, 18"); a(f"s_min_u32 s{sU0+6}, s{sU0+6}, 186")
    a(f"s_lshl_b32 s60, s{sU0+6}, 23"); a("s_mov_b32 s62, 0x00040004")
    a(f"v_mov_b32 v6, {hex(f32bits(-1.0/LOG2E))}"); a("v_mul_f32 v6, s60, v6"); a("v_mul_f32 v8, 0.5, v6")
    D = [104, 108, 112, 116]; kk = 0
    for p in range(4):
        for nt in range(2):
            d = D[kk % 4]; kk += 1
            for q in range(4):
                kt, j = q >> 1, 2*(q & 1)
                r = [A(0, kt, nt, j), U1+(kt*2+nt)*4+j, U2+(kt*2+nt)*4+j, A(2, kt, nt, j)][p]
                a(f"v_pk_mul_f32 v[4:5], {vr(r,2)}, v[{8 if p in (1, 2) else 6}:{9 if p in (1, 2) else 7}] op_sel_hi:[1,0]")
                a(f"v_cvt_pk_f16_f32 v{d+q}, v4, v5")
                if opts.get("wround", 1): a(f"v_pk_add_u16 v{d+q}, v{d+q}, s62"); a(f"v_and_b32 v{d+q}, 0xfff8fff8, v{d+q}")
            a(f"s_add_u32 s{sU0+5}, s{sU0+3}, {p*196608}")
            a(f"buffer_store_dwordx4 {vr(d,4)}, v12, s[{S_WS}:{S_WS+3}], s{sU0+5} offen offset:{nt*1024}")
    a(f"s_lshl_b32 s{sU0+5}, s{sNq}, 5"); a(f"s_lshl_b32 s{sU0+6}, s{sDi}, 3"); a(f"s_add_u32 s{sU0+5}, s{sU0+5}, s{sU0+6}")
    a(f"s_add_u32 s{sU0+5}, s{sU0+5}, s{sXc}"); a(f"s_lshl_b32 s{sU0+5}, s{sU0+5}, 2")
    a("v_mov_b32 v4, s60"); a("v_mov_b32 v5, 0")
    a(f"s_cmp_lg_u32 s{sW_}, 0"); a(f"s_cbranch_scc1 {name}_ns")
    a("s_mov_b64 exec, 1"); a(f"buffer_store_dword v4, v5, s[{S_WS}:{S_WS+3}], s{sU0+5} offen offset:{SCL_OFF}"); a("s_mov_b64 exec, -1")
    a.label(f"{name}_ns")
    a(f"s_cmp_lg_u32 s{sDi}, 1"); a(f"s_cbranch_scc1 {name}_nz")
    a(f"s_cmp_ge_u32 s{sXc}, 4"); a(f"s_cselect_b32 s61, 0x800000, 0"); a("s_sub_u32 s60, s60, s61")
    for i in range(8):
        a(f"v_lshlrev_b32 v4, 16, v{vZf+i}"); a(f"v_and_b32 v5, 0xffff0000, v{vZf+i}")
        a("v_mul_f32 v4, s60, v4"); a("v_mul_f32 v5, s60, v5")
        a(f"v_cvt_pk_bf16_f32 v{vZf+i}, v4, v5")
    for nt in range(2): a(f"buffer_store_dwordx4 {vr(vZf+4*nt,4)}, v12, s[{S_WS}:{S_WS+3}], s{sU0+4} offen offset:{nt*1024}")
    a.label(f"{name}_nz")
    st(8)

if __name__ == "__main__":
    import sys
    import k2
    opts = {}; out = "full.s"
    for x in sys.argv[1:]:
        if x.endswith(".s"): out = x
        elif "=" in x:
            k, v = x.split("="); opts[k] = float(v) if "." in v else int(v)
    stamp = 1 if "stamp" in sys.argv else 0
    a = Asm()
    a("; @launch kernel=cn_k1_kernel grid=(256,1,1) block=(512,1,1) lds=163840")
    a("; @launch kernel=cn_k2_kernel grid=(256,1,1) block=(256,1,1) lds=131072")
    a('.amdgcn_target "amdgcn-amd-amdhsa--gfx950"')
    gen_k1(a, "cn_k1_kernel", stamp=stamp, opts=opts)
    o2 = dict(xf_late=1, lead=48, unpack_in_loop=180); o2.update(opts)
    opts.setdefault("st1", 1); opts.setdefault("st2", 1)
    k2.gen_k2(a, "cn_k2_kernel", stamp=stamp, opts=o2)
    txt = a.text()
    pol1 = {0: "", 1: " sc1", 2: " sc0 sc1", 3: " nt", 4: " sc1 nt"}
    lines = []; ink2 = False
    for l in txt.split("\n"):
        if l.startswith("cn_k2_kernel:"): ink2 = True
        if l.startswith("buffer_store_dwordx4"): l += pol1[opts.get("st2" if ink2 else "st1", 0)]
        lines.append(l)
    open(out, "w").write("\n".join(lines))
```

```python
from asmlib import *
from sched import *
from layouts import *

TILE = 21760
ROWB = 2176
S_H, S_WS, S_XF, S_OUT = 4, 8, 12, 16
sU, sE, sZ, sHA, sHB, sW, sCnt, sSgn = 20, 21, 22, 23, 24, 25, 26, 27
sInv = 28
sMask = 30
sO = 32
sP, sNB, sHBk, sR0 = 36, 37, 38, 39
sScl = 40
sT = 64
sFix = 80
sNinv = 82
vL = 1
vD = 8
vX, vY = 14, 15
vVA, vVB = 16, 56
vRaw = 96
vZ = 120
vXF = 136
vXU = 168
vOut = 232
vEW = 233
vER = 250
vT = 238
vSc = 254
aU, aE = 128, 224

def acc(o, f): return ar((o*4+f)*4, 4)

def gen_k2(a, name, stamp=False, opts=None):
    opts = opts or {}
    kernel_begin(a, name)
    a(f"s_cmp_ge_u32 s2, 256")
    a(f"s_cbranch_scc1 {name}_end")
    def st(k, dyn=None):
        if not stamp: return
        a("s_memrealtime s[84:85]"); a("s_memtime s[86:87]"); a("s_waitcnt lgkmcnt(0)")
        if dyn is None:
            a(f"v_writelane_b32 v7, s84, {k}"); a(f"v_writelane_b32 v237, s86, {k}")
        else:
            a(f"s_sub_u32 s88, {k}, s{dyn}"); a("s_lshl_b64 exec, 1, s88"); a("v_mov_b32 v7, s84"); a("v_mov_b32 v237, s86"); a("s_mov_b64 exec, -1")
    st(0)
    a(f"s_load_dwordx2 s[{S_XF}:{S_XF+1}], s[0:1], 0")
    a(f"s_load_dwordx2 s[{S_OUT}:{S_OUT+1}], s[0:1], 48")
    a(f"s_load_dwordx2 s[{S_WS}:{S_WS+1}], s[0:1], 64")
    a(f"v_lshrrev_b32 v{vT}, 6, v0")
    a(f"s_and_b32 s{sT}, s2, 7")
    a(f"v_readfirstlane_b32 s{sP}, v{vT}")
    a(f"s_lshr_b32 s{sT+1}, s2, 3")
    a(f"s_and_b32 s{sNB}, s{sT}, 1")
    a(f"s_lshl_b32 s{sNB}, s{sNB}, 2")
    a(f"s_and_b32 s{sT+2}, s{sT+1}, 3")
    a(f"s_or_b32 s{sNB}, s{sNB}, s{sT+2}")
    a(f"s_bfe_u32 s{sHBk}, s{sT+1}, 0x10002")
    a(f"s_lshr_b32 s{sT+2}, s{sT+1}, 3")
    a(f"s_lshr_b32 s{sT+3}, s{sT}, 1")
    a(f"s_lshl_b32 s{sT+3}, s{sT+3}, 2")
    a(f"s_add_u32 s{sT+3}, s{sT+3}, s{sT+2}")
    a(f"s_lshl_b32 s{sR0}, s{sT+3}, 3")
    a(f"v_and_b32 v{vT+1}, 63, v0")
    a(f"v_lshlrev_b32 v{vL}, 4, v{vT+1}")
    a(f"s_mul_i32 s{sT+4}, s{sP}, 340")
    a(f"s_lshl_b32 s{sT+8}, s{sR0}, 12"); a(f"s_lshl_b32 s{sT+5}, s{sHBk}, 10"); a(f"s_add_u32 s{sT+8}, s{sT+8}, s{sT+5}")
    a(f"s_lshl_b32 s{sT+5}, s{sHBk}, 2"); a(f"s_sub_u32 s{sT+5}, 68, s{sT+5}")
    a(f"s_and_b32 s{sT+6}, s{sR0}, 63")
    a(f"s_cmp_eq_u32 s{sT+6}, 0"); a(f"s_cselect_b32 s{sT+9}, 136, 0")
    a(f"s_cmp_eq_u32 s{sT+6}, 56"); a(f"s_movk_i32 s{sT+6}, 1400"); a(f"s_cselect_b32 s{sT+6}, 1224, s{sT+6}")
    a(f"s_sub_u32 s{sT+6}, s{sT+6}, s{sT+9}")
    a(f"s_movk_i32 s{sT+7}, 964"); a(f"s_movk_i32 s{sT+12}, 896"); a(f"s_movk_i32 s{sT+13}, -136")
    a(f"v_add_u32 v{vT+2}, s{sT+4}, v{vT+1}")
    a(f"v_mov_b32 v{vT+8}, 0x40000000")
    for q in range(1410): assert (q*964) >> 16 == q // 68
    def dma_off(j):
        q, z, r, o, t1, t2 = vT+2, vT+3, vT+4, vT+5, vT+6, vT+7
        if j: a(f"v_add_u32 v{q}, 64, v{q}")
        a(f"v_mul_u32_u24 v{z}, s{sT+7}, v{q}")
        a(f"v_lshl_add_u32 v{o}, v{q}, 4, s{sT+8}")
        a(f"v_lshrrev_b32 v{r}, 17, v{z}"); a(f"v_lshrrev_b32 v{z}, 16, v{z}")
        a(f"v_subrev_u32 v{t2}, s{sT+9}, v{q}")
        a(f"v_mad_i32_i24 v{t1}, v{r}, s{sT+13}, v{q}")
        a(f"v_cmp_gt_u32 s[{sT+10}:{sT+11}], s{sT+6}, v{t2}")
        a(f"v_subrev_u32 v{t1}, s{sT+5}, v{t1}")
        a(f"v_mad_u32_u24 v{o}, v{z}, s{sT+12}, v{o}")
        a(f"v_cmp_le_u32 vcc, 4, v{t1}")
        a(f"v_lshl_add_u32 v{o}, v{r}, 7, v{o}")
        if j in (1, 2, 3): a(f"s_sub_u32 s{sT+8}, s{sT+8}, 1024") if False else None
        a(f"s_and_b64 vcc, vcc, s[{sT+10}:{sT+11}]")
        if j & 3: a(f"v_subrev_u32 v{o}, {(j&3)*1024}, v{o}")
        a(f"v_cndmask_b32 v{vD+j}, v{vT+8}, v{o}, vcc")
    for j in range(6): dma_off(j)
    for j in range(1, 6): a(f"v_add_u32 v{vL+j}, {4096*j}, v{vL}")
    a(f"s_lshl_b32 s{sT+4}, s{sNB}, 2"); a(f"s_add_u32 s{sT+4}, s{sT+4}, s{sP}")
    a(f"s_mul_i32 s{sU}, s{sT+4}, 196608"); a(f"s_add_u32 s{sU}, s{sU}, {U_OFF}")
    a(f"s_lshl_b32 s{sT+4}, s{sT+3}, 1"); a(f"s_add_u32 s{sT+4}, s{sT+4}, s{sHBk}")
    a(f"s_lshl_b32 s{sT+4}, s{sT+4}, 2"); a(f"s_add_u32 s{sT+4}, s{sT+4}, s{sP}")
    a(f"s_lshl_b32 s{sE}, s{sT+4}, 16"); a(f"s_add_u32 s{sE}, s{sE}, {E_OFF}")
    a(f"s_add_u32 s{sT+4}, s{sP}, 1"); a(f"s_bfe_u32 s{sT+4}, s{sT+4}, 0x10001")
    a(f"s_lshl_b32 s{sT+4}, s{sT+4}, 15"); a(f"s_lshl_b32 s{sZ}, s{sNB}, 16")
    a(f"s_add_u32 s{sZ}, s{sZ}, s{sT+4}"); a(f"s_add_u32 s{sZ}, s{sZ}, {Z_OFF}")
    a(f"s_mul_i32 s{sW}, s{sP}, 5440"); a(f"s_add_u32 s{sW}, s{sW}, 0x10000")
    a(f"s_mov_b32 s{sMask}, 0xfffff"); a(f"s_mov_b32 s{sMask+1}, 0")
    a(f"s_mov_b64 s[{sFix}:{sFix+1}], 0")
    a("s_waitcnt lgkmcnt(0)")
    st(1)
    a(f"s_add_u32 s{S_H}, s{S_WS}, {H_OFF-4096}"); a(f"s_addc_u32 s{S_H+1}, s{S_WS+1}, 0")
    a(f"s_mov_b32 s{S_H+2}, {8*MB+4096}"); a(f"s_mov_b32 s{S_H+3}, 0x20000")
    a(f"s_mov_b32 s{S_WS+2}, 0x10000000"); a(f"s_mov_b32 s{S_WS+3}, 0x20000")
    a(f"s_mov_b32 s{S_XF+2}, {8*MB}"); a(f"s_mov_b32 s{S_XF+3}, 0x20000")
    a(f"s_mov_b32 s{S_OUT+2}, {8*MB}"); a(f"s_mov_b32 s{S_OUT+3}, 0x20000")
    a(f"s_lshr_b32 s{sScl}, s{sNB}, 1"); a(f"s_lshl_b32 s{sScl}, s{sScl}, 7")
    a(f"v_min_u32 v{vSc}, 23, v{vT+1}"); a(f"v_lshlrev_b32 v{vSc}, 2, v{vSc}")

    def dma_ops(j, soff, m0const, tag):
        ops = []
        if j in (0, 4): ops.append([other(f"s_add_u32 m0, s{sW}, {m0const + (4096 if j == 4 else 0)}")])
        ld = vmem(f"buffer_load_dwordx4 v{vD+j}, s[{S_H}:{S_H+3}], {soff} offen offset:{(j&3)*1024} lds", tag)
        if j == 5:
            ops.append([other(f"s_mov_b64 exec, s[{sMask}:{sMask+1}]"), ld, other("s_mov_b64 exec, -1")])
        else: ops.append([ld])
        return ops
    def u_load(X, k):
        kk = X*12 + k
        return vmem(f"buffer_load_dwordx4 {ar(aU+4*kk,4)}, v{vL+kk//4}, s[{S_WS}:{S_WS+3}], s{sU} offen offset:{(kk%4)*1024}", f"U{kk}")
    def e_load(o):
        return vmem(f"buffer_load_dwordx4 {ar(aE+4*o,4)}, v{vL+o//4}, s[{S_WS}:{S_WS+3}], s{sE} offen offset:{(o%4)*1024}", f"E{o}")
    def z_load(f):
        return vmem(f"buffer_load_dwordx4 {vr(vZ+4*f,4)}, v{vL}, s[{S_WS}:{S_WS+3}], s{sZ} offen offset:{f*1024}", f"Z{f}")
    def v_row(dst, r, half, k):
        rw = vRaw + 8*(k % 3)
        off = half*TILE + r*ROWB
        rd = [ds(f"ds_read_b128 {vr(rw,4)}, v{vX} offset:{off}", f"Ra{k%3}"), ds(f"ds_read_b128 {vr(rw+4,4)}, v{vY} offset:{off}", f"Rb{k%3}")]
        pk = [other(f"v_pk_fma_f16 v{dst+4*r+i}, v{rw+4+i}, s{sSgn}, v{rw+i}") for i in range(4)]
        return rd, wait(lg=f"Rb{k%3}"), pk
    def conv(X, rowmajor=False):
        V = vVA if X == 0 else vVB
        out = []
        order = [(di, f, o) for di in range(3) for f in range(4) for o in range(8)] if not rowmajor else \
                [(di, f, o) for o in range(8) for di in range(3) for f in range(4)]
        for di, f, o in order:
            out.append(mfma(f"v_mfma_f32_16x16x32_f16 {acc(o,f)}, {ar(aU+4*(X*12+di*4+f),4)}, {vr(V+4*(o+di),4)}, {acc(o,f)}"))
        return out
    def bpart():
        return [mfma(f"v_mfma_f32_16x16x32_bf16 {acc(o,f)}, {vr(vZ+4*f,4)}, {ar(aE+4*o,4)}, {acc(o,f)}") for f in range(4) for o in range(8)]
    def place_v(B, dst, half, lo, hi, k0):
        step = (hi - lo) / 10.0
        for r in range(10):
            rd, w, pk = v_row(dst, r, half, k0 + r)
            p = lo + r*step
            B.put(p, rd[0]); B.put(p+1, rd[1])
            lat = opts.get("lds_lat", 9)
            B.put(p+lat, [w, pk[0]])
            for i in range(1, 4): B.put(p+lat+i, pk[i])

    NM = 224
    LEAD = opts.get("lead", 64)
    ug = opts.get("ugroup", 2)
    def edf_items():
        it = []
        for j in range(6): it.append((0, ("HA", j)))
        for k in range(12): it.append((8*(k//ug*ug), ("U", k)))
        for j in range(6): it.append((96, ("HB", j)))
        for k in range(12): it.append((96 + 8*(k//ug*ug), ("U", 12+k)))
        for o in range(8): it.append((192, ("E", o)))
        for f in range(4): it.append((192 + 8*f, ("Z", f)))
        it.sort(key=lambda x: x[0])
        sp = NM / len(it)
        off = min(d - i*sp for i, (d, _) in enumerate(it)) - LEAD
        return [(off + i*sp, w) for i, (d, w) in enumerate(it)]
    def item_ops(w):
        k, j = w
        if k == "HA":
            g = dma_ops(j, f"s{sHA}", 0, f"HA{j}")
            if j == 0: g = [[other(f"s_xor_b32 s{sW}, s{sW}, 0x10000")]] + g
            if j == 5: g.append([other(f"s_add_u32 s{sHA}, s{sHA}, {1*MB}")])
        elif k == "HB":
            g = dma_ops(j, f"s{sHB}", TILE, f"HB{j}")
            if j == 5: g.append([other(f"s_add_u32 s{sHB}, s{sHB}, {1*MB}")])
        elif k == "U":
            g = [[u_load(j // 12, j % 12)]]
            if j == 23: g.append([other(f"s_add_u32 s{sU}, s{sU}, 24576")])
        elif k == "E":
            g = [[e_load(j)]]
            if j == 7: g.append([other(f"s_add_u32 s{sE}, s{sE}, 8192")])
        else:
            g = [[z_load(j)]]
            if j == 3: g.append([other(f"s_add_u32 s{sZ}, s{sZ}, 4096")])
        return g
    ITEMS = edf_items()
    WRAP = [w for p, w in ITEMS if p < 0]
    INIT = [w for p, w in ITEMS if p >= 0]

    def body(final):
        if not final:
            B = Block(conv(0) + conv(1) + bpart())
            for k in range(0, 12, ug):
                if k: B.fix(8*k-1, wait(vm=f"U{k+ug-1}")); B.fix(96+8*k-1, wait(vm=f"U{12+k+ug-1}"))
            B.fix(-1, [wait(vm=["HA5", f"U{ug-1}"]), other("s_barrier")])
            B.fix(95, [wait(vm=["HB5", f"U{12+ug-1}"]), other("s_barrier")])
            B.fix(191, wait(vm=["E7", "Z0"]))
            for f in range(1, 4): B.fix(191+8*f, wait(vm=f"Z{f}"))
            place_v(B, vVB, 0, 0, 84, 0)
            place_v(B, vVA, 1, 96, 210, 10)
            for p, w in ITEMS:
                for i, ops in enumerate(item_ops(w)): B.put((p % NM) + 0.9*i if (p % NM) + 0.9*i < NM-0.2 else NM-0.2, ops)
            B.put(220, other(f"v_xor_b32 v{vX}, 0x10000, v{vX}"))
            B.put(221, other(f"v_xor_b32 v{vY}, 0x10000, v{vY}"))
            B.put(223.9, other(f"s_sub_u32 s{sCnt}, s{sCnt}, 1"))
        else:
            cA = conv(0); cAr = conv(0, rowmajor=True); cB = conv(1, rowmajor=True)
            tail = []
            for o in range(8): tail += cAr[12*o+8:12*o+12] + cB[12*o:12*o+12]
            B = Block(cA[:64] + tail)
            for k in range(ug, 8, ug): B.fix(8*k-1, wait(vm=f"U{k+ug-1}"))
            B.fix(-1, [wait(vm=["HA5", f"U{ug-1}"]), other("s_barrier")])
            rest = [w for w in INIT if w[0] == "U"]
            assert all(w[1] >= 8 for w in rest)
            sp = opts.get("fin_sp", 3.5)
            for i, w in enumerate(rest): B.put(1 + i*sp, item_ops(w)[0])
            for d in range(4): B.fix(63+4*d, wait(vm=f"U{11+4*d}"))
            place_v(B, vVB, 0, 0, opts.get("fin_vhi", 92), 0)
            x0 = 1 + len(rest)*sp
            for i in range(8):
                B.put(x0 + 4*i, vmem(f"buffer_load_dwordx4 {vr(vXF+4*i,4)}, v{vOut}, s[{S_XF}:{S_XF+3}], s{sO+(i>>1)} offen offset:{(i&1)*1024}", f"XF{i}"))
            for o in range(7):
                for f in range(4): B.put(64+16*(o+1)+5+f*3, ex_write(o, f))
            hb = [f"HB{j}" for k, j in WRAP if k == "HB"][-1:]
            NH = opts.get("nhid", 2)
            b = [64 + 32*(ph+1) + 18 for ph in range(NH)]
            for ph in range(NH):
                B.put(b[ph], [wait(lg=f"W{2*ph+1}", vm=(hb if ph == 0 and hb else None)), other("s_barrier")])
            allops = [(ph, op) for ph in range(NH) for op in phase_ops(ph, False)]
            if NH == 0: B.put(100, [wait(vm=hb), other("s_barrier")] if hb else [other("s_barrier")])
            pos = 0
            for i, (ph, op) in enumerate(allops):
                pos = max(pos, b[ph] + 0.5)
                B.put(pos, op)
                pos += (191.0 - b[0]) / len(allops)
            NU = opts.get("unp", 0)
            if NU:
                for ph in range(NH, 4):
                    for i in range(8):
                        k = (ph-NH)*8 + i; p = NU + k*(190-NU)/(8*(4-NH))
                        ops = [other(f"v_lshlrev_b32 v{vXU+16*ph+2*i}, 16, v{vXF+8*ph+i}")]
                        if i == 0: ops = [wait(vm=f"XF{2*ph+1}")] + ops
                        B.put(p, ops); B.put(p+0.5, other(f"v_and_b32 v{vXU+16*ph+2*i+1}, 0xffff0000, v{vXF+8*ph+i}"))
        seq = B.layout(cap=1, slack=opts.get("slack", 3), capf=(lambda p: 2 if p >= 114 else 1) if final and opts.get("nhid", 2) else None)
        return seq, B
    def ex_write(o, f):
        return ds(f"ds_write_b128 v{vEW + (f&1) + 2*(o>>2)}, {acc(o,f)} offset:{(o&3)*16384 + (f>>1)*128}", f"W{o}")
    def phase_reads(ph, M):
        return [ds(f"ds_read_b128 {vr(M+8*src+4*e,4)}, v{vER+e+2*(ph>>1)} offset:{(ph&1)*32768+src*4096}", f"X{ph}") for src in range(4) for e in range(2)]
    def phase_ops(ph, packed, M=None, reads=True):
        pre = packed and opts.get("unp", 0)
        if M is None: M = vXU
        ops = phase_reads(ph, M) if reads else []
        y0 = vZ + 8*(ph & 1); y1 = y0 + 4
        for q in range(4):
            m0, m1, m2, m3 = [M+8*s_+2*q for s_ in range(4)]
            t, u = vT + 4*(q & 1), vT + 4*(q & 1) + 2
            x0_, x1_ = vXF + 8*ph + q, vXF + 8*ph + 4 + q
            unp = [other(f"v_lshlrev_b32 v{t}, 16, v{x0_}"), other(f"v_and_b32 v{t+1}, 0xffff0000, v{x0_}"),
                   other(f"v_lshlrev_b32 v{u}, 16, v{x1_}"), other(f"v_and_b32 v{u+1}, 0xffff0000, v{x1_}")]
            if packed:
                xa, xb = (vr(vXU+16*ph+2*q, 2), vr(vXU+16*ph+8+2*q, 2)) if pre else (vr(t, 2), vr(u, 2))
                ng = " neg_lo:[1,0,0] neg_hi:[1,0,0]"
                grp = ([] if pre else unp) + \
                      [other(f"v_pk_add_f32 {vr(m0,2)}, {vr(m0,2)}, {vr(m1,2)}"),
                       other(f"v_pk_add_f32 {vr(m3,2)}, {vr(m1,2)}, {vr(m3,2)} neg_lo:[0,1] neg_hi:[0,1]"),
                       other(f"v_pk_add_f32 {vr(m0,2)}, {vr(m0,2)}, {vr(m2,2)}"),
                       other(f"v_pk_add_f32 {vr(m3,2)}, {vr(m3,2)}, {vr(m2,2)} neg_lo:[0,1] neg_hi:[0,1]"),
                       other(f"v_pk_fma_f32 {vr(t,2)}, {vr(m0,2)}, s[{sInv}:{sInv+1}], {xa}"),
                       other(f"v_pk_fma_f32 {vr(u,2)}, {vr(m3,2)}, s[{sInv}:{sInv+1}], {xb}")]
                wl = 0 if pre else 4
            else:
                grp = unp + [other(f"v_fmac_f32 v{d+i}, s{sc}, v{m+i}") for d, sc, m in
                             ((t, sInv, m0), (u, sInv, m1), (t, sInv, m1), (u, sNinv, m2), (t, sInv, m2), (u, sNinv, m3)) for i in range(2)]
                wl = 4
            grp += [other(f"v_cvt_pk_bf16_f32 v{y0+q}, v{t}, v{t+1}"), other(f"v_cvt_pk_bf16_f32 v{y1+q}, v{u}, v{u+1}")]
            if q == 0:
                grp.insert(wl, wait(lg=f"X{ph}"))
                if not pre: grp.insert(0, wait(vm=f"XF{2*ph+1}"))
            ops += grp
        ops += [vmem(f"buffer_store_dwordx4 {vr(y0,4)}, v{vOut}, s[{S_OUT}:{S_OUT+3}], s{sO+ph} offen", "ST"),
                vmem(f"buffer_store_dwordx4 {vr(y1,4)}, v{vOut}, s[{S_OUT}:{S_OUT+3}], s{sO+ph} offen offset:1024", "ST")]
        return ops

    loop_seq, LB = body(False)
    fin_seq, FB = body(True)
    def flat(groups):
        out = []
        for ops in groups:
            out += ops
            if " m0," in (ops[-1].text or ""): out.append(other("s_nop 0"))
        return out
    pro = []
    a.label(f"{name}_reload")
    pro.append(other(f"s_mov_b32 s{sHA}, 0"))
    for j in range(6): pro += flat(dma_ops(j, f"s{sHA}", 0, f"H0{j}"))
    pro.append(vmem(f"buffer_load_dword v{vSc+1}, v{vSc}, s[{S_WS}:{S_WS+3}], s{sScl} offen offset:{SCL_OFF}", "SC"))
    pro.append(other(f"s_mov_b32 s{sHA}, {MB//2}"))
    pro.append(other(f"s_mov_b32 s{sHB}, {MB}"))
    ez = [("E", o) for o in range(8)] + [("Z", f) for f in range(4)]
    ez = [ez[8]] + ez[:8] + ez[9:]
    npre = opts.get("npre", 2)
    for w in ez[:npre]: pro += flat(item_ops(w))
    rows = [v_row(vVA, r, 0, r) for r in range(10)]
    pro2 = [wait(vm="SC"), other("s_barrier"),
            other(f"v_readfirstlane_b32 s{sT}, v{vSc+1}"), other("s_nop 1"),
            other(f"v_cmp_ne_u32 vcc, s{sT}, v{vSc+1}"),
            other(f"s_sub_u32 s{sInv}, 0x7f000000, s{sT}"), other(f"s_mov_b32 s{sInv+1}, s{sInv}"), other(f"s_xor_b32 s{sNinv}, s{sInv}, 0x80000000"),
            other(f"s_andn2_b64 vcc, vcc, s[{sFix}:{sFix+1}]"),
            other(f"s_cbranch_scc1 {name}_fix")]
    nv0 = opts.get("nv0", 6)
    pro2 += rows[0][0] + rows[1][0] + rows[2][0]
    rem = ez[npre:]
    for r in range(nv0):
        n0, n1 = r*len(rem)//nv0, (r+1)*len(rem)//nv0
        for w in rem[n0:n1]: pro2 += flat(item_ops(w))
        pro2 += [rows[r][1]] + rows[r][2]
        if r + 3 < 10: pro2 += rows[r+3][0]
    B0 = Block([mfma(f"v_mfma_f32_16x16x32_bf16 {acc(o,f)}, {vr(vZ+4*f,4)}, {ar(aE+4*o,4)}, 0") for f in range(4) for o in range(8)])
    B0.fix(-1, wait(vm=["E7", "Z0"]))
    for f in range(1, 4): B0.fix(8*f-1, wait(vm=f"Z{f}"))
    for r in range(nv0, 10):
        p = (r-nv0)*26.0/(10-nv0)
        B0.put(p, [rows[r][1], rows[r][2][0]])
        for i in range(1, 4): B0.put(p+i, rows[r][2][i])
        if r + 3 < 10:
            for i in range(2): B0.put(p+4+i, rows[r+3][0][i])
    for i, w in enumerate(WRAP):
        for k, ops in enumerate(item_ops(w)): B0.put(min(i*31.0/len(WRAP) + 0.3*k, 31.5), ops)
    B0.put(31.6, [other(f"v_xor_b32 v{vX}, 0x10000, v{vX}"), other(f"v_xor_b32 v{vY}, 0x10000, v{vY}")])
    pro2 += B0.layout(cap=2, slack=1)
    epi = [other("s_nop 4")]
    for f in range(4): epi.append(ex_write(7, f))
    epi += [wait(lg="ALL"), other("s_barrier")]
    NH = opts.get("nhid", 2); MS = [vVA, vVA+32]
    epi += phase_reads(NH, MS[NH & 1])
    for ph in range(NH, 4):
        ops = phase_ops(ph, True, MS[ph & 1], reads=False)
        k = [i for i, op in enumerate(ops) if op.kind == "wait" and op.lg is not None][0] + 1
        epi += ops[:k] + (phase_reads(ph+1, MS[(ph+1) & 1]) if ph < 3 else []) + ops[k:]
    resolve([pro, pro2, loop_seq, loop_seq, loop_seq, fin_seq, epi])
    def fix_haz(seq):
        out = []
        for op in seq:
            if out and op.kind == "vmem" and op.text.endswith("lds") and out[-1].kind == "x" and " m0," in out[-1].text:
                out.append(other("s_nop 0"))
            out.append(op)
        return out
    loop_seq = fix_haz(loop_seq); pro2 = fix_haz(pro2)
    for op in pro: a(op.render())
    st(2)
    t_, g_ = vT, vT+1
    a(f"v_and_b32 v{t_}, 15, v0"); a(f"v_bfe_u32 v{g_}, v0, 4, 2")
    a(f"s_and_b32 s{sT}, s{sP}, 1"); a(f"s_xor_b32 s{sT}, s{sT}, 1")
    a(f"s_cmp_eq_u32 s{sP}, 2"); a(f"s_cselect_b32 s{sT+1}, 1, 0"); a(f"s_cselect_b32 s{sT+3}, 0, 1")
    a(f"s_cmp_lt_u32 s{sP}, 2"); a(f"s_cselect_b32 s{sT+2}, 1, 0")
    a(f"s_cmp_eq_u32 s{sP}, 1"); a(f"s_mov_b32 s{sSgn}, 0xbc00bc00"); a(f"s_cselect_b32 s{sSgn}, 0x3c003c00, s{sSgn}")
    for dst, par, du in ((vX, sT, sT+1), (vY, sT+2, sT+3)):
        a(f"v_add_u32 v{vT+2}, s{du}, v{t_}")
        a(f"v_subrev_u32 v{vT+3}, s{par}, v{vT+2}")
        a(f"v_lshrrev_b32 v{vT+3}, 1, v{vT+3}"); a(f"v_and_b32 v{vT+3}, 2, v{vT+3}")
        a(f"v_xor_b32 v{vT+3}, v{vT+3}, v{g_}")
        a(f"v_lshlrev_b32 v{vT+2}, 6, v{vT+2}"); a(f"v_lshl_add_u32 v{vT+2}, v{vT+3}, 4, v{vT+2}")
        a(f"s_mul_i32 s{sT+4}, s{par}, 1088"); a(f"s_add_u32 s{sT+4}, s{sT+4}, 0x10000")
        a(f"v_add_u32 v{dst}, s{sT+4}, v{vT+2}")
    a(f"s_lshl_b32 s{sT+4}, s{sP}, 12")
    a(f"v_and_b32 v{vT+2}, 7, v{t_}"); a(f"v_xor_b32 v{vT+2}, v{vT+2}, v{g_}")
    a(f"v_lshlrev_b32 v{vT+3}, 8, v{t_}"); a(f"v_add_u32 v{vT+3}, s{sT+4}, v{vT+3}")
    a(f"v_lshl_add_u32 v{vEW}, v{vT+2}, 4, v{vT+3}")
    a(f"v_xor_b32 v{vEW+1}, 64, v{vEW}")
    a(f"v_add_u32 v{vEW+2}, 0x10000, v{vEW}"); a(f"v_add_u32 v{vEW+3}, 0x10000, v{vEW+1}")
    a(f"v_bfe_u32 v{vT+2}, v0, 3, 3"); a(f"v_and_b32 v{vT+3}, 7, v0")
    a(f"v_lshlrev_b32 v{vT+4}, 1, v{vT+3}"); a(f"v_xor_b32 v{vT+4}, v{vT+4}, v{vT+2}")
    a(f"s_lshr_b32 s{sT+6}, s{sP}, 1"); a(f"s_and_b32 s{sT+7}, s{sP}, 1")
    a(f"s_lshl_b32 s{sT+4}, s{sT+6}, 14"); a(f"s_lshl_b32 s{sT+5}, s{sT+7}, 11"); a(f"s_add_u32 s{sT+4}, s{sT+4}, s{sT+5}")
    a(f"v_lshlrev_b32 v{vT+5}, 8, v{vT+2}"); a(f"v_add_u32 v{vT+5}, s{sT+4}, v{vT+5}")
    a(f"v_lshl_add_u32 v{vER}, v{vT+4}, 4, v{vT+5}"); a(f"v_xor_b32 v{vER+1}, 16, v{vER}")
    a(f"v_add_u32 v{vER+2}, 0x10000, v{vER}"); a(f"v_add_u32 v{vER+3}, 0x10000, v{vER+1}")
    a(f"v_lshlrev_b32 v{vOut}, 11, v{vT+2}"); a(f"v_lshl_add_u32 v{vOut}, v{vT+3}, 4, v{vOut}")
    a(f"s_add_u32 s{sT+4}, s{sT+6}, s{sR0}"); a(f"s_lshl_b32 s{sT+4}, s{sT+4}, 16")
    a(f"s_lshl_b32 s{sT+5}, s{sHBk}, 15"); a(f"s_add_u32 s{sT+4}, s{sT+4}, s{sT+5}")
    a(f"s_lshl_b32 s{sT+5}, s{sT+7}, 14"); a(f"s_add_u32 s{sT+4}, s{sT+4}, s{sT+5}")
    a(f"s_lshl_b32 s{sT+5}, s{sNB}, 7"); a(f"s_add_u32 s{sO}, s{sT+4}, s{sT+5}")
    for i in range(1, 4): a(f"s_add_u32 s{sO+i}, s{sO}, {i*131072}")
    a(f"s_mov_b32 s{sCnt}, 6")
    st(3)
    p2 = merge_waits(pro2)
    for op in p2[:2]: a(op.render())
    st(4)
    for op in p2[2:]: a(op.render())
    st(5)
    a(".p2align 6")
    a.label(f"{name}_loop")
    ls = merge_waits(loop_seq)
    for op in ls[:2]: a(op.render())
    if stamp == 2: st(12, sCnt)
    for op in ls[2:]: a(op.render())
    a(f"s_cbranch_scc0 {name}_loop")
    fs = merge_waits(fin_seq)
    for op in fs[:2]: a(op.render())
    if stamp == 2: st(13)
    nm = 0
    for op in fs[2:]:
        a(op.render())
        if op.kind == "mfma":
            nm += 1
            if stamp == 2 and nm in (62, 80, 113, 160): a("s_waitcnt lgkmcnt(0)"); st({62: 17, 80: 18, 113: 19, 160: 20}[nm])
    ep = merge_waits(epi)
    nb = [i for i, op in enumerate(ep) if op.text == "s_barrier"][0] + 1
    for op in ep[:nb]: a(op.render())
    st(14)
    for op in ep[nb:]: a(op.render())
    st(15)
    if stamp:
        a("s_waitcnt vmcnt(0)")
        st(16)
        a(f"s_lshl_b32 s{sT}, s2, 2"); a(f"s_add_u32 s{sT}, s{sT}, s{sP}"); a(f"s_lshl_b32 s{sT}, s{sT}, 9"); a(f"s_add_u32 s{sT}, s{sT}, {24*MB}")
        a(f"v_lshrrev_b32 v2, 2, v{vL}")
        a(f"buffer_store_dword v7, v2, s[{S_WS}:{S_WS+3}], s{sT} offen")
        a(f"buffer_store_dword v237, v2, s[{S_WS}:{S_WS+3}], s{sT} offen offset:256")
    a.label(f"{name}_end")
    a("s_endpgm")
    a.label(f"{name}_fix")
    a("s_waitcnt vmcnt(0)")
    a(f"s_mov_b64 s[{sFix}:{sFix+1}], -1")
    assert npre <= 8
    a(f"s_mov_b32 s{sT+2}, s{sU}"); a(f"s_mov_b32 s{sT+3}, s{sZ}")
    a(f"s_lshl_b32 s{sT+4}, s2, 2"); a(f"s_add_u32 s{sT+4}, s{sT+4}, s{sP}"); a(f"s_mul_i32 s{sU}, s{sT+4}, {PRIV_STRIDE}")
    a(f"s_add_u32 s{sU}, s{sU}, {PRIV_OFF}"); a(f"s_add_u32 s{sZ}, s{sU}, 196608")
    a(f"s_mov_b32 s{sT+4}, s{sU}")
    for i in range(1, 24):
        a(f"v_readlane_b32 s{sT+5}, v{vSc+1}, {i}"); a("s_nop 0"); a(f"s_min_u32 s{sT}, s{sT}, s{sT+5}")
    a(f"v_subrev_u32 v{vT+8}, s{sT}, v{vSc+1}")
    a(f"v_cmp_eq_u32 vcc, 0, v{vT+8}")
    a(f"v_min_u32 v{vT+8}, 0x3f000000, v{vT+8}"); a(f"v_sub_u32 v{vT+8}, 0x3f800000, v{vT+8}")
    a(f"s_ff1_i32_b64 s{sT+5}, vcc"); a(f"s_min_u32 s{sT+5}, s{sT+5}, 23"); a(f"s_lshl_b32 s{sT+5}, s{sT+5}, 2")
    a(f"v_mov_b32 v{vSc}, s{sT+5}")
    a(f"s_mov_b32 s{sT+6}, 0")
    a.label(f"{name}_fixU")
    a(f"s_mul_hi_u32 s{sT+7}, s{sT+6}, 0x55555556")
    a(f"s_mul_i32 s{sT+8}, s{sT+7}, 3"); a(f"s_sub_u32 s{sT+8}, s{sT+6}, s{sT+8}")
    a(f"s_lshr_b32 s{sT+7}, s{sT+7}, 1"); a(f"s_lshl_b32 s{sT+8}, s{sT+8}, 3"); a(f"s_add_u32 s{sT+7}, s{sT+7}, s{sT+8}")
    a("s_nop 3")
    a(f"v_readlane_b32 s{sT+9}, v{vT+8}, s{sT+7}")
    for f in range(4): a(f"buffer_load_dwordx4 {vr(16+4*f,4)}, v{vL}, s[{S_WS}:{S_WS+3}], s{sT+2} offen offset:{f*1024}")
    a(f"v_cvt_f16_f32 v{vT+9}, s{sT+9}"); a("s_nop 0"); a(f"v_pack_b32_f16 v{vT+9}, v{vT+9}, v{vT+9}")
    a("s_waitcnt vmcnt(0)")
    for i in range(16): a(f"v_pk_mul_f16 v{16+i}, v{16+i}, v{vT+9}")
    for f in range(4): a(f"buffer_store_dwordx4 {vr(16+4*f,4)}, v{vL}, s[{S_WS}:{S_WS+3}], s{sT+4} offen offset:{f*1024}")
    a("s_waitcnt vmcnt(0)")
    a(f"s_add_u32 s{sT+2}, s{sT+2}, 4096"); a(f"s_add_u32 s{sT+4}, s{sT+4}, 4096"); a(f"s_add_u32 s{sT+6}, s{sT+6}, 1")
    a(f"s_cmp_lt_u32 s{sT+6}, 48"); a(f"s_cbranch_scc1 {name}_fixU")
    a(f"s_add_u32 s{sT+6}, s{sP}, 1"); a(f"s_bfe_u32 s{sT+6}, s{sT+6}, 0x10001"); a(f"s_lshl_b32 s{sT+6}, s{sT+6}, 3")
    a(f"s_add_u32 s{sT+10}, s{sT+6}, 8")
    a.label(f"{name}_fixZ")
    a(f"s_lshr_b32 s{sT+7}, s{sT+6}, 1"); a(f"s_add_u32 s{sT+7}, s{sT+7}, 8")
    a("s_nop 3")
    a(f"v_readlane_b32 s{sT+9}, v{vT+8}, s{sT+7}")
    for f in range(4): a(f"buffer_load_dwordx4 {vr(16+4*f,4)}, v{vL}, s[{S_WS}:{S_WS+3}], s{sT+3} offen offset:{f*1024}")
    a("s_waitcnt vmcnt(0)")
    for i in range(16):
        a(f"v_lshlrev_b32 v{vT+9}, 16, v{16+i}"); a(f"v_and_b32 v{vT+10}, 0xffff0000, v{16+i}")
        a(f"v_mul_f32 v{vT+9}, s{sT+9}, v{vT+9}"); a(f"v_mul_f32 v{vT+10}, s{sT+9}, v{vT+10}")
        a(f"v_cvt_pk_bf16_f32 v{16+i}, v{vT+9}, v{vT+10}")
    for f in range(4): a(f"buffer_store_dwordx4 {vr(16+4*f,4)}, v{vL}, s[{S_WS}:{S_WS+3}], s{sT+4} offen offset:{f*1024}")
    a("s_waitcnt vmcnt(0)")
    a(f"s_add_u32 s{sT+3}, s{sT+3}, 4096"); a(f"s_add_u32 s{sT+4}, s{sT+4}, 4096"); a(f"s_add_u32 s{sT+6}, s{sT+6}, 1")
    a(f"s_cmp_lt_u32 s{sT+6}, s{sT+10}"); a(f"s_cbranch_scc1 {name}_fixZ")
    a(f"s_mul_i32 s{sW}, s{sP}, 5440"); a(f"s_add_u32 s{sW}, s{sW}, 0x10000")
    a(f"s_branch {name}_reload")
    kernel_desc(a, name, 512, 102, 256)
    return LB, FB

if __name__ == "__main__":
    import sys
    a = Asm()
    a("; @launch kernel=k2_kernel grid=(256,1,1) block=(256,1,1) lds=131072")
    a('.amdgcn_target "amdgcn-amd-amdhsa--gfx950"')
    opts = {}
    out = "k2_only.s"
    for x in sys.argv[1:]:
        if x.endswith(".s"): out = x
        elif "=" in x:
            k, v = x.split("="); opts[k] = float(v) if "." in v else int(v)
    LB, FB = gen_k2(a, "k2_kernel", stamp=(2 if "stamp2" in sys.argv else 1 if "stamp" in sys.argv else 0), opts=opts)
    open(out, "w").write(a.text())
    print("loop gap load:", LB.hist)
    print("final gap load:", FB.hist)
```

```python
from asmlib import *
from sched import *
from layouts import *

LOG2E = 1.4426950408889634
def f32bits(x):
    import struct
    return struct.unpack("<I", struct.pack("<f", x))[0]

S_A, S_B, S_X, S_F, S_WS = 4, 8, 12, 16, 20
sW_, sJ, sXc = 24, 25, 26
sT = 28

def gen_k1(a, name, stamp=0, opts=None):
    opts = opts or {}
    kernel_begin(a, name)
    def st(k):
        if not stamp: return
        a("s_memrealtime s[84:85]"); a("s_memtime s[86:87]"); a("s_waitcnt lgkmcnt(0)")
        a(f"v_writelane_b32 v250, s84, {k}"); a(f"v_writelane_b32 v251, s86, {k}")
    def st_flush():
        if not stamp: return
        a("s_waitcnt vmcnt(0)"); st(15)
        a(f"s_lshl_b32 s{sT}, s2, 3"); a(f"s_add_u32 s{sT}, s{sT}, s{sW_}"); a(f"s_lshl_b32 s{sT}, s{sT}, 9"); a(f"s_add_u32 s{sT}, s{sT}, {25*MB}")
        a("v_and_b32 v2, 63, v0"); a("v_lshlrev_b32 v2, 2, v2")
        a(f"buffer_store_dword v250, v2, s[{S_WS}:{S_WS+3}], s{sT} offen")
        a(f"buffer_store_dword v251, v2, s[{S_WS}:{S_WS+3}], s{sT} offen offset:256")
    a("s_cmp_ge_u32 s2, 256")
    a(f"s_cbranch_scc1 {name}_end")
    st(0)
    a(f"s_load_dwordx2 s[{S_WS}:{S_WS+1}], s[0:1], 64")
    a(f"s_load_dwordx2 s[{S_X}:{S_X+1}], s[0:1], 8")
    a("v_lshrrev_b32 v1, 6, v0")
    a(f"s_and_b32 s{sXc}, s2, 7")
    a(f"v_readfirstlane_b32 s{sW_}, v1")
    a(f"s_lshr_b32 s{sJ}, s2, 3")
    a("v_and_b32 v1, 63, v0")
    a(f"s_mov_b32 s{S_WS+2}, 0x10000000"); a(f"s_mov_b32 s{S_WS+3}, 0x20000")
    a(f"s_mov_b32 s{S_X+2}, {8*MB}"); a(f"s_mov_b32 s{S_X+3}, 0x20000")
    a(f"s_cmp_ge_u32 s{sJ}, 28"); a(f"s_cbranch_scc1 {name}_pf")
    a(f"s_cmp_ge_u32 s{sJ}, 16"); a(f"s_cbranch_scc1 {name}_c")
    gen_a(a, name, st, opts)
    st_flush()
    a("s_endpgm")
    a.label(f"{name}_c")
    helper_touch(a, name + "_c", "c", opts)
    if opts.get("noc"): a("s_waitcnt vmcnt(0) lgkmcnt(0)"); st(1); st(2); st(4); st(8)
    else: gen_c(a, name, st, opts)
    st_flush()
    a("s_endpgm")
    a.label(f"{name}_pf")
    helper_touch(a, name + "_p", "p", opts)
    if opts.get("xft", 2) == 2:
        a(f"s_load_dwordx2 s[{S_F}:{S_F+1}], s[0:1], 0"); a(f"s_mov_b32 s{S_F+2}, {8*MB}"); a(f"s_mov_b32 s{S_F+3}, 0x20000")
        a(f"s_sub_u32 s72, s{sJ}, 28"); a(f"s_lshl_b32 s74, s{sXc}, 2"); a("s_add_u32 s72, s72, s74"); a("s_lshl_b32 s72, s72, 18")
        a(f"s_lshl_b32 s74, s{sW_}, 15"); a("s_add_u32 s72, s72, s74"); a("s_waitcnt lgkmcnt(0)"); a("s_barrier")
        for i in range(4): a(f"buffer_load_dword v213, v210, s[{S_F}:{S_F+3}], s72 offen"); a("s_add_u32 s72, s72, 8192")
    else: xf_touch(a, opts)
    a("s_waitcnt vmcnt(0) lgkmcnt(0)")
    st_flush()
    a.label(f"{name}_end")
    a("s_endpgm")
    kernel_desc(a, name, 256 if stamp else 216, 96, 256 if stamp else 216)

def gen_a(a, name, st, opts):
    sR, sSo, sM, sWm, sS, sM2 = sT, sT+3, sT+4, sT+5, sT+7, sT+6
    sU0 = sT+8
    vC = 2
    vW = 4
    vTr = 8
    vCa, vCb, vXa, vXb = 12, 13, 14, 15
    vAcc = 16
    Wf = [80, 96]; Cf = 112; sel = [128, 132]
    acc = lambda T, tile: vr(vAcc + (T*4+tile)*4, 4)
    a(f"s_load_dwordx2 s[{S_A}:{S_A+1}], s[0:1], 16")
    a(f"s_load_dwordx2 s[{S_B}:{S_B+1}], s[0:1], 24")
    a(f"s_load_dwordx2 s[{S_F}:{S_F+1}], s[0:1], 0")
    a(f"s_lshl_b32 s{sR}, s{sXc}, 4"); a(f"s_add_u32 s{sR}, s{sR}, s{sJ}")
    a(f"s_mov_b32 s{S_A+2}, {8*MB}"); a(f"s_mov_b32 s{S_A+3}, 0x20000")
    a(f"s_mov_b32 s{S_B+2}, {MB//2}"); a(f"s_mov_b32 s{S_B+3}, 0x20000")
    a(f"s_mov_b32 s{S_F+2}, {8*MB}"); a(f"s_mov_b32 s{S_F+3}, 0x20000")
    t0, t1, t2, t3 = 136, 137, 138, 139
    a(f"v_lshrrev_b32 v{t0}, 3, v1")
    a(f"v_and_b32 v{t1}, 7, v1")
    a(f"v_lshrrev_b32 v{t2}, 4, v1")
    a(f"v_xor_b32 v{t3}, v{t1}, v{t2}")
    a(f"v_lshlrev_b32 v{vC}, 11, v{t0}"); a(f"v_lshl_add_u32 v{vC}, v{t3}, 4, v{vC}")
    a(f"v_xor_b32 v{vC+1}, 64, v{vC}"); a(f"v_add_u32 v{vC+1}, 16384, v{vC+1}")
    a(f"s_lshl_b32 s{sU0+2}, s{sR}, 16"); a(f"s_lshl_b32 s{sU0}, s{sW_}, 7"); a(f"s_add_u32 s{sSo}, s{sU0+2}, s{sU0}")
    NSL = opts.get("nsl", 3)
    a(f"s_mul_i32 s{sWm}, s{sW_}, {NSL*4096}"); a(f"s_add_u32 s{sWm}, s{sWm}, 65536")
    if opts.get("prio"):
        a(f"s_cmp_lt_u32 s{sW_}, 4"); a(f"s_cbranch_scc1 {name}_np"); a("s_setprio 1"); a.label(f"{name}_np")
    a(f"s_and_b32 s{sU0+1}, s{sW_}, 3"); a(f"s_lshr_b32 s{sU0+3}, s{sW_}, 2")
    a(f"s_lshl_b32 s{sM}, s{sU0+1}, 13"); a(f"s_lshl_b32 s{sU0+4}, s{sU0+3}, 12"); a(f"s_add_u32 s{sM}, s{sM}, s{sU0+4}")
    a(f"s_lshl_b32 s{sM2}, s{sU0+1}, 7"); a(f"s_lshl_b32 s{sU0+4}, s{sU0+3}, 15"); a(f"s_add_u32 s{sM2}, s{sM2}, s{sU0+4}"); a(f"s_add_u32 s{sM2}, s{sM2}, s{sU0+2}")
    a(f"v_and_b32 v{t3}, 1, v{t2}"); a(f"v_lshlrev_b32 v{t3}, 1, v{t3}"); a(f"v_xor_b32 v{t3}, v{t3}, v{t1}")
    a(f"v_lshlrev_b32 v{vW}, 10, v{t0}"); a(f"v_lshl_add_u32 v{vW}, v{t3}, 4, v{vW}"); a(f"v_add_u32 v{vW}, s{sU0}, v{vW}")
    a(f"v_xor_b32 v{vW+1}, 64, v{vW}"); a(f"v_add_u32 v{vW+1}, 7168, v{vW+1}")
    a(f"v_add_u32 v{vW+2}, 14336, v{vW}"); a(f"v_add_u32 v{vW+3}, 14336, v{vW+1}")
    def c_dma(half, tag):
        ops = []
        for par in range(2):
            for th in range(2):
                ops += [other(f"s_add_u32 m0, s{sM}, {half*32768+par*2048+th*1024}"),
                        other(f"s_add_u32 s{sU0+1}, s{sM2}, {half*512+par*1024}"),
                        vmem(f"buffer_load_dwordx4 v{vC+th}, s[{S_A}:{S_A+3}], s{sU0+1} offen lds", tag)]
        return ops
    ORDER = list(range(16))
    xpos = opts.get("xpos", 14)
    ORDER = ORDER[:xpos] + ["xa", "xb"] + ORDER[xpos:]
    NS = len(ORDER)
    def dma(i):
        k = ORDER[i]; slot = i % NSL
        if k in ("xa", "xb"):
            hb = 0 if k == "xa" else 1
            ops = []
            for par in range(2):
                for th in range(2):
                    ops += [other(f"s_add_u32 m0, s{sWm}, {slot*4096+par*2048+th*1024}"),
                            other(f"s_add_u32 s{sU0+1}, s{sSo}, {hb*32768+par*1024}"),
                            vmem(f"buffer_load_dwordx4 v{vC+th}, s[{S_X}:{S_X+3}], s{sU0+1} offen lds", f"D{i}")]
            return ops
        return [other(f"s_add_u32 m0, s{sWm}, {slot*4096}"), other(f"s_mov_b32 s{sS}, {k*32768}")] + \
               [vmem(f"buffer_load_dwordx4 v{vW+q}, s[{S_B}:{S_B+3}], s{sS} offen offset:{q*1024} lds", f"D{i}") for q in range(4)]
    def frag_reads(i):
        k = ORDER[i]; slot = i % NSL; dst = Wf[i & 1]
        if k in ("xa", "xb"):
            return [ds(f"ds_read_b128 {vr(dst+8*par+4*h,4)}, v{vXa+h} offset:{slot*4096+par*2048}", f"f{i}") for par in range(2) for h in range(2)]
        return [ds(f"ds_read_b64_tr_b16 {vr(dst+4*T+2*t,2)}, v{vTr+T} offset:{slot*4096+t*512}", f"f{i}") for T in range(4) for t in range(2)]
    def c_read(tile, k): return ds(f"ds_read_b128 {vr(Cf+4*tile,4)}, v{vCa+(k&1)} offset:{(k>>1)*8192+tile*2048}", f"cr{tile}")
    a("s_waitcnt lgkmcnt(0)")
    st(1)
    pro = c_dma(0, "C0") + [other("s_barrier")] + dma(0)
    for op in pro: a(op.render())
    a(f"v_and_b32 v{t0}, 15, v1")
    a(f"v_lshrrev_b32 v{t1}, 1, v{t0}")
    a(f"v_xor_b32 v{t1}, v{t1}, v{t2}")
    a(f"v_lshlrev_b32 v{vCa}, 7, v{t0}"); a(f"v_lshl_add_u32 v{vCa}, v{t1}, 4, v{vCa}")
    a(f"v_xor_b32 v{vCb}, 64, v{vCa}"); a(f"v_add_u32 v{vXa}, s{sWm}, v{vCa}"); a(f"v_add_u32 v{vXb}, s{sWm}, v{vCb}")
    a(f"v_lshrrev_b32 v{t1}, 2, v{t0}")
    a(f"v_lshl_add_u32 v{t3}, v{t2}, 3, v{t1}")
    a(f"v_lshlrev_b32 v{vTr}, 7, v{t3}")
    a(f"v_and_b32 v{t3}, 3, v{t0}"); a(f"v_lshl_add_u32 v{vTr}, v{t3}, 3, v{vTr}")
    a(f"v_lshrrev_b32 v{t1}, 1, v{t1}"); a(f"v_and_b32 v{t3}, 1, v{t2}"); a(f"v_lshl_add_u32 v{t1}, v{t3}, 1, v{t1}")
    a(f"v_lshl_add_u32 v{vTr}, v{t1}, 5, v{vTr}"); a(f"v_add_u32 v{vTr}, s{sWm}, v{vTr}")
    for T in range(1, 4): a(f"v_xor_b32 v{vTr+T}, {T*32}, v{vTr}")
    a(f"v_lshrrev_b32 v{t1}, 3, v{t0}"); a(f"v_sub_u32 v{t1}, v{t2}, v{t1}")
    a(f"v_bfe_u32 v{t3}, v{t0}, 1, 2"); a(f"v_lshl_add_u32 v{t1}, v{t1}, 2, v{t3}")
    a(f"v_and_b32 v{t3}, 1, v{t0}"); a(f"v_lshlrev_b32 v{t3}, 4, v{t3}"); a(f"v_mov_b32 v{t0}, 0x3f80"); a(f"v_lshlrev_b32 v{t3}, v{t3}, v{t0}")
    for hh in range(2):
        for d in range(4):
            a(f"v_cmp_eq_u32 vcc, {8*hh+d}, v{t1}"); a("s_nop 1"); a(f"v_cndmask_b32 v{sel[hh]+d}, 0, v{t3}, vcc")
    def step(i):
        k = ORDER[i]; slot = i & 1
        isx = k in ("xa", "xb")
        if isx:
            hb = 0 if k == "xa" else 1
            mm = [mfma(f"v_mfma_f32_16x16x32_bf16 {acc(T,2*hb+par)}, {vr(sel[T&1],4)}, {vr(Wf[slot]+8*par+4*(T>>1),4)}, {acc(T,2*hb+par)}") for par in range(2) for T in range(4)]
        else:
            c0 = (lambda T, tile: "0") if i == 0 else acc
            mm = [mfma(f"v_mfma_f32_16x16x32_bf16 {acc(T,tile)}, {vr(Wf[slot]+4*T,4)}, {vr(Cf+4*tile,4)}, {c0(T,tile)}") for tile in range(4) for T in range(4)]
        B = Block(mm); n = len(mm)
        head = [wait(lg=[f"f{i}"] + ([] if isx else ["cr0"]))]
        if k == 7: head += [wait(vm="C1"), other("s_barrier")]
        elif opts.get("abar") and i and i % opts["abar"] == 0: head += [other("s_barrier")]
        B.fix(-1, head)
        if not isx:
            for tile in range(1, 4): B.fix(4*tile-1, wait(lg=f"cr{tile}"))
        ops = dma(i+NSL) if i + NSL < NS else []
        if i == opts.get("c2pos", 1): ops = ops + c_dma(1, "C1")
        if i == NS-2 and opts.get("touch", 0):
            ops = [other(f"v_lshlrev_b32 v{t0}, 7, v1"), other(f"s_lshl_b32 s{sU0}, s{sW_}, 13"), other(f"s_add_u32 s{sU0}, s{sU0}, s{sU0+2}"),
                   vmem(f"buffer_load_dword v200, v{t0}, s[{S_F}:{S_F+3}], s{sU0} offen", "touch")]
        sc = n/16
        for q, op in enumerate(ops): B.put(q*0.6*sc*(6/max(6, len(ops))), op)
        if i + 1 < NS:
            B.put(5*sc, wait(vm=f"D{i+1}"))
            for q, op in enumerate(frag_reads(i+1)): B.put((5.5+q)*sc, op)
        if not isx and k < 15:
            for tile in range(4): B.put(4*tile+3.9, c_read(tile, k+1))
        return B.layout(cap=2, slack=1)
    pre = [wait(vm="C0"), other("s_barrier")] + dma(1) + [c_read(t, 0) for t in range(4)] + [wait(vm="D0")] + frag_reads(0) + sum([dma(i) for i in range(2, NSL)], [])
    steps = sum([step(i) for i in range(NS)], [])
    resolve([pro, pre, steps])
    st(2)
    if opts.get("fine"):
        a("s_waitcnt vmcnt(7)"); st(9); a("s_waitcnt vmcnt(4)"); st(10); a("s_waitcnt vmcnt(0)"); st(11)
    for op in merge_waits(pre): a(op.render())
    st(3)
    for op in merge_waits(steps):
        if opts.get("nomfma") and op.kind == "mfma": continue
        if opts.get("nocr") and op.kind == "ds" and op.tag.startswith("cr"): continue
        if opts.get("nods") and op.kind == "ds": continue
        a(op.render())
    st(4)
    A = lambda T, tile, j: vAcc + (T*4+tile)*4 + j
    a("s_nop 7")
    S_ = [6, 7, 8, 9]; Q_ = [10, 11, 12, 13]; M_ = [112, 114, 116, 118]; tp = 120
    TS = [96, 98, 100, 102]; TD = [104, 106, 108, 110]
    for tile in range(4): a(f"v_pk_add_f32 {vr(TS[tile],2)}, {vr(A(0,tile,0),2)}, {vr(A(0,tile,2),2)}")
    for tile in range(4): a(f"v_pk_mul_f32 {vr(TD[tile],2)}, {vr(A(0,tile,0),2)}, {vr(A(0,tile,0),2)}")
    for T in range(4):
        for j in (0, 2):
            if T >= 1:
                for tile in range(4): a(f"v_pk_add_f32 {vr(TS[tile],2)}, {vr(TS[tile],2)}, {vr(A(T,tile,j),2)}")
            if (T, j) != (0, 0):
                for tile in range(4): a(f"v_pk_fma_f32 {vr(TD[tile],2)}, {vr(A(T,tile,j),2)}, {vr(A(T,tile,j),2)}, {vr(TD[tile],2)}")
    for tile in range(4): a(f"v_add_f32 v{S_[tile]}, v{TS[tile]}, v{TS[tile]+1}")
    for tile in range(4): a(f"v_add_f32 v{Q_[tile]}, v{TD[tile]}, v{TD[tile]+1}")
    for tile in range(4): a(f"v_mul_f32 v{M_[tile]}, 0xbd800000, v{S_[tile]}")
    for tile in range(4): a(f"v_fmac_f32 v{Q_[tile]}, v{M_[tile]}, v{S_[tile]}")
    def merge(x, y, swap, n):
        a("s_nop 1")
        a(f"{swap} v{S_[x]}, v{S_[y]}"); a(f"{swap} v{Q_[x]}, v{Q_[y]}")
        a("s_nop 0")
        a(f"v_sub_f32 v{tp}, v{S_[x]}, v{S_[y]}"); a(f"v_add_f32 v{S_[x]}, v{S_[x]}, v{S_[y]}")
        a(f"v_mul_f32 v{tp+1}, {hex(f32bits(1.0/(2*n)))}, v{tp}"); a(f"v_add_f32 v{Q_[x]}, v{Q_[x]}, v{Q_[y]}")
        a(f"v_fmac_f32 v{Q_[x]}, v{tp}, v{tp+1}")
    merge(0, 2, "v_permlane32_swap_b32", 16); merge(1, 3, "v_permlane32_swap_b32", 16); merge(0, 1, "v_permlane16_swap_b32", 32)
    a(f"v_mov_b32 v7, v{Q_[0]}")
    a(f"v_lshlrev_b32 v8, 3, v1"); a(f"v_add_u32 v9, s{sWm}, v8")
    a(f"ds_write_b64 v9, v[6:7]")
    a(f"v_add_u32 v8, 65536, v8"); a(f"v_add_u32 v14, {65536+4*NSL*4096}, v8") if False else None
    a(f"v_add_u32 v14, {4*NSL*4096}, v8")
    st(5)
    vE = 4; vH = 5
    a(f"v_lshlrev_b32 v{vE}, 4, v1")
    a(f"s_lshr_b32 s{sU0}, s{sR}, 3"); a(f"s_lshl_b32 s{sU0}, s{sU0}, 19")
    a(f"s_and_b32 s{sU0+1}, s{sR}, 7"); a(f"s_lshl_b32 s{sU0+1}, s{sU0+1}, 10"); a(f"s_add_u32 s{sU0}, s{sU0}, s{sU0+1}")
    a(f"s_and_b32 s{sU0+1}, s{sW_}, 3"); a(f"s_lshl_b32 s{sU0+1}, s{sU0+1}, 14"); a(f"s_add_u32 s{sU0}, s{sU0}, s{sU0+1}")
    a(f"s_add_u32 s{sU0}, s{sU0}, {E_OFF}")
    P = [140+4*i for i in range(8)]
    a(f"s_cmp_ge_u32 s{sW_}, 4"); a(f"s_cbranch_scc1 {name}_eb")
    a("s_nop 1")
    k = 0
    for hb in range(2):
        for hp in range(2):
            for par in range(2):
                d = P[k % 8]; k += 1; n = "-" if par else ""
                for q in range(4):
                    T = 2*hp + (q >> 1); j = 2*(q & 1)
                    a(f"v_cvt_pk_bf16_f32 v{d+q}, {n}v{A(T,2*hb+par,j)}, {n}v{A(T,2*hb+par,j+1)}")
                a(f"s_add_u32 s{sU0+1}, s{sU0}, {hb*262144 + (3 if par else 0)*65536 + hp*8192}")
                a(f"buffer_store_dwordx4 {vr(d,4)}, v{vE}, s[{S_WS}:{S_WS+3}], s{sU0+1} offen")
    a(f"s_branch {name}_ej")
    a.label(f"{name}_eb")
    a("s_nop 1")
    k = 0
    for hb in range(2):
        for hp in range(2):
            for sg in range(2):
                d = P[k % 8]; k += 1
                for q in range(4):
                    T = 2*hp + (q >> 1); j = 2*(q & 1)
                    neg = " neg_lo:[0,1] neg_hi:[0,1]" if sg else ""
                    a(f"v_pk_add_f32 v[124:125], {vr(A(T,2*hb,j),2)}, {vr(A(T,2*hb+1,j),2)}{neg}")
                    a(f"v_cvt_pk_bf16_f32 v{d+q}, v124, v125")
                a(f"s_add_u32 s{sU0+1}, s{sU0}, {hb*262144 + (1+sg)*65536 + hp*8192}")
                a(f"buffer_store_dwordx4 {vr(d,4)}, v{vE}, s[{S_WS}:{S_WS+3}], s{sU0+1} offen")
    a.label(f"{name}_ej")
    st(6)
    a("s_waitcnt lgkmcnt(0)"); a("s_barrier")
    for i in range(8): a(f"ds_read_b64 {vr(80+2*i,2)}, v{8 if i < 4 else 14} offset:{(i&3)*NSL*4096}")
    a(f"v_and_b32 v6, 15, v1"); a(f"v_lshrrev_b32 v7, 4, v1")
    a(f"v_lshrrev_b32 v9, 1, v6"); a(f"v_and_b32 v9, 2, v9"); a(f"v_xor_b32 v9, v9, v7")
    a(f"v_lshlrev_b32 v{vH}, 6, v6"); a(f"v_lshl_add_u32 v{vH}, v9, 4, v{vH}")
    a(f"s_lshl_b32 s{sU0}, s{sR}, 12"); a(f"s_lshl_b32 s{sU0+1}, s{sW_}, 20"); a(f"s_add_u32 s{sU0}, s{sU0}, s{sU0+1}"); a(f"s_add_u32 s{sU0}, s{sU0}, {H_OFF}")
    a("s_waitcnt lgkmcnt(0)")
    for i in range(4): a(f"v_pk_add_f32 v[{96+2*i}:{97+2*i}], v[{80+4*i}:{81+4*i}], v[{82+4*i}:{83+4*i}]")
    a("v_pk_add_f32 v[96:97], v[96:97], v[98:99]"); a("v_pk_add_f32 v[100:101], v[100:101], v[102:103]")
    a("v_pk_add_f32 v[6:7], v[96:97], v[100:101]")
    a("v_mul_f32 v8, 0x3e000000, v6")
    for i in range(8): a(f"v_sub_f32 v{96+i}, v{80+2*i}, v8")
    a("v_pk_mul_f32 v[10:11], v[96:97], v[96:97]"); a("v_pk_mul_f32 v[12:13], v[98:99], v[98:99]")
    a("v_pk_fma_f32 v[10:11], v[100:101], v[100:101], v[10:11]"); a("v_pk_fma_f32 v[12:13], v[102:103], v[102:103], v[12:13]")
    a("v_pk_add_f32 v[10:11], v[10:11], v[12:13]"); a("v_add_f32 v9, v10, v11")
    a("v_fmac_f32 v7, 0x3c800000, v9")
    a(f"v_mov_b32 v10, {hex(f32bits(1e-5))}")
    a("v_fmac_f32 v10, 0x3b000000, v7")
    a("v_rsq_f32 v10, v10")
    a("v_mul_f32 v6, 0x3b000000, v6")
    a("v_mov_b32 v8, v6"); a("v_mov_b32 v12, v10"); a("s_nop 0")
    a("v_permlane32_swap_b32 v6, v8"); a("v_permlane32_swap_b32 v10, v12")
    a("v_mov_b32 v7, v6"); a("v_mov_b32 v9, v8"); a("v_mov_b32 v11, v10"); a("v_mov_b32 v13, v12")
    a("v_permlane16_swap_b32 v6, v7"); a("v_permlane16_swap_b32 v8, v9"); a("s_nop 0") if False else None
    a("v_permlane16_swap_b32 v10, v11"); a("v_permlane16_swap_b32 v12, v13")
    K = [80, 82, 84, 86]
    for tile in range(4): a(f"v_mul_f32 v{K[tile]}, {hex(f32bits(-LOG2E))}, v{10+tile}")
    for tile in range(4): a(f"v_mul_f32 v{K[tile]+1}, -v{6+tile}, v{K[tile]}")
    st(7)
    D = [96, 100, 104, 108]; kk = 0
    r8 = opts.get("hround", 1)
    if r8: a("s_mov_b32 s60, 0x00040004")
    for tile in range(4):
        k = K[tile]; hb, par = tile >> 1, tile & 1
        for hp in range(2):
            d = D[kk % 4]; kk += 1
            E2 = [112, 114, 116, 118] if False else [6, 8, 10, 12]
            for q in range(4):
                T = 2*hp + (q >> 1); j = 2*(q & 1); r = vr(A(T, tile, j), 2); e = E2[q]
                a(f"v_pk_fma_f32 {r}, {r}, {vr(k,2)}, {vr(k,2)} op_sel:[0,0,1] op_sel_hi:[1,0,1]")
                a(f"v_exp_f32 v{e}, v{A(T,tile,j)}"); a(f"v_exp_f32 v{e+1}, v{A(T,tile,j)+1}")
            for q in range(4):
                e = E2[q]
                a(f"v_pk_add_f32 v[{e}:{e+1}], v[{e}:{e+1}], 1.0 op_sel_hi:[1,0]")
                a(f"v_rcp_f32 v{e}, v{e}"); a(f"v_rcp_f32 v{e+1}, v{e+1}")
            for q in range(4):
                T = 2*hp + (q >> 1); j = 2*(q & 1); r = vr(A(T, tile, j), 2); e = E2[q]
                a(f"v_pk_mul_f32 v[{e}:{e+1}], v[{e}:{e+1}], {r}")
                a(f"v_cvt_pk_f16_f32 v{d+q}, v{e}, v{e+1}")
                if r8: a(f"v_pk_add_u16 v{d+q}, v{d+q}, s60"); a(f"v_and_b32 v{d+q}, 0xfff8fff8, v{d+q}")
            a(f"s_add_u32 s{sU0+1}, s{sU0}, {hp*524288 + par*2048 + hb*1024}")
            a(f"buffer_store_dwordx4 {vr(d,4)}, v{vH}, s[{S_WS}:{S_WS+3}], s{sU0+1} offen")
    st(8)

def xf_touch(a, opts):
    if opts.get("xft", 2) != 1: return
    a(f"s_load_dwordx2 s[{S_F}:{S_F+1}], s[0:1], 0"); a(f"s_mov_b32 s{S_F+2}, {8*MB}"); a(f"s_mov_b32 s{S_F+3}, 0x20000")
    a(f"s_sub_u32 s72, s{sJ}, 16"); a(f"s_lshl_b32 s74, s{sXc}, 4"); a("s_add_u32 s72, s72, s74"); a("s_lshl_b32 s72, s72, 16")
    a(f"s_lshl_b32 s74, s{sW_}, 13"); a("s_add_u32 s72, s72, s74"); a("v_lshlrev_b32 v210, 7, v1")
    a("s_waitcnt lgkmcnt(0)")
    a(f"buffer_load_dword v213, v210, s[{S_F}:{S_F+3}], s72 offen")

def helper_touch(a, name, role, opts):
    mode = opts.get("help", 2)
    if not mode: return
    a(f"s_load_dwordx4 s[64:67], s[0:1], 16")
    a(f"s_sub_u32 s72, s{sJ}, 16")
    a("v_lshlrev_b32 v210, 7, v1")
    a(f"s_lshl_b32 s73, s72, 13")
    a(f"s_mul_i32 s75, s72, 24576"); a(f"s_lshl_b32 s74, s{sW_}, 13"); a("s_add_u32 s75, s75, s74"); a(f"s_add_u32 s75, s75, {131072-8192}")
    a(f"s_lshl_b32 s74, s{sXc}, 4"); a("s_add_u32 s72, s72, s74"); a("s_lshl_b32 s72, s72, 16")
    a(f"s_and_b32 s74, s{sW_}, 3"); a("s_lshl_b32 s74, s74, 14"); a("s_add_u32 s72, s72, s74")
    a("v_and_b32 v211, 3, v1"); a("v_lshrrev_b32 v212, 2, v1"); a("v_lshlrev_b32 v211, 7, v211"); a("v_lshl_add_u32 v211, v212, 10, v211"); a("v_add_u32 v211, 512, v211")
    a("s_waitcnt lgkmcnt(0)")
    a("s_mov_b32 s68, s66"); a("s_mov_b32 s69, s67"); a(f"s_mov_b32 s70, {MB//2}"); a("s_mov_b32 s71, 0x20000")
    a(f"s_mov_b32 s66, {8*MB}"); a("s_mov_b32 s67, 0x20000")
    a(f"s_cmp_lg_u32 s{sW_}, 0"); a(f"s_cbranch_scc1 {name}_h1")
    a("buffer_load_dword v213, v210, s[68:71], s73 offen")
    if mode >= 2: a("s_waitcnt vmcnt(0)")
    a.label(f"{name}_h1")
    if mode >= 2: a("s_barrier")
    a(f"s_cmp_eq_u32 s{sW_}, 0"); a(f"s_cbranch_scc1 {name}_h3")
    a(f"s_cmp_ge_u32 s{sW_}, 4"); a(f"s_cbranch_scc1 {name}_h2")
    a("buffer_load_dword v213, v210, s[68:71], s75 offen")
    a(f"s_branch {name}_h3")
    a.label(f"{name}_h2")
    a("buffer_load_dword v213, v211, s[64:67], s72 offen")
    a.label(f"{name}_h3")
    a(f"s_lshl_b32 s72, s{sXc}, 20")
    a("s_barrier")
    if role == "c":
        a(f"s_sub_u32 s74, s{sJ}, 16"); a("s_lshl_b32 s74, s74, 15"); a("s_add_u32 s72, s72, s74"); a(f"s_lshl_b32 s74, s{sW_}, 12"); a("s_add_u32 s72, s72, s74")
        a("s_mov_b32 exec_hi, 0"); a(f"buffer_load_dword v214, v210, s[{S_X}:{S_X+3}], s72 offen"); a("s_mov_b64 exec, -1")
    else:
        a(f"s_sub_u32 s74, s{sJ}, 28"); a("s_mul_i32 s74, s74, 163840"); a("s_add_u32 s72, s72, s74"); a(f"s_mul_i32 s74, s{sW_}, 20480"); a("s_add_u32 s72, s72, s74")
        a("s_add_u32 s72, s72, 393216")
        a(f"buffer_load_dword v214, v210, s[{S_X}:{S_X+3}], s72 offen"); a("s_add_u32 s72, s72, 8192")
        a(f"buffer_load_dword v215, v210, s[{S_X}:{S_X+3}], s72 offen"); a("s_add_u32 s72, s72, 8192")
        a("s_mov_b32 exec_hi, 0"); a(f"buffer_load_dword v215, v210, s[{S_X}:{S_X+3}], s72 offen"); a("s_mov_b64 exec, -1")
    if mode >= 3: a("s_waitcnt vmcnt(0)")
    if mode >= 2: a("s_barrier")

def gen_c(a, name, st, opts):
    sDi, sNq, sCh, sAo, sBo, sZc, sM = sT, sT+1, sT+2, sT+3, sT+4, sT+5, sT+6
    sU0 = sT+8
    vA = 2
    vB = 5
    vAr = 8
    vBr = 10
    vZr = 12
    vAcc = 16
    vZf = 64
    Af = [72, 96]; Bf = [120 - 0, 0]
    SLOT = 40960
    acc = lambda dj, kt, nt: vr(vAcc + ((dj*2+kt)*2+nt)*4, 4)
    a(f"s_load_dwordx2 s[{S_A}:{S_A+1}], s[0:1], 40")
    a(f"s_load_dwordx2 s[{S_B}:{S_B+1}], s[0:1], 32")
    a(f"s_sub_u32 s{sNq}, s{sJ}, 16"); a(f"s_lshr_b32 s{sDi}, s{sNq}, 2"); a(f"s_and_b32 s{sNq}, s{sNq}, 3")
    a(f"s_mov_b32 s{S_A+2}, {9*MB//2}"); a(f"s_mov_b32 s{S_A+3}, 0x20000")
    a(f"s_mov_b32 s{S_B+2}, {MB//2}"); a(f"s_mov_b32 s{S_B+3}, 0x20000")
    a(f"s_lshl_b32 s{sCh}, s{sNq}, 1"); a(f"s_mul_i32 s{sU0}, s{sDi}, 3"); a(f"s_add_u32 s{sCh}, s{sCh}, s{sU0}"); a(f"s_and_b32 s{sCh}, s{sCh}, 7")
    t0, t1, t2, t3 = 116, 117, 118, 119
    a(f"v_lshrrev_b32 v{t0}, 3, v1"); a(f"v_and_b32 v{t1}, 7, v1"); a(f"v_lshrrev_b32 v{t2}, 4, v1")
    a(f"s_and_b32 s{sU0}, s{sW_}, 1"); a(f"s_lshl_b32 s{sU0}, s{sU0}, 2")
    a(f"v_xor_b32 v{t3}, v{t1}, v{t2}"); a(f"v_xor_b32 v{t3}, s{sU0}, v{t3}")
    a(f"v_lshlrev_b32 v{vA}, 10, v{t0}"); a(f"v_lshl_add_u32 v{vA}, v{t3}, 4, v{vA}")
    a(f"s_mul_i32 s{sU0}, s{sDi}, 1572864"); a(f"s_lshl_b32 s{sU0+1}, s{sXc}, 16"); a(f"s_add_u32 s{sU0}, s{sU0}, s{sU0+1}")
    a(f"s_lshl_b32 s{sU0+1}, s{sW_}, 13"); a(f"s_add_u32 s{sU0}, s{sU0}, s{sU0+1}")
    a(f"v_add_u32 v{vA}, s{sU0}, v{vA}")
    a(f"v_add_u32 v{vA+1}, 524288, v{vA}"); a(f"v_add_u32 v{vA+2}, 1048576, v{vA}")
    a(f"v_and_b32 v{t3}, 15, v1"); a(f"s_and_b32 s{sU0}, s{sW_}, 1"); a(f"s_lshl_b32 s{sU0}, s{sU0}, 3")
    a(f"v_lshlrev_b32 v{t0}, 1, v{t2}"); a(f"v_xor_b32 v{t0}, s{sU0}, v{t0}"); a(f"v_xor_b32 v{t0}, v{t0}, v{t3}")
    a(f"v_lshlrev_b32 v{vB}, 10, v{t2}"); a(f"v_lshl_add_u32 v{vB}, v{t0}, 4, v{vB}")
    a(f"s_lshl_b32 s{sU0}, s{sW_}, 13"); a(f"s_lshl_b32 s{sU0+1}, s{sNq}, 8"); a(f"s_add_u32 s{sU0}, s{sU0}, s{sU0+1}")
    a(f"v_add_u32 v{vB}, s{sU0}, v{vB}"); a(f"v_add_u32 v{vB+1}, 3072, v{vB}")
    a(f"s_lshl_b32 s{sM}, s{sW_}, 10")
    def dma(slot, tag):
        ops = [other(f"s_lshl_b32 s{sAo}, s{sCh}, 7"), other(f"s_lshl_b32 s{sBo}, s{sCh}, 16")]
        for dj in range(3):
            ops += [other(f"s_add_u32 m0, s{sM}, {slot*SLOT+dj*8192}"), other("s_nop 0"),
                    vmem(f"buffer_load_dwordx4 v{vA+dj}, s[{S_A}:{S_A+3}], s{sAo} offen lds", tag)]
        ops += [other(f"s_lshl_b32 s{sU0}, s{sM}, 1"), other(f"s_add_u32 m0, s{sU0}, {slot*SLOT+24576}"), other("s_nop 0")]
        ops += [vmem(f"buffer_load_dwordx4 v{vB+i}, s[{S_B}:{S_B+3}], s{sBo} offen offset:{i*1024} lds", tag) for i in range(2)]
        ops += [other(f"s_add_u32 s{sCh}, s{sCh}, 1"), other(f"s_and_b32 s{sCh}, s{sCh}, 7")]
        return ops
    a(f"s_sub_u32 s{sZc}, s{sXc}, s{sCh}"); a(f"s_and_b32 s{sZc}, s{sZc}, 7")
    a("s_waitcnt lgkmcnt(0)")
    st(1)
    pro = dma(0, "D0") + dma(1, "D1") + dma(2, "D2")
    for op in pro: a(op.render())
    a(f"v_lshrrev_b32 v{t1}, 1, v{t3}"); a(f"v_xor_b32 v{t1}, v{t1}, v{t2}")
    a(f"v_lshlrev_b32 v{vAr}, 7, v{t3}"); a(f"v_lshl_add_u32 v{vAr}, v{t1}, 4, v{vAr}")
    a(f"s_lshr_b32 s{sU0}, s{sW_}, 2"); a(f"s_lshl_b32 s{sU0+1}, s{sU0}, 12"); a(f"v_add_u32 v{vAr}, s{sU0+1}, v{vAr}")
    a(f"v_xor_b32 v{vAr+1}, 64, v{vAr}")
    a(f"v_lshrrev_b32 v{t0}, 2, v{t3}")
    a(f"v_and_b32 v{t1}, 3, v{t3}"); a(f"v_lshlrev_b32 v{t1}, 3, v{t1}"); a(f"v_add_u32 v{t1}, 24576, v{t1}")
    a(f"s_and_b32 s{sU0+1}, s{sW_}, 3"); a(f"s_lshl_b32 s{sU0+1}, s{sU0+1}, 1")
    a(f"v_lshl_add_u32 v{vBr}, v{t2}, 3, v{t0}"); a(f"v_lshl_add_u32 v{vBr}, v{vBr}, 8, v{t1}")
    a(f"v_and_b32 v{vBr+1}, 1, v{t2}"); a(f"v_lshl_add_u32 v{vBr+1}, v{vBr+1}, 2, v{t0}"); a(f"v_xor_b32 v{vBr+1}, s{sU0+1}, v{vBr+1}")
    a(f"v_lshl_add_u32 v{vBr}, v{vBr+1}, 5, v{vBr}"); a(f"v_xor_b32 v{vBr+1}, 32, v{vBr}")
    a(f"v_lshl_add_u32 v{vZr}, v{t2}, 2, v{t0}"); a(f"v_lshl_add_u32 v{vZr}, v{vZr}, 8, v{t1}")
    a(f"s_lshl_b32 s{sU0}, s{sU0}, 13"); a(f"v_add_u32 v{vZr}, s{sU0}, v{vZr}")
    a(f"v_lshrrev_b32 v{vZr+1}, 1, v{t2}"); a(f"v_lshl_add_u32 v{vZr+1}, v{vZr+1}, 2, v{t0}"); a(f"v_xor_b32 v{vZr+1}, s{sU0+1}, v{vZr+1}")
    a(f"v_lshl_add_u32 v{vZr}, v{vZr+1}, 5, v{vZr}"); a(f"v_xor_b32 v{vZr+1}, 32, v{vZr}")
    st(2)
    AF = [72, 96]
    BF = [120, 128]
    def rd(h, tag):
        return [ds(f"ds_read_b64_tr_b16 {vr(BF[h]+4*nt+2*t,2)}, v{vBr+nt} offset:{h*8192+t*1024}", tag) for nt in range(2) for t in range(2)] + \
               [ds(f"ds_read_b128 {vr(AF[h]+4*(dj*2+kt),4)}, v{vAr+h} offset:{dj*8192+kt*2048}", tag) for dj in range(3) for kt in range(2)]
    def mm(h, first):
        return [mfma(f"v_mfma_f32_16x16x32_bf16 {acc(dj,kt,nt)}, {vr(AF[h]+4*(dj*2+kt),4)}, {vr(BF[h]+4*nt,4)}, {'0' if first else acc(dj,kt,nt)}") for dj in range(3) for kt in range(2) for nt in range(2)]
    def zread(c):
        lab = f"{name}_z{c}"
        return [other(f"s_cmp_lg_u32 s{sZc}, {c}"), other(f"s_cbranch_scc1 {lab}")] + \
               [other(f"ds_read_b64_tr_b16 {vr(vZf+4*nt+2*t,2)}, v{vZr+nt} offset:{t*4096}") for nt in range(2) for t in range(2)] + \
               [other("s_waitcnt lgkmcnt(0)"), other(f"{lab}:")]
    seq = [wait(vm="D0"), other("s_barrier")] + rd(0, "r0")
    for c in range(8):
        B = Block(mm(0, c == 0))
        B.fix(-1, wait(lg="r0"))
        for q, op in enumerate(rd(1, "r1")): B.put(q, op)
        seq += B.layout(cap=1, slack=1) + zread(c)
        B = Block(mm(1, False))
        head = [wait(lg="r1")]
        if c < 7:
            head += [wait(vm=f"D{c+1}"), other("s_barrier")]
            step = SLOT if c % 3 < 2 else -2*SLOT
            head += [other(f"v_add_u32 v{r}, {step & 0xffffffff}, v{r}") for r in (vBr, vBr+1, vAr)]
            for q, op in enumerate(rd(0, "r0")): B.put(q*0.5, op)
            for q, r in enumerate((vAr+1, vZr, vZr+1)): B.put(9+q, other(f"v_add_u32 v{r}, {step & 0xffffffff}, v{r}"))
            if c + 3 < 8:
                for q, op in enumerate(dma(c % 3, f"D{c+3}")): B.put(5+q*0.3, op)
        B.fix(-1, head)
        seq += B.layout(cap=2, slack=1)
    resolve([pro, seq])
    nb_ = 0
    for op in merge_waits(seq):
        if op.text == "s_barrier":
            nb_ += 1
            if nb_ == 8: a("s_barrier"); xf_touch(a, opts); continue
        a(op.render())
    st(4)
    A = lambda dj, kt, nt, j: vAcc + ((dj*2+kt)*2+nt)*4 + j
    U1, U2 = 72, 88
    a("s_nop 7")
    a("v_mov_b32 v2, 0"); a("v_mov_b32 v3, 0")
    for kt in range(2):
        for nt in range(2):
            for j in (0, 2):
                o = (kt*2+nt)*4 + j
                g0, g1, g2 = [vr(A(dj, kt, nt, j), 2) for dj in range(3)]
                a(f"v_pk_add_f32 v[4:5], {g0}, {g2}")
                for r in (A(0, kt, nt, j), A(2, kt, nt, j)): a(f"v_max3_f32 v2, abs(v{r}), abs(v{r+1}), v2")
                a(f"v_pk_add_f32 {vr(U1+o,2)}, v[4:5], {g1}")
                a(f"v_pk_add_f32 {vr(U2+o,2)}, v[4:5], {g1} neg_lo:[0,1] neg_hi:[0,1]")
                for r in (U1+o, U2+o): a(f"v_max3_f32 v3, abs(v{r}), abs(v{r+1}), v3")
    a("v_mul_f32 v3, 0.5, v3"); a("v_max_f32 v2, v2, v3")
    for sh in (8, 4, 2, 1):
        a("s_nop 1"); a(f"v_max_f32_dpp v2, v2, v2 row_ror:{sh} row_mask:0xf bank_mask:0xf")
    a("v_mov_b32 v3, v2"); a("s_nop 1"); a("v_permlane32_swap_b32 v2, v3"); a("s_nop 0"); a("v_max_f32 v2, v2, v3")
    a("v_mov_b32 v3, v2"); a("s_nop 1"); a("v_permlane16_swap_b32 v2, v3"); a("s_nop 0"); a("v_max_f32 v2, v2, v3")
    MX = 3*SLOT
    a(f"s_lshl_b32 s{sU0}, s{sW_}, 2"); a(f"s_add_u32 s{sU0}, s{sU0}, {MX}"); a(f"v_mov_b32 v3, s{sU0}")
    a("ds_write_b32 v3, v2"); a(f"v_mov_b32 v3, {MX}")
    a("s_waitcnt lgkmcnt(0)"); a("s_barrier")
    a("ds_read_b128 v[4:7], v3"); a("ds_read_b128 v[8:11], v3 offset:16")
    a(f"s_lshl_b32 s{sU0}, s{sNq}, 1"); a(f"s_bfe_u32 s{sU0+1}, s{sW_}, 0x10001"); a(f"s_add_u32 s{sU0}, s{sU0}, s{sU0+1}")
    a(f"s_lshl_b32 s{sU0+1}, s{sXc}, 1"); a(f"s_lshr_b32 s{sU0+2}, s{sW_}, 2"); a(f"s_add_u32 s{sU0+1}, s{sU0+1}, s{sU0+2}")
    a(f"s_and_b32 s{sU0+2}, s{sW_}, 1"); a(f"s_lshl_b32 s{sU0+2}, s{sU0+2}, 11")
    a(f"s_mul_i32 s{sU0+3}, s{sU0}, 786432"); a(f"s_mul_i32 s{sU0+4}, s{sU0+1}, 12288"); a(f"s_add_u32 s{sU0+3}, s{sU0+3}, s{sU0+4}")
    a(f"s_lshl_b32 s{sU0+4}, s{sDi}, 12"); a(f"s_add_u32 s{sU0+3}, s{sU0+3}, s{sU0+4}"); a(f"s_add_u32 s{sU0+3}, s{sU0+3}, s{sU0+2}")
    a(f"s_add_u32 s{sU0+3}, s{sU0+3}, {U_OFF}")
    a(f"s_lshl_b32 s{sU0+4}, s{sU0}, 16"); a(f"s_lshl_b32 s{sU0+5}, s{sU0+1}, 12"); a(f"s_add_u32 s{sU0+4}, s{sU0+4}, s{sU0+5}")
    a(f"s_add_u32 s{sU0+4}, s{sU0+4}, s{sU0+2}"); a(f"s_add_u32 s{sU0+4}, s{sU0+4}, {Z_OFF}")
    a("v_lshlrev_b32 v12, 4, v1")
    a("s_waitcnt lgkmcnt(0)")
    a("v_max3_f32 v4, v4, v5, v6"); a("v_max3_f32 v4, v4, v7, v8"); a("v_max3_f32 v4, v4, v9, v10"); a("v_max_f32 v4, v4, v11")
    a("s_nop 0"); a(f"v_readfirstlane_b32 s{sU0+6}, v4"); a("s_nop 3")
    a(f"s_lshr_b32 s{sU0+6}, s{sU0+6}, 23")
    a(f"s_sub_u32 s{sU0+7}, 121, s{sU0+6}"); a(f"s_and_b32 s{sU0+7}, s{sU0+7}, 7")
    a(f"s_sub_u32 s{sU0+6}, 267, s{sU0+6}"); a(f"s_sub_u32 s{sU0+6}, s{sU0+6}, s{sU0+7}")
    a(f"s_max_u32 s{sU0+6}, s{sU0+6}, 18"); a(f"s_min_u32 s{sU0+6}, s{sU0+6}, 186")
    a(f"s_lshl_b32 s60, s{sU0+6}, 23"); a("s_mov_b32 s62, 0x00040004")
    a(f"v_mov_b32 v6, {hex(f32bits(-1.0/LOG2E))}"); a("v_mul_f32 v6, s60, v6"); a("v_mul_f32 v8, 0.5, v6")
    D = [104, 108, 112, 116]; kk = 0
    for p in range(4):
        for nt in range(2):
            d = D[kk % 4]; kk += 1
            for q in range(4):
                kt, j = q >> 1, 2*(q & 1)
                r = [A(0, kt, nt, j), U1+(kt*2+nt)*4+j, U2+(kt*2+nt)*4+j, A(2, kt, nt, j)][p]
                a(f"v_pk_mul_f32 v[4:5], {vr(r,2)}, v[{8 if p in (1, 2) else 6}:{9 if p in (1, 2) else 7}] op_sel_hi:[1,0]")
                a(f"v_cvt_pk_f16_f32 v{d+q}, v4, v5")
                if opts.get("wround", 1): a(f"v_pk_add_u16 v{d+q}, v{d+q}, s62"); a(f"v_and_b32 v{d+q}, 0xfff8fff8, v{d+q}")
            a(f"s_add_u32 s{sU0+5}, s{sU0+3}, {p*196608}")
            a(f"buffer_store_dwordx4 {vr(d,4)}, v12, s[{S_WS}:{S_WS+3}], s{sU0+5} offen offset:{nt*1024}")
    a(f"s_lshl_b32 s{sU0+5}, s{sNq}, 5"); a(f"s_lshl_b32 s{sU0+6}, s{sDi}, 3"); a(f"s_add_u32 s{sU0+5}, s{sU0+5}, s{sU0+6}")
    a(f"s_add_u32 s{sU0+5}, s{sU0+5}, s{sXc}"); a(f"s_lshl_b32 s{sU0+5}, s{sU0+5}, 2")
    a("v_mov_b32 v4, s60"); a("v_mov_b32 v5, 0")
    a(f"s_cmp_lg_u32 s{sW_}, 0"); a(f"s_cbranch_scc1 {name}_ns")
    a("s_mov_b64 exec, 1"); a(f"buffer_store_dword v4, v5, s[{S_WS}:{S_WS+3}], s{sU0+5} offen offset:{SCL_OFF}"); a("s_mov_b64 exec, -1")
    a.label(f"{name}_ns")
    a(f"s_cmp_lg_u32 s{sDi}, 1"); a(f"s_cbranch_scc1 {name}_nz")
    a(f"s_cmp_ge_u32 s{sXc}, 4"); a(f"s_cselect_b32 s61, 0x800000, 0"); a("s_sub_u32 s60, s60, s61")
    for i in range(8):
        a(f"v_lshlrev_b32 v4, 16, v{vZf+i}"); a(f"v_and_b32 v5, 0xffff0000, v{vZf+i}")
        a("v_mul_f32 v4, s60, v4"); a("v_mul_f32 v5, s60, v5")
        a(f"v_cvt_pk_bf16_f32 v{vZf+i}, v4, v5")
    for nt in range(2): a(f"buffer_store_dwordx4 {vr(vZf+4*nt,4)}, v12, s[{S_WS}:{S_WS+3}], s{sU0+4} offen offset:{nt*1024}")
    a.label(f"{name}_nz")
    st(8)

if __name__ == "__main__":
    import sys
    import k2
    opts = {}; out = "full.s"
    for x in sys.argv[1:]:
        if x.endswith(".s"): out = x
        elif "=" in x:
            k, v = x.split("="); opts[k] = float(v) if "." in v else int(v)
    stamp = 1 if ("stamp" in sys.argv or "stamp2" in sys.argv) else 0
    a = Asm()
    a("; @launch kernel=cn_k1_kernel grid=(256,1,1) block=(512,1,1) lds=163840")
    a("; @launch kernel=cn_k2_kernel grid=(256,1,1) block=(256,1,1) lds=131072")
    a('.amdgcn_target "amdgcn-amd-amdhsa--gfx950"')
    gen_k1(a, "cn_k1_kernel", stamp=stamp, opts=opts)
    o2 = dict(lead=48, nv0=3, npre=4); o2.update(opts)
    opts.setdefault("st1", 1); opts.setdefault("st2", 1)
    k2.gen_k2(a, "cn_k2_kernel", stamp=(2 if "stamp2" in sys.argv else stamp), opts=o2)
    txt = a.text()
    pol1 = {0: "", 1: " sc1", 2: " sc0 sc1", 3: " nt", 4: " sc1 nt"}
    lines = []; ink2 = False
    for l in txt.split("\n"):
        if l.startswith("cn_k2_kernel:"): ink2 = True
        if l.startswith("buffer_store_dwordx4"): l += pol1[opts.get("st2" if ink2 else "st1", 0)]
        lines.append(l)
    open(out, "w").write("\n".join(lines))
```

```python
from asmlib import *
from sched import *
from layouts import *

TILE = 21760
ROWB = 2176
S_H, S_WS, S_XF, S_OUT = 4, 8, 12, 16
sU, sE, sZ, sHA, sHB, sW, sCnt, sSgn = 20, 21, 22, 23, 24, 25, 26, 27
sInv = 28
sMask = 30
sO = 32
sP, sNB, sHBk, sR0 = 36, 37, 38, 39
sScl = 40
sT = 64
sFix = 80
sNinv = 82
vL = 1
vD = 8
vX, vY = 14, 15
vVA, vVB = 16, 56
vRaw = 96
vZ = 120
vXF = 136
vXU = 168
vOut = 232
vEW = 233
vER = 250
vT = 238
vSc = 254
aU, aE = 128, 224

def acc(o, f): return ar((o*4+f)*4, 4)

def gen_k2(a, name, stamp=False, opts=None):
    opts = opts or {}
    kernel_begin(a, name)
    a(f"s_cmp_ge_u32 s2, 256")
    a(f"s_cbranch_scc1 {name}_end")
    def st(k, dyn=None):
        if stamp == 3:
            if k == 0: a("s_memrealtime s[84:85]")
            if k == 16: a("s_memrealtime s[86:87]"); a("s_waitcnt lgkmcnt(0)"); a("v_writelane_b32 v7, s84, 0"); a("v_writelane_b32 v7, s86, 16")
            return
        if not stamp: return
        a("s_memrealtime s[84:85]"); a("s_memtime s[86:87]"); a("s_waitcnt lgkmcnt(0)")
        if dyn is None:
            a(f"v_writelane_b32 v7, s84, {k}"); a(f"v_writelane_b32 v237, s86, {k}")
        else:
            a(f"s_sub_u32 s88, {k}, s{dyn}"); a("s_lshl_b64 exec, 1, s88"); a("v_mov_b32 v7, s84"); a("v_mov_b32 v237, s86"); a("s_mov_b64 exec, -1")
    st(0)
    a(f"s_load_dwordx2 s[{S_XF}:{S_XF+1}], s[0:1], 0")
    a(f"s_load_dwordx2 s[{S_OUT}:{S_OUT+1}], s[0:1], 48")
    a(f"s_load_dwordx2 s[{S_WS}:{S_WS+1}], s[0:1], 64")
    if opts.get("icw2", 1):
        a(f"s_getpc_b64 s[{sT+4}:{sT+5}]")
        a.label(f"{name}_pc")
        a(f"v_lshlrev_b32 v{vT}, 7, v0"); a(f"v_cmp_gt_u32 vcc, {name}_end-{name}_pc, v{vT}")
        a(f"s_and_saveexec_b64 s[{sT+6}:{sT+7}], vcc"); a(f"s_cbranch_execz {name}_nic")
        a(f"global_load_dword v{vXU}, v{vT}, s[{sT+4}:{sT+5}]")
        a.label(f"{name}_nic")
        a(f"s_mov_b64 exec, s[{sT+6}:{sT+7}]")
    a(f"v_lshrrev_b32 v{vT}, 6, v0")
    a(f"s_and_b32 s{sT}, s2, 7")
    a(f"v_readfirstlane_b32 s{sP}, v{vT}")
    a(f"s_lshr_b32 s{sT+1}, s2, 3")
    a(f"s_and_b32 s{sNB}, s{sT}, 1")
    a(f"s_lshl_b32 s{sNB}, s{sNB}, 2")
    a(f"s_and_b32 s{sT+2}, s{sT+1}, 3")
    a(f"s_or_b32 s{sNB}, s{sNB}, s{sT+2}")
    a(f"s_bfe_u32 s{sHBk}, s{sT+1}, 0x10002")
    a(f"s_lshr_b32 s{sT+2}, s{sT+1}, 3")
    a(f"s_lshr_b32 s{sT+3}, s{sT}, 1")
    a(f"s_lshl_b32 s{sT+3}, s{sT+3}, 2")
    a(f"s_add_u32 s{sT+3}, s{sT+3}, s{sT+2}")
    a(f"s_lshl_b32 s{sR0}, s{sT+3}, 3")
    a(f"v_and_b32 v{vT+1}, 63, v0")
    a(f"v_lshlrev_b32 v{vL}, 4, v{vT+1}")
    a(f"s_mul_i32 s{sT+4}, s{sP}, 340")
    a(f"s_lshl_b32 s{sT+8}, s{sR0}, 12"); a(f"s_lshl_b32 s{sT+5}, s{sHBk}, 10"); a(f"s_add_u32 s{sT+8}, s{sT+8}, s{sT+5}")
    a(f"s_lshl_b32 s{sT+5}, s{sHBk}, 2"); a(f"s_sub_u32 s{sT+5}, 68, s{sT+5}")
    a(f"s_and_b32 s{sT+6}, s{sR0}, 63")
    a(f"s_cmp_eq_u32 s{sT+6}, 0"); a(f"s_cselect_b32 s{sT+9}, 136, 0")
    a(f"s_cmp_eq_u32 s{sT+6}, 56"); a(f"s_movk_i32 s{sT+6}, 1400"); a(f"s_cselect_b32 s{sT+6}, 1224, s{sT+6}")
    a(f"s_sub_u32 s{sT+6}, s{sT+6}, s{sT+9}")
    a(f"s_movk_i32 s{sT+7}, 964"); a(f"s_movk_i32 s{sT+12}, 896"); a(f"s_movk_i32 s{sT+13}, -136")
    a(f"v_add_u32 v{vT+2}, s{sT+4}, v{vT+1}")
    a(f"v_mov_b32 v{vT+8}, 0x40000000")
    for q in range(1410): assert (q*964) >> 16 == q // 68
    def dma_off(j):
        q, z, r, o, t1, t2 = vT+2, vT+3, vT+4, vT+5, vT+6, vT+7
        if j: a(f"v_add_u32 v{q}, 64, v{q}")
        a(f"v_mul_u32_u24 v{z}, s{sT+7}, v{q}")
        a(f"v_lshl_add_u32 v{o}, v{q}, 4, s{sT+8}")
        a(f"v_lshrrev_b32 v{r}, 17, v{z}"); a(f"v_lshrrev_b32 v{z}, 16, v{z}")
        a(f"v_subrev_u32 v{t2}, s{sT+9}, v{q}")
        a(f"v_mad_i32_i24 v{t1}, v{r}, s{sT+13}, v{q}")
        a(f"v_cmp_gt_u32 s[{sT+10}:{sT+11}], s{sT+6}, v{t2}")
        a(f"v_subrev_u32 v{t1}, s{sT+5}, v{t1}")
        a(f"v_mad_u32_u24 v{o}, v{z}, s{sT+12}, v{o}")
        a(f"v_cmp_le_u32 vcc, 4, v{t1}")
        a(f"v_lshl_add_u32 v{o}, v{r}, 7, v{o}")
        if j in (1, 2, 3): a(f"s_sub_u32 s{sT+8}, s{sT+8}, 1024") if False else None
        a(f"s_and_b64 vcc, vcc, s[{sT+10}:{sT+11}]")
        if j & 3: a(f"v_subrev_u32 v{o}, {(j&3)*1024}, v{o}")
        a(f"v_cndmask_b32 v{vD+j}, v{vT+8}, v{o}, vcc")
    for j in range(6): dma_off(j)
    for j in range(1, 6): a(f"v_add_u32 v{vL+j}, {4096*j}, v{vL}")
    a(f"s_lshl_b32 s{sT+4}, s{sNB}, 2"); a(f"s_add_u32 s{sT+4}, s{sT+4}, s{sP}")
    a(f"s_mul_i32 s{sU}, s{sT+4}, 196608"); a(f"s_add_u32 s{sU}, s{sU}, {U_OFF}")
    a(f"s_lshl_b32 s{sT+4}, s{sT+3}, 1"); a(f"s_add_u32 s{sT+4}, s{sT+4}, s{sHBk}")
    a(f"s_lshl_b32 s{sT+4}, s{sT+4}, 2"); a(f"s_add_u32 s{sT+4}, s{sT+4}, s{sP}")
    a(f"s_lshl_b32 s{sE}, s{sT+4}, 16"); a(f"s_add_u32 s{sE}, s{sE}, {E_OFF}")
    a(f"s_add_u32 s{sT+4}, s{sP}, 1"); a(f"s_bfe_u32 s{sT+4}, s{sT+4}, 0x10001")
    a(f"s_lshl_b32 s{sT+4}, s{sT+4}, 15"); a(f"s_lshl_b32 s{sZ}, s{sNB}, 16")
    a(f"s_add_u32 s{sZ}, s{sZ}, s{sT+4}"); a(f"s_add_u32 s{sZ}, s{sZ}, {Z_OFF}")
    a(f"s_mul_i32 s{sW}, s{sP}, 5440"); a(f"s_add_u32 s{sW}, s{sW}, 0x10000")
    a(f"s_mov_b32 s{sMask}, 0xfffff"); a(f"s_mov_b32 s{sMask+1}, 0")
    a(f"s_mov_b64 s[{sFix}:{sFix+1}], 0")
    a("s_waitcnt lgkmcnt(0)")
    st(1)
    a(f"s_add_u32 s{S_H}, s{S_WS}, {H_OFF-4096}"); a(f"s_addc_u32 s{S_H+1}, s{S_WS+1}, 0")
    a(f"s_mov_b32 s{S_H+2}, {8*MB+4096}"); a(f"s_mov_b32 s{S_H+3}, 0x20000")
    a(f"s_mov_b32 s{S_WS+2}, 0x10000000"); a(f"s_mov_b32 s{S_WS+3}, 0x20000")
    a(f"s_mov_b32 s{S_XF+2}, {8*MB}"); a(f"s_mov_b32 s{S_XF+3}, 0x20000")
    a(f"s_mov_b32 s{S_OUT+2}, {8*MB}"); a(f"s_mov_b32 s{S_OUT+3}, 0x20000")
    a(f"s_lshr_b32 s{sScl}, s{sNB}, 1"); a(f"s_lshl_b32 s{sScl}, s{sScl}, 7"); a(f"s_add_u32 s{sScl}, s{sScl}, {SCL_OFF}")
    a(f"v_min_u32 v{vSc}, 23, v{vT+1}"); a(f"v_lshlrev_b32 v{vSc}, 2, v{vSc}")

    def dma_ops(j, soff, m0const, tag):
        ops = []
        if j in (0, 4): ops.append([other(f"s_add_u32 m0, s{sW}, {m0const + (4096 if j == 4 else 0)}")])
        ld = vmem(f"buffer_load_dwordx4 v{vD+j}, s[{S_H}:{S_H+3}], {soff} offen offset:{(j&3)*1024} lds", tag)
        if j == 5:
            ops.append([other(f"s_mov_b64 exec, s[{sMask}:{sMask+1}]"), ld, other("s_mov_b64 exec, -1")])
        else: ops.append([ld])
        return ops
    def u_load(X, k):
        kk = X*12 + k
        return vmem(f"buffer_load_dwordx4 {ar(aU+4*kk,4)}, v{vL+kk//4}, s[{S_WS}:{S_WS+3}], s{sU} offen offset:{(kk%4)*1024}", f"U{kk}")
    def e_load(o):
        return vmem(f"buffer_load_dwordx4 {ar(aE+4*o,4)}, v{vL+o//4}, s[{S_WS}:{S_WS+3}], s{sE} offen offset:{(o%4)*1024}", f"E{o}")
    def z_load(f):
        return vmem(f"buffer_load_dwordx4 {vr(vZ+4*f,4)}, v{vL}, s[{S_WS}:{S_WS+3}], s{sZ} offen offset:{f*1024}", f"Z{f}")
    def v_row(dst, r, half, k):
        rw = vRaw + 8*(k % 3)
        off = half*TILE + r*ROWB
        rd = [ds(f"ds_read_b128 {vr(rw,4)}, v{vX} offset:{off}", f"Ra{k%3}"), ds(f"ds_read_b128 {vr(rw+4,4)}, v{vY} offset:{off}", f"Rb{k%3}")]
        pk = [other(f"v_pk_fma_f16 v{dst+4*r+i}, v{rw+4+i}, s{sSgn}, v{rw+i}") for i in range(4)]
        return rd, wait(lg=f"Rb{k%3}"), pk
    def conv(X, rowmajor=False):
        V = vVA if X == 0 else vVB
        out = []
        order = [(di, f, o) for di in range(3) for f in range(4) for o in range(8)] if not rowmajor else \
                [(di, f, o) for o in range(8) for di in range(3) for f in range(4)]
        for di, f, o in order:
            out.append(mfma(f"v_mfma_f32_16x16x32_f16 {acc(o,f)}, {ar(aU+4*(X*12+di*4+f),4)}, {vr(V+4*(o+di),4)}, {acc(o,f)}"))
        return out
    def bpart():
        return [mfma(f"v_mfma_f32_16x16x32_bf16 {acc(o,f)}, {vr(vZ+4*f,4)}, {ar(aE+4*o,4)}, {acc(o,f)}") for f in range(4) for o in range(8)]
    def place_v(B, dst, half, lo, hi, k0):
        step = (hi - lo) / 10.0
        for r in range(10):
            rd, w, pk = v_row(dst, r, half, k0 + r)
            p = lo + r*step
            B.put(p, rd[0]); B.put(p+1, rd[1])
            lat = opts.get("lds_lat", 9)
            B.put(p+lat, [w, pk[0]])
            for i in range(1, 4): B.put(p+lat+i, pk[i])

    NM = 224
    LEAD = opts.get("lead", 64)
    ug = opts.get("ugroup", 2)
    def edf_items():
        it = []
        for j in range(6): it.append((0, ("HA", j)))
        for k in range(12): it.append((8*(k//ug*ug), ("U", k)))
        for j in range(6): it.append((96, ("HB", j)))
        for k in range(12): it.append((96 + 8*(k//ug*ug), ("U", 12+k)))
        for o in range(8): it.append((192, ("E", o)))
        for f in range(4): it.append((192 + 8*f, ("Z", f)))
        it.sort(key=lambda x: x[0])
        sp = NM / len(it)
        off = min(d - i*sp for i, (d, _) in enumerate(it)) - LEAD
        return [(off + i*sp, w) for i, (d, w) in enumerate(it)]
    def item_ops(w):
        k, j = w
        if k == "HA":
            g = dma_ops(j, f"s{sHA}", 0, f"HA{j}")
            if j == 0: g = [[other(f"s_xor_b32 s{sW}, s{sW}, 0x10000")]] + g
            if j == 5: g.append([other(f"s_add_u32 s{sHA}, s{sHA}, {1*MB}")])
        elif k == "HB":
            g = dma_ops(j, f"s{sHB}", TILE, f"HB{j}")
            if j == 5: g.append([other(f"s_add_u32 s{sHB}, s{sHB}, {1*MB}")])
        elif k == "U":
            g = [[u_load(j // 12, j % 12)]]
            if j == 23: g.append([other(f"s_add_u32 s{sU}, s{sU}, 24576")])
        elif k == "E":
            g = [[e_load(j)]]
            if j == 7: g.append([other(f"s_add_u32 s{sE}, s{sE}, 8192")])
        else:
            g = [[z_load(j)]]
            if j == 3: g.append([other(f"s_add_u32 s{sZ}, s{sZ}, 4096")])
        return g
    ITEMS = edf_items()
    WRAP = [w for p, w in ITEMS if p < 0]
    INIT = [w for p, w in ITEMS if p >= 0]

    def body(final):
        if not final:
            B = Block(conv(0) + conv(1) + bpart())
            for k in range(0, 12, ug):
                if k: B.fix(8*k-1, wait(vm=f"U{k+ug-1}")); B.fix(96+8*k-1, wait(vm=f"U{12+k+ug-1}"))
            B.fix(-1, [wait(vm=["HA5", f"U{ug-1}"]), other("s_barrier")])
            B.fix(95, [wait(vm=["HB5", f"U{12+ug-1}"]), other("s_barrier")])
            B.fix(191, wait(vm=["E7", "Z0"]))
            for f in range(1, 4): B.fix(191+8*f, wait(vm=f"Z{f}"))
            place_v(B, vVB, 0, 0, 84, 0)
            place_v(B, vVA, 1, 96, 210, 10)
            for p, w in ITEMS:
                for i, ops in enumerate(item_ops(w)): B.put((p % NM) + 0.9*i if (p % NM) + 0.9*i < NM-0.2 else NM-0.2, ops)
            B.put(220, other(f"v_xor_b32 v{vX}, 0x10000, v{vX}"))
            B.put(221, other(f"v_xor_b32 v{vY}, 0x10000, v{vY}"))
            B.put(223.9, other(f"s_sub_u32 s{sCnt}, s{sCnt}, 1"))
        else:
            cA = conv(0); cAr = conv(0, rowmajor=True); cB = conv(1, rowmajor=True)
            tail = []
            for o in range(8): tail += cAr[12*o+8:12*o+12] + cB[12*o:12*o+12]
            B = Block(cA[:64] + tail)
            for k in range(ug, 8, ug): B.fix(8*k-1, wait(vm=f"U{k+ug-1}"))
            B.fix(-1, [wait(vm=["HA5", f"U{ug-1}"]), other("s_barrier")])
            rest = [w for w in INIT if w[0] == "U"]
            assert all(w[1] >= 8 for w in rest)
            sp = opts.get("fin_sp", 3.5)
            for i, w in enumerate(rest): B.put(1 + i*sp, item_ops(w)[0])
            for d in range(4): B.fix(63+4*d, wait(vm=f"U{11+4*d}"))
            place_v(B, vVB, 0, 0, opts.get("fin_vhi", 92), 0)
            x0 = 1 + len(rest)*sp
            for i in range(8):
                B.put(x0 + 4*i, vmem(f"buffer_load_dwordx4 {vr(vXF+4*i,4)}, v{vOut}, s[{S_XF}:{S_XF+3}], s{sO+(i>>1)} offen offset:{(i&1)*1024}", f"XF{i}"))
            for o in range(7):
                for f in range(4): B.put(64+16*(o+1)+5+f*3, ex_write(o, f))
            hb = [f"HB{j}" for k, j in WRAP if k == "HB"][-1:]
            NH = opts.get("nhid", 2)
            b = [64 + 32*(ph+1) + 18 for ph in range(NH)]
            for ph in range(NH):
                B.put(b[ph], [wait(lg=f"W{2*ph+1}", vm=(hb if ph == 0 and hb else None)), other("s_barrier")])
            allops = [(ph, op) for ph in range(NH) for op in phase_ops(ph, False)]
            if NH == 0: B.put(100, [wait(vm=hb), other("s_barrier")] if hb else [other("s_barrier")])
            pos = 0
            for i, (ph, op) in enumerate(allops):
                pos = max(pos, b[ph] + 0.5)
                B.put(pos, op)
                pos += (191.0 - b[0]) / len(allops)
            NU = opts.get("unp", 0)
            if NU:
                for ph in range(NH, 4):
                    for i in range(8):
                        k = (ph-NH)*8 + i; p = NU + k*(190-NU)/(8*(4-NH))
                        ops = [other(f"v_lshlrev_b32 v{vXU+16*ph+2*i}, 16, v{vXF+8*ph+i}")]
                        if i == 0: ops = [wait(vm=f"XF{2*ph+1}")] + ops
                        B.put(p, ops); B.put(p+0.5, other(f"v_and_b32 v{vXU+16*ph+2*i+1}, 0xffff0000, v{vXF+8*ph+i}"))
        seq = B.layout(cap=1, slack=opts.get("slack", 3), capf=(lambda p: 2 if p >= 114 else 1) if final and opts.get("nhid", 2) else None)
        return seq, B
    def ex_write(o, f):
        return ds(f"ds_write_b128 v{vEW + (f&1) + 2*(o>>2)}, {acc(o,f)} offset:{(o&3)*16384 + (f>>1)*128}", f"W{o}")
    def phase_reads(ph, M):
        return [ds(f"ds_read_b128 {vr(M+8*src+4*e,4)}, v{vER+e+2*(ph>>1)} offset:{(ph&1)*32768+src*4096}", f"X{ph}") for src in range(4) for e in range(2)]
    def phase_ops(ph, packed, M=None, reads=True):
        pre = packed and opts.get("unp", 0)
        if M is None: M = vXU
        ops = phase_reads(ph, M) if reads else []
        y0 = vZ + 8*(ph & 1); y1 = y0 + 4
        for q in range(4):
            m0, m1, m2, m3 = [M+8*s_+2*q for s_ in range(4)]
            t, u = vT + 4*(q & 1), vT + 4*(q & 1) + 2
            x0_, x1_ = vXF + 8*ph + q, vXF + 8*ph + 4 + q
            unp = [other(f"v_lshlrev_b32 v{t}, 16, v{x0_}"), other(f"v_and_b32 v{t+1}, 0xffff0000, v{x0_}"),
                   other(f"v_lshlrev_b32 v{u}, 16, v{x1_}"), other(f"v_and_b32 v{u+1}, 0xffff0000, v{x1_}")]
            if packed:
                xa, xb = (vr(vXU+16*ph+2*q, 2), vr(vXU+16*ph+8+2*q, 2)) if pre else (vr(t, 2), vr(u, 2))
                ng = " neg_lo:[1,0,0] neg_hi:[1,0,0]"
                grp = ([] if pre else unp) + \
                      [other(f"v_pk_add_f32 {vr(m0,2)}, {vr(m0,2)}, {vr(m1,2)}"),
                       other(f"v_pk_add_f32 {vr(m3,2)}, {vr(m1,2)}, {vr(m3,2)} neg_lo:[0,1] neg_hi:[0,1]"),
                       other(f"v_pk_add_f32 {vr(m0,2)}, {vr(m0,2)}, {vr(m2,2)}"),
                       other(f"v_pk_add_f32 {vr(m3,2)}, {vr(m3,2)}, {vr(m2,2)} neg_lo:[0,1] neg_hi:[0,1]"),
                       other(f"v_pk_fma_f32 {vr(t,2)}, {vr(m0,2)}, s[{sInv}:{sInv+1}], {xa}"),
                       other(f"v_pk_fma_f32 {vr(u,2)}, {vr(m3,2)}, s[{sInv}:{sInv+1}], {xb}")]
                wl = 0 if pre else 4
            else:
                grp = unp + [other(f"v_fmac_f32 v{d+i}, s{sc}, v{m+i}") for d, sc, m in
                             ((t, sInv, m0), (u, sInv, m1), (t, sInv, m1), (u, sNinv, m2), (t, sInv, m2), (u, sNinv, m3)) for i in range(2)]
                wl = 4
            grp += [other(f"v_cvt_pk_bf16_f32 v{y0+q}, v{t}, v{t+1}"), other(f"v_cvt_pk_bf16_f32 v{y1+q}, v{u}, v{u+1}")]
            if q == 0:
                grp.insert(wl, wait(lg=f"X{ph}"))
                if not pre: grp.insert(0, wait(vm=f"XF{2*ph+1}"))
            ops += grp
        ops += [vmem(f"buffer_store_dwordx4 {vr(y0,4)}, v{vOut}, s[{S_OUT}:{S_OUT+3}], s{sO+ph} offen", "ST"),
                vmem(f"buffer_store_dwordx4 {vr(y1,4)}, v{vOut}, s[{S_OUT}:{S_OUT+3}], s{sO+ph} offen offset:1024", "ST")]
        return ops

    loop_seq, LB = body(False)
    fin_seq, FB = body(True)
    def flat(groups):
        out = []
        for ops in groups:
            out += ops
            if " m0," in (ops[-1].text or ""): out.append(other("s_nop 0"))
        return out
    pro = []
    a.label(f"{name}_reload")
    pro.append(other(f"s_mov_b32 s{sHA}, 0"))
    for j in range(6): pro += flat(dma_ops(j, f"s{sHA}", 0, f"H0{j}"))
    pro.append(vmem(f"buffer_load_dword v{vSc+1}, v{vSc}, s[{S_WS}:{S_WS+3}], s{sScl} offen", "SC"))
    pro.append(other(f"s_mov_b32 s{sHA}, {MB//2}"))
    pro.append(other(f"s_mov_b32 s{sHB}, {MB}"))
    ez = [("E", o) for o in range(8)] + [("Z", f) for f in range(4)]
    ez = [ez[8]] + ez[:8] + ez[9:]
    npre = opts.get("npre", 2)
    for w in ez[:npre]: pro += flat(item_ops(w))
    rows = [v_row(vVA, r, 0, r) for r in range(10)]
    pro2 = [wait(vm="SC"), other("s_barrier"),
            other(f"v_readfirstlane_b32 s{sT}, v{vSc+1}"), other("s_nop 1"),
            other(f"v_cmp_ne_u32 vcc, s{sT}, v{vSc+1}"),
            other(f"s_sub_u32 s{sInv}, 0x7f000000, s{sT}"), other(f"s_mov_b32 s{sInv+1}, s{sInv}"), other(f"s_xor_b32 s{sNinv}, s{sInv}, 0x80000000"),
            other(f"s_andn2_b64 vcc, vcc, s[{sFix}:{sFix+1}]"),
            other(f"s_cbranch_scc1 {name}_fix")]
    nv0 = opts.get("nv0", 6)
    pro2 += rows[0][0] + rows[1][0] + rows[2][0]
    rem = ez[npre:]
    for r in range(nv0):
        n0, n1 = r*len(rem)//nv0, (r+1)*len(rem)//nv0
        for w in rem[n0:n1]: pro2 += flat(item_ops(w))
        pro2 += [rows[r][1]] + rows[r][2]
        if r + 3 < 10: pro2 += rows[r+3][0]
    B0 = Block([mfma(f"v_mfma_f32_16x16x32_bf16 {acc(o,f)}, {vr(vZ+4*f,4)}, {ar(aE+4*o,4)}, 0") for f in range(4) for o in range(8)])
    B0.fix(-1, wait(vm=["E7", "Z0"]))
    for f in range(1, 4): B0.fix(8*f-1, wait(vm=f"Z{f}"))
    for r in range(nv0, 10):
        p = (r-nv0)*26.0/(10-nv0)
        B0.put(p, [rows[r][1], rows[r][2][0]])
        for i in range(1, 4): B0.put(p+i, rows[r][2][i])
        if r + 3 < 10:
            for i in range(2): B0.put(p+4+i, rows[r+3][0][i])
    for i, w in enumerate(WRAP):
        for k, ops in enumerate(item_ops(w)): B0.put(min(i*31.0/len(WRAP) + 0.3*k, 31.5), ops)
    B0.put(31.6, [other(f"v_xor_b32 v{vX}, 0x10000, v{vX}"), other(f"v_xor_b32 v{vY}, 0x10000, v{vY}")])
    pro2 += B0.layout(cap=2, slack=1)
    epi = [other("s_nop 4")]
    for f in range(4): epi.append(ex_write(7, f))
    epi += [wait(lg="ALL"), other("s_barrier")]
    NH = opts.get("nhid", 2); MS = [vVA, vVA+32]
    epi += phase_reads(NH, MS[NH & 1])
    for ph in range(NH, 4):
        ops = phase_ops(ph, True, MS[ph & 1], reads=False)
        k = [i for i, op in enumerate(ops) if op.kind == "wait" and op.lg is not None][0] + 1
        epi += ops[:k] + (phase_reads(ph+1, MS[(ph+1) & 1]) if ph < 3 else []) + ops[k:]
    resolve([pro, pro2, loop_seq, loop_seq, loop_seq, fin_seq, epi])
    def fix_haz(seq):
        out = []
        for op in seq:
            if out and op.kind == "vmem" and op.text.endswith("lds") and out[-1].kind == "x" and " m0," in out[-1].text:
                out.append(other("s_nop 0"))
            out.append(op)
        return out
    loop_seq = fix_haz(loop_seq); pro2 = fix_haz(pro2)
    for op in pro: a(op.render())
    st(2)
    t_, g_ = vT, vT+1
    a(f"v_and_b32 v{t_}, 15, v0"); a(f"v_bfe_u32 v{g_}, v0, 4, 2")
    a(f"s_and_b32 s{sT}, s{sP}, 1"); a(f"s_xor_b32 s{sT}, s{sT}, 1")
    a(f"s_cmp_eq_u32 s{sP}, 2"); a(f"s_cselect_b32 s{sT+1}, 1, 0"); a(f"s_cselect_b32 s{sT+3}, 0, 1")
    a(f"s_cmp_lt_u32 s{sP}, 2"); a(f"s_cselect_b32 s{sT+2}, 1, 0")
    a(f"s_cmp_eq_u32 s{sP}, 1"); a(f"s_mov_b32 s{sSgn}, 0xbc00bc00"); a(f"s_cselect_b32 s{sSgn}, 0x3c003c00, s{sSgn}")
    for dst, par, du in ((vX, sT, sT+1), (vY, sT+2, sT+3)):
        a(f"v_add_u32 v{vT+2}, s{du}, v{t_}")
        a(f"v_subrev_u32 v{vT+3}, s{par}, v{vT+2}")
        a(f"v_lshrrev_b32 v{vT+3}, 1, v{vT+3}"); a(f"v_and_b32 v{vT+3}, 2, v{vT+3}")
        a(f"v_xor_b32 v{vT+3}, v{vT+3}, v{g_}")
        a(f"v_lshlrev_b32 v{vT+2}, 6, v{vT+2}"); a(f"v_lshl_add_u32 v{vT+2}, v{vT+3}, 4, v{vT+2}")
        a(f"s_mul_i32 s{sT+4}, s{par}, 1088"); a(f"s_add_u32 s{sT+4}, s{sT+4}, 0x10000")
        a(f"v_add_u32 v{dst}, s{sT+4}, v{vT+2}")
    a(f"s_lshl_b32 s{sT+4}, s{sP}, 12")
    a(f"v_and_b32 v{vT+2}, 7, v{t_}"); a(f"v_xor_b32 v{vT+2}, v{vT+2}, v{g_}")
    a(f"v_lshlrev_b32 v{vT+3}, 8, v{t_}"); a(f"v_add_u32 v{vT+3}, s{sT+4}, v{vT+3}")
    a(f"v_lshl_add_u32 v{vEW}, v{vT+2}, 4, v{vT+3}")
    a(f"v_xor_b32 v{vEW+1}, 64, v{vEW}")
    a(f"v_add_u32 v{vEW+2}, 0x10000, v{vEW}"); a(f"v_add_u32 v{vEW+3}, 0x10000, v{vEW+1}")
    a(f"v_bfe_u32 v{vT+2}, v0, 3, 3"); a(f"v_and_b32 v{vT+3}, 7, v0")
    a(f"v_lshlrev_b32 v{vT+4}, 1, v{vT+3}"); a(f"v_xor_b32 v{vT+4}, v{vT+4}, v{vT+2}")
    a(f"s_lshr_b32 s{sT+6}, s{sP}, 1"); a(f"s_and_b32 s{sT+7}, s{sP}, 1")
    a(f"s_lshl_b32 s{sT+4}, s{sT+6}, 14"); a(f"s_lshl_b32 s{sT+5}, s{sT+7}, 11"); a(f"s_add_u32 s{sT+4}, s{sT+4}, s{sT+5}")
    a(f"v_lshlrev_b32 v{vT+5}, 8, v{vT+2}"); a(f"v_add_u32 v{vT+5}, s{sT+4}, v{vT+5}")
    a(f"v_lshl_add_u32 v{vER}, v{vT+4}, 4, v{vT+5}"); a(f"v_xor_b32 v{vER+1}, 16, v{vER}")
    a(f"v_add_u32 v{vER+2}, 0x10000, v{vER}"); a(f"v_add_u32 v{vER+3}, 0x10000, v{vER+1}")
    a(f"v_lshlrev_b32 v{vOut}, 11, v{vT+2}"); a(f"v_lshl_add_u32 v{vOut}, v{vT+3}, 4, v{vOut}")
    a(f"s_add_u32 s{sT+4}, s{sT+6}, s{sR0}"); a(f"s_lshl_b32 s{sT+4}, s{sT+4}, 16")
    a(f"s_lshl_b32 s{sT+5}, s{sHBk}, 15"); a(f"s_add_u32 s{sT+4}, s{sT+4}, s{sT+5}")
    a(f"s_lshl_b32 s{sT+5}, s{sT+7}, 14"); a(f"s_add_u32 s{sT+4}, s{sT+4}, s{sT+5}")
    a(f"s_lshl_b32 s{sT+5}, s{sNB}, 7"); a(f"s_add_u32 s{sO}, s{sT+4}, s{sT+5}")
    for i in range(1, 4): a(f"s_add_u32 s{sO+i}, s{sO}, {i*131072}")
    a(f"s_mov_b32 s{sCnt}, 6")
    st(3)
    p2 = merge_waits(pro2)
    for op in p2[:2]: a(op.render())
    st(4)
    for op in p2[2:]: a(op.render())
    st(5)
    a(".p2align 6")
    a.label(f"{name}_loop")
    ls = merge_waits(loop_seq)
    for op in ls[:2]: a(op.render())
    if stamp == 2: st(12, sCnt)
    for op in ls[2:]: a(op.render())
    a(f"s_cbranch_scc0 {name}_loop")
    a.label(f"{name}_fin")
    fs = merge_waits(fin_seq)
    for op in fs[:2]: a(op.render())
    if stamp == 2: st(13)
    nm = 0
    for op in fs[2:]:
        a(op.render())
        if op.kind == "mfma":
            nm += 1
            if stamp == 2 and nm in (62, 80, 113, 160): a("s_waitcnt lgkmcnt(0)"); st({62: 17, 80: 18, 113: 19, 160: 20}[nm])
    ep = merge_waits(epi)
    nb = [i for i, op in enumerate(ep) if op.text == "s_barrier"][0] + 1
    for op in ep[:nb]: a(op.render())
    st(14)
    for op in ep[nb:]: a(op.render())
    st(15)
    if stamp:
        a("s_waitcnt vmcnt(0)")
        st(16)
        a(f"s_lshl_b32 s{sT}, s2, 2"); a(f"s_add_u32 s{sT}, s{sT}, s{sP}"); a(f"s_lshl_b32 s{sT}, s{sT}, 9"); a(f"s_add_u32 s{sT}, s{sT}, {24*MB}")
        a(f"v_lshrrev_b32 v2, 2, v{vL}")
        a(f"buffer_store_dword v7, v2, s[{S_WS}:{S_WS+3}], s{sT} offen")
        a(f"buffer_store_dword v237, v2, s[{S_WS}:{S_WS+3}], s{sT} offen offset:256")
    a.label(f"{name}_end")
    a("s_endpgm")
    a.label(f"{name}_fix")
    a("s_waitcnt vmcnt(0)")
    a(f"s_mov_b64 s[{sFix}:{sFix+1}], -1")
    assert npre <= 8
    a(f"s_mov_b32 s{sT+2}, s{sU}"); a(f"s_mov_b32 s{sT+3}, s{sZ}")
    a(f"s_lshl_b32 s{sT+4}, s2, 2"); a(f"s_add_u32 s{sT+4}, s{sT+4}, s{sP}"); a(f"s_mul_i32 s{sU}, s{sT+4}, {PRIV_STRIDE}")
    a(f"s_add_u32 s{sU}, s{sU}, {PRIV_OFF}"); a(f"s_add_u32 s{sZ}, s{sU}, 196608")
    a(f"s_mov_b32 s{sT+4}, s{sU}")
    for i in range(1, 24):
        a(f"v_readlane_b32 s{sT+5}, v{vSc+1}, {i}"); a("s_nop 0"); a(f"s_min_u32 s{sT}, s{sT}, s{sT+5}")
    a(f"v_subrev_u32 v{vT+8}, s{sT}, v{vSc+1}")
    a(f"v_cmp_eq_u32 vcc, 0, v{vT+8}")
    a(f"v_min_u32 v{vT+8}, 0x3f000000, v{vT+8}"); a(f"v_sub_u32 v{vT+8}, 0x3f800000, v{vT+8}")
    a(f"s_ff1_i32_b64 s{sT+5}, vcc"); a(f"s_min_u32 s{sT+5}, s{sT+5}, 23"); a(f"s_lshl_b32 s{sT+5}, s{sT+5}, 2")
    a(f"v_mov_b32 v{vSc}, s{sT+5}")
    a(f"s_mov_b32 s{sT+6}, 0")
    a.label(f"{name}_fixU")
    a(f"s_mul_hi_u32 s{sT+7}, s{sT+6}, 0x55555556")
    a(f"s_mul_i32 s{sT+8}, s{sT+7}, 3"); a(f"s_sub_u32 s{sT+8}, s{sT+6}, s{sT+8}")
    a(f"s_lshr_b32 s{sT+7}, s{sT+7}, 1"); a(f"s_lshl_b32 s{sT+8}, s{sT+8}, 3"); a(f"s_add_u32 s{sT+7}, s{sT+7}, s{sT+8}")
    a("s_nop 3")
    a(f"v_readlane_b32 s{sT+9}, v{vT+8}, s{sT+7}")
    for f in range(4): a(f"buffer_load_dwordx4 {vr(16+4*f,4)}, v{vL}, s[{S_WS}:{S_WS+3}], s{sT+2} offen offset:{f*1024}")
    a(f"v_cvt_f16_f32 v{vT+9}, s{sT+9}"); a("s_nop 0"); a(f"v_pack_b32_f16 v{vT+9}, v{vT+9}, v{vT+9}")
    a("s_waitcnt vmcnt(0)")
    for i in range(16): a(f"v_pk_mul_f16 v{16+i}, v{16+i}, v{vT+9}")
    for f in range(4): a(f"buffer_store_dwordx4 {vr(16+4*f,4)}, v{vL}, s[{S_WS}:{S_WS+3}], s{sT+4} offen offset:{f*1024}")
    a("s_waitcnt vmcnt(0)")
    a(f"s_add_u32 s{sT+2}, s{sT+2}, 4096"); a(f"s_add_u32 s{sT+4}, s{sT+4}, 4096"); a(f"s_add_u32 s{sT+6}, s{sT+6}, 1")
    a(f"s_cmp_lt_u32 s{sT+6}, 48"); a(f"s_cbranch_scc1 {name}_fixU")
    a(f"s_add_u32 s{sT+6}, s{sP}, 1"); a(f"s_bfe_u32 s{sT+6}, s{sT+6}, 0x10001"); a(f"s_lshl_b32 s{sT+6}, s{sT+6}, 3")
    a(f"s_add_u32 s{sT+10}, s{sT+6}, 8")
    a.label(f"{name}_fixZ")
    a(f"s_lshr_b32 s{sT+7}, s{sT+6}, 1"); a(f"s_add_u32 s{sT+7}, s{sT+7}, 8")
    a("s_nop 3")
    a(f"v_readlane_b32 s{sT+9}, v{vT+8}, s{sT+7}")
    for f in range(4): a(f"buffer_load_dwordx4 {vr(16+4*f,4)}, v{vL}, s[{S_WS}:{S_WS+3}], s{sT+3} offen offset:{f*1024}")
    a("s_waitcnt vmcnt(0)")
    for i in range(16):
        a(f"v_lshlrev_b32 v{vT+9}, 16, v{16+i}"); a(f"v_and_b32 v{vT+10}, 0xffff0000, v{16+i}")
        a(f"v_mul_f32 v{vT+9}, s{sT+9}, v{vT+9}"); a(f"v_mul_f32 v{vT+10}, s{sT+9}, v{vT+10}")
        a(f"v_cvt_pk_bf16_f32 v{16+i}, v{vT+9}, v{vT+10}")
    for f in range(4): a(f"buffer_store_dwordx4 {vr(16+4*f,4)}, v{vL}, s[{S_WS}:{S_WS+3}], s{sT+4} offen offset:{f*1024}")
    a("s_waitcnt vmcnt(0)")
    a(f"s_add_u32 s{sT+3}, s{sT+3}, 4096"); a(f"s_add_u32 s{sT+4}, s{sT+4}, 4096"); a(f"s_add_u32 s{sT+6}, s{sT+6}, 1")
    a(f"s_cmp_lt_u32 s{sT+6}, s{sT+10}"); a(f"s_cbranch_scc1 {name}_fixZ")
    a(f"s_mul_i32 s{sW}, s{sP}, 5440"); a(f"s_add_u32 s{sW}, s{sW}, 0x10000")
    a(f"s_branch {name}_reload")
    kernel_desc(a, name, 512, 102, 256)
    return LB, FB

if __name__ == "__main__":
    import sys
    a = Asm()
    a("; @launch kernel=k2_kernel grid=(256,1,1) block=(256,1,1) lds=131072")
    a('.amdgcn_target "amdgcn-amd-amdhsa--gfx950"')
    opts = {}
    out = "k2_only.s"
    for x in sys.argv[1:]:
        if x.endswith(".s"): out = x
        elif "=" in x:
            k, v = x.split("="); opts[k] = float(v) if "." in v else int(v)
    LB, FB = gen_k2(a, "k2_kernel", stamp=(2 if "stamp2" in sys.argv else 1 if "stamp" in sys.argv else 0), opts=opts)
    open(out, "w").write(a.text())
    print("loop gap load:", LB.hist)
    print("final gap load:", FB.hist)
```

```python
import numpy as np
MB = 1 << 20
import os
BASE = int(os.environ.get("WSBASE", "0"))*MB
SCL_OFF = BASE
H_OFF = BASE + 1*MB
E_OFF = BASE + 9*MB
U_OFF = BASE + 17*MB
Z_OFF = BASE + 23*MB
ST2_OFF = 24*MB
ST1_OFF = 25*MB
PRIV_OFF = 32*MB if BASE == 0 else 0
PRIV_STRIDE = 224*1024

def perm_ch(g, e):
    return 4*g + e if e < 4 else 16 + 4*g + (e-4)
PERM = np.array([[perm_ch(g, e) for e in range(8)] for g in range(4)])
if os.environ.get("OLDPERM"): CH = np.array([[32*s + PERM[g] for g in range(4)] for s in range(16)])
else: CH = np.array([[[128*(s >> 2) + 32*g + 8*(s & 3) + e for e in range(8)] for g in range(4)] for s in range(16)])

def bf16_round(x):
    u = np.ascontiguousarray(x, dtype=np.float32).view(np.uint32)
    return ((u + 0x7FFF + ((u >> 16) & 1)) >> 16).astype(np.uint16)
def bf16_f32(u16):
    return (u16.astype(np.uint32) << 16).view(np.float32)

def pack_H(h):
    h16 = h.astype(np.float16)
    out = np.zeros((16, 128, 2, 32, 4, 8), np.float16)
    for s in range(16):
        for g in range(4):
            ch = CH[s, g]
            v = h16[:, :, ch].reshape(128, 32, 2, 8)
            for idx in range(32):
                slot = g ^ (2*((idx >> 2) & 1))
                out[s, :, :, idx, slot, :] = v[:, idx, :, :]
    return out.view(np.uint16).reshape(-1)

def unpack_H(u16):
    a = u16.view(np.float16).reshape(16, 128, 2, 32, 4, 8)
    h = np.zeros((128, 32, 2, 512), np.float32)
    for s in range(16):
        for g in range(4):
            ch = CH[s, g]
            for idx in range(32):
                slot = g ^ (2*((idx >> 2) & 1))
                h[:, idx][:, :, ch] = a[s, :, :, idx, slot, :]
    return h.reshape(128, 64, 512)

def E_values(hin):
    e = hin.reshape(16, 8, 2, 16, 2, 512)
    e0 = e[..., 0, :]; e1 = e[..., 1, :]
    src = [e0[..., :256], (e0[..., 256:]+e1[..., 256:]), (e0[..., 256:]-e1[..., 256:]), -e1[..., :256]]
    out = np.zeros((16, 2, 4, 8, 8, 4, 16, 8), np.float32)
    for p in range(4):
        for ks in range(8):
            for g in range(4):
                ch = CH[ks, g]
                v = src[p][..., ch]
                out[:, :, p, ks, :, g, :, :] = v.transpose(0, 2, 1, 3, 4)
    return out
def pack_E(hin):
    return bf16_round(E_values(hin)).reshape(-1)

def U_values(wp):
    g0, g1, g2 = wp[:, 0], wp[:, 1], wp[:, 2]
    Up = [g0, 0.5*(g0+g1+g2), 0.5*(g0-g1+g2), g2]
    out = np.zeros((8, 4, 16, 3, 4, 4, 16, 8), np.float32)
    for p in range(4):
        u = Up[p].reshape(3, 512, 8, 4, 16)
        for g in range(4):
            v = u[:, CH[:, g]]
            out[:, p, :, :, :, g, :, :] = v.transpose(3, 1, 0, 4, 5, 2)
    return out
def Z_values(wz):
    z = wz.reshape(512, 8, 4, 16)
    out = np.zeros((8, 16, 4, 4, 16, 8), np.float32)
    for g in range(4):
        out[:, :, :, g, :, :] = z[CH[:, g]].transpose(2, 0, 3, 4, 1)
    return out

def tile_sigma(M):
    bits = np.float32(M).view(np.uint32)
    m = int(bits >> 23) - 127
    sig = (13 - m) - ((-6 - m) & 7)
    return max(-109, min(59, sig))

def pack_UZ(wp, wz, force_sigma=None):
    U = U_values(wp); Z = Z_values(wz)
    scl = np.zeros((4, 3, 8), np.float32)
    Uo = np.zeros(U.shape, np.float16); Zo = np.zeros(Z.shape, np.float32)
    for nq in range(4):
        for di in range(3):
            for kb in range(8):
                t = U[2*nq:2*nq+2, :, 2*kb:2*kb+2, di]
                sig = tile_sigma(np.abs(t).max())
                if force_sigma is not None: sig = force_sigma(nq, di, kb, sig)
                S = np.float32(2.0)**sig
                scl[nq, di, kb] = S
                r = bf16_f32(bf16_round(t*S))
                Uo[2*nq:2*nq+2, :, 2*kb:2*kb+2, di] = r.astype(np.float16)
                if di == 1:
                    Zo[2*nq:2*nq+2, 2*kb:2*kb+2] = Z[2*nq:2*nq+2, 2*kb:2*kb+2]*S*(0.5 if kb >= 4 else 1.0)
    return Uo.view(np.uint16).reshape(-1), bf16_round(Zo).reshape(-1), scl.reshape(-1)
```

```python
from asmlib import *
from sched import *
from layouts import *

LOG2E = 1.4426950408889634
def f32bits(x):
    import struct
    return struct.unpack("<I", struct.pack("<f", x))[0]

S_A, S_B, S_X, S_F, S_WS = 4, 8, 12, 16, 20
sW_, sJ, sXc = 24, 25, 26
sT = 28

def gen_k1(a, name, stamp=0, opts=None):
    opts = opts or {}
    kernel_begin(a, name)
    def st(k):
        if stamp == 3:
            MID = {0: 76, 4: 78, 5: 80, 6: 82, 7: 84, 8: 86, 15: 88, 3: 90, 2: 92}
            if k in MID and (k in (0, 15) or opts.get("mid")): a(f"s_memrealtime s[{MID[k]}:{MID[k]+1}]")
            if k == 15:
                a("s_waitcnt lgkmcnt(0)")
                for kk, r in MID.items(): a(f"v_writelane_b32 v250, s{r}, {kk}")
            return
        if not stamp: return
        a("s_memrealtime s[84:85]"); a("s_memtime s[86:87]"); a("s_waitcnt lgkmcnt(0)")
        a(f"v_writelane_b32 v250, s84, {k}"); a(f"v_writelane_b32 v251, s86, {k}")
    def st_flush():
        if not stamp: return
        a("s_waitcnt vmcnt(0)"); st(15)
        a(f"s_lshl_b32 s{sT}, s2, 3"); a(f"s_add_u32 s{sT}, s{sT}, s{sW_}"); a(f"s_lshl_b32 s{sT}, s{sT}, 9"); a(f"s_add_u32 s{sT}, s{sT}, {25*MB}")
        a("v_and_b32 v2, 63, v0"); a("v_lshlrev_b32 v2, 2, v2")
        a(f"buffer_store_dword v250, v2, s[{S_WS}:{S_WS+3}], s{sT} offen")
        a(f"buffer_store_dword v251, v2, s[{S_WS}:{S_WS+3}], s{sT} offen offset:256")
    a("s_cmp_ge_u32 s2, 256")
    a(f"s_cbranch_scc1 {name}_end")
    st(0)
    a(f"s_load_dwordx2 s[{S_WS}:{S_WS+1}], s[0:1], 64")
    a(f"s_load_dwordx2 s[{S_X}:{S_X+1}], s[0:1], 8")
    a("v_lshrrev_b32 v1, 6, v0")
    a(f"s_and_b32 s{sXc}, s2, 7")
    a(f"v_readfirstlane_b32 s{sW_}, v1")
    a(f"s_lshr_b32 s{sJ}, s2, 3")
    a("v_and_b32 v1, 63, v0")
    a(f"s_mov_b32 s{S_WS+2}, 0x10000000"); a(f"s_mov_b32 s{S_WS+3}, 0x20000")
    a(f"s_mov_b32 s{S_X+2}, {8*MB}"); a(f"s_mov_b32 s{S_X+3}, 0x20000")
    a(f"s_cmp_ge_u32 s{sJ}, 28"); a(f"s_cbranch_scc1 {name}_pf")
    a(f"s_cmp_ge_u32 s{sJ}, 16"); a(f"s_cbranch_scc1 {name}_c")
    gen_a(a, name, st, opts)
    st_flush()
    a("s_endpgm")
    a.label(f"{name}_c")
    helper_touch(a, name + "_c", "c", opts)
    if opts.get("noc"): a("s_waitcnt vmcnt(0) lgkmcnt(0)"); st(1); st(2); st(4); st(8)
    else: gen_c(a, name, st, opts)
    st_flush()
    a("s_endpgm")
    a.label(f"{name}_pf")
    if opts.get("icw", 1):
        a("s_getpc_b64 s[74:75]")
        a.label(f"{name}_pc")
        a(f"s_sub_u32 s74, s74, {name}_pc-{name}"); a("s_subb_u32 s75, s75, 0")
        a(f"s_sub_u32 s73, s{sJ}, 28"); a(f"s_lshl_b32 s73, s73, 3"); a(f"s_add_u32 s73, s73, s{sW_}"); a("s_lshl_b32 s73, s73, 11")
        a("v_lshlrev_b32 v2, 5, v1"); a("v_add_u32 v2, s73, v2"); a(f"v_min_u32 v2, cn_code_end-{name}-4, v2")
        a("global_load_dword v3, v2, s[74:75]")
    helper_touch(a, name + "_p", "p", opts)
    if opts.get("xft", 0) == 2:
        a(f"s_load_dwordx2 s[{S_F}:{S_F+1}], s[0:1], 0"); a(f"s_mov_b32 s{S_F+2}, {8*MB}"); a(f"s_mov_b32 s{S_F+3}, 0x20000")
        a(f"s_sub_u32 s72, s{sJ}, 28"); a(f"s_lshl_b32 s74, s{sXc}, 2"); a("s_add_u32 s72, s72, s74"); a("s_lshl_b32 s72, s72, 18")
        a(f"s_lshl_b32 s74, s{sW_}, 15"); a("s_add_u32 s72, s72, s74"); a("s_waitcnt lgkmcnt(0)"); a("s_barrier")
        for i in range(4): a(f"buffer_load_dword v213, v210, s[{S_F}:{S_F+3}], s72 offen"); a("s_add_u32 s72, s72, 8192")
    else: xf_touch(a, opts)
    a("s_waitcnt vmcnt(0) lgkmcnt(0)")
    st_flush()
    a.label(f"{name}_end")
    a("s_endpgm")
    kernel_desc(a, name, 256 if stamp else 216, 100, 256 if stamp else 216)

def gen_a(a, name, st, opts):
    sR, sSo, sM, sWm, sS, sM2 = sT, sT+3, sT+4, sT+5, sT+7, sT+6
    sU0 = sT+8
    vC = 2
    vW = 4
    vTr = 8
    vCa, vCb, vXa, vXb = 12, 13, 14, 15
    vAcc = 16
    Wf = [80, 96]; Cf = 112; sel = [128, 132]
    acc = lambda T, tile: vr(vAcc + (T*4+tile)*4, 4)
    a(f"s_load_dwordx2 s[{S_A}:{S_A+1}], s[0:1], 16")
    a(f"s_load_dwordx2 s[{S_B}:{S_B+1}], s[0:1], 24")
    a(f"s_load_dwordx2 s[{S_F}:{S_F+1}], s[0:1], 0")
    a(f"s_lshl_b32 s{sR}, s{sXc}, 4"); a(f"s_add_u32 s{sR}, s{sR}, s{sJ}")
    a(f"s_mov_b32 s{S_A+2}, {8*MB}"); a(f"s_mov_b32 s{S_A+3}, 0x20000")
    a(f"s_mov_b32 s{S_B+2}, {MB//2}"); a(f"s_mov_b32 s{S_B+3}, 0x20000")
    a(f"s_mov_b32 s{S_F+2}, {8*MB}"); a(f"s_mov_b32 s{S_F+3}, 0x20000")
    t0, t1, t2, t3 = 136, 137, 138, 139
    a(f"v_lshrrev_b32 v{t0}, 3, v1")
    a(f"v_and_b32 v{t1}, 7, v1")
    a(f"v_lshrrev_b32 v{t2}, 4, v1")
    a(f"v_xor_b32 v{t3}, v{t1}, v{t2}")
    a(f"v_lshlrev_b32 v{vC}, 11, v{t0}"); a(f"v_lshl_add_u32 v{vC}, v{t3}, 4, v{vC}")
    a(f"v_xor_b32 v{vC+1}, 64, v{vC}"); a(f"v_add_u32 v{vC+1}, 16384, v{vC+1}")
    a(f"s_lshl_b32 s{sU0+2}, s{sR}, 16"); a(f"s_lshl_b32 s{sU0}, s{sW_}, 7"); a(f"s_add_u32 s{sSo}, s{sU0+2}, s{sU0}")
    NSL = opts.get("nsl", 3)
    a(f"s_mul_i32 s{sWm}, s{sW_}, {NSL*4096}"); a(f"s_add_u32 s{sWm}, s{sWm}, 65536")
    if opts.get("prio"):
        a(f"s_cmp_lt_u32 s{sW_}, 4"); a(f"s_cbranch_scc1 {name}_np"); a("s_setprio 1"); a.label(f"{name}_np")
    a(f"s_and_b32 s{sU0+1}, s{sW_}, 3"); a(f"s_lshr_b32 s{sU0+3}, s{sW_}, 2")
    a(f"s_lshl_b32 s{sM}, s{sU0+1}, 13"); a(f"s_lshl_b32 s{sU0+4}, s{sU0+3}, 12"); a(f"s_add_u32 s{sM}, s{sM}, s{sU0+4}")
    a(f"s_lshl_b32 s{sM2}, s{sU0+1}, 7"); a(f"s_lshl_b32 s{sU0+4}, s{sU0+3}, 15"); a(f"s_add_u32 s{sM2}, s{sM2}, s{sU0+4}"); a(f"s_add_u32 s{sM2}, s{sM2}, s{sU0+2}")
    a(f"v_and_b32 v{t3}, 1, v{t2}"); a(f"v_lshlrev_b32 v{t3}, 1, v{t3}"); a(f"v_xor_b32 v{t3}, v{t3}, v{t1}")
    a(f"v_lshlrev_b32 v{vW}, 10, v{t0}"); a(f"v_lshl_add_u32 v{vW}, v{t3}, 4, v{vW}"); a(f"v_add_u32 v{vW}, s{sU0}, v{vW}")
    a(f"v_xor_b32 v{vW+1}, 64, v{vW}"); a(f"v_add_u32 v{vW+1}, 7168, v{vW+1}")
    a(f"v_add_u32 v{vW+2}, 14336, v{vW}"); a(f"v_add_u32 v{vW+3}, 14336, v{vW+1}")
    def c_dma(half, tag):
        ops = []
        for par in range(2):
            for th in range(2):
                ops += [other(f"s_add_u32 m0, s{sM}, {half*32768+par*2048+th*1024}"),
                        other(f"s_add_u32 s{sU0+1}, s{sM2}, {half*512+par*1024}"),
                        vmem(f"buffer_load_dwordx4 v{vC+th}, s[{S_A}:{S_A+3}], s{sU0+1} offen lds", tag)]
        return ops
    ORDER = list(range(16))
    xpos = opts.get("xpos", 14)
    ORDER = ORDER[:xpos] + ["xa", "xb"] + ORDER[xpos:]
    NS = len(ORDER)
    def dma(i):
        k = ORDER[i]; slot = i % NSL
        if k in ("xa", "xb"):
            hb = 0 if k == "xa" else 1
            ops = []
            for par in range(2):
                for th in range(2):
                    ops += [other(f"s_add_u32 m0, s{sWm}, {slot*4096+par*2048+th*1024}"),
                            other(f"s_add_u32 s{sU0+1}, s{sSo}, {hb*32768+par*1024}"),
                            vmem(f"buffer_load_dwordx4 v{vC+th}, s[{S_X}:{S_X+3}], s{sU0+1} offen lds", f"D{i}")]
            return ops
        return [other(f"s_add_u32 m0, s{sWm}, {slot*4096}"), other(f"s_mov_b32 s{sS}, {k*32768}")] + \
               [vmem(f"buffer_load_dwordx4 v{vW+q}, s[{S_B}:{S_B+3}], s{sS} offen offset:{q*1024} lds", f"D{i}") for q in range(4)]
    def frag_reads(i):
        k = ORDER[i]; slot = i % NSL; dst = Wf[i & 1]
        if k in ("xa", "xb"):
            return [ds(f"ds_read_b128 {vr(dst+8*par+4*h,4)}, v{vXa+h} offset:{slot*4096+par*2048}", f"f{i}") for par in range(2) for h in range(2)]
        return [ds(f"ds_read_b64_tr_b16 {vr(dst+4*T+2*t,2)}, v{vTr+T} offset:{slot*4096+t*512}", f"f{i}") for T in range(4) for t in range(2)]
    def c_read(tile, k): return ds(f"ds_read_b128 {vr(Cf+4*tile,4)}, v{vCa+(k&1)} offset:{(k>>1)*8192+tile*2048}", f"cr{tile}")
    a("s_waitcnt lgkmcnt(0)")
    st(1)
    pro = c_dma(0, "C0") + [other("s_barrier")] + dma(0)
    for op in pro: a(op.render())
    a(f"v_and_b32 v{t0}, 15, v1")
    a(f"v_lshrrev_b32 v{t1}, 1, v{t0}")
    a(f"v_xor_b32 v{t1}, v{t1}, v{t2}")
    a(f"v_lshlrev_b32 v{vCa}, 7, v{t0}"); a(f"v_lshl_add_u32 v{vCa}, v{t1}, 4, v{vCa}")
    a(f"v_xor_b32 v{vCb}, 64, v{vCa}"); a(f"v_add_u32 v{vXa}, s{sWm}, v{vCa}"); a(f"v_add_u32 v{vXb}, s{sWm}, v{vCb}")
    a(f"v_lshrrev_b32 v{t1}, 2, v{t0}")
    a(f"v_lshl_add_u32 v{t3}, v{t2}, 3, v{t1}")
    a(f"v_lshlrev_b32 v{vTr}, 7, v{t3}")
    a(f"v_and_b32 v{t3}, 3, v{t0}"); a(f"v_lshl_add_u32 v{vTr}, v{t3}, 3, v{vTr}")
    a(f"v_lshrrev_b32 v{t1}, 1, v{t1}"); a(f"v_and_b32 v{t3}, 1, v{t2}"); a(f"v_lshl_add_u32 v{t1}, v{t3}, 1, v{t1}")
    a(f"v_lshl_add_u32 v{vTr}, v{t1}, 5, v{vTr}"); a(f"v_add_u32 v{vTr}, s{sWm}, v{vTr}")
    for T in range(1, 4): a(f"v_xor_b32 v{vTr+T}, {T*32}, v{vTr}")
    a(f"v_lshrrev_b32 v{t1}, 3, v{t0}"); a(f"v_sub_u32 v{t1}, v{t2}, v{t1}")
    a(f"v_bfe_u32 v{t3}, v{t0}, 1, 2"); a(f"v_lshl_add_u32 v{t1}, v{t1}, 2, v{t3}")
    a(f"v_and_b32 v{t3}, 1, v{t0}"); a(f"v_lshlrev_b32 v{t3}, 4, v{t3}"); a(f"v_mov_b32 v{t0}, 0x3f80"); a(f"v_lshlrev_b32 v{t3}, v{t3}, v{t0}")
    for hh in range(2):
        for d in range(4):
            a(f"v_cmp_eq_u32 vcc, {8*hh+d}, v{t1}"); a("s_nop 1"); a(f"v_cndmask_b32 v{sel[hh]+d}, 0, v{t3}, vcc")
    def step(i):
        k = ORDER[i]; slot = i & 1
        isx = k in ("xa", "xb")
        if isx:
            hb = 0 if k == "xa" else 1
            mm = [mfma(f"v_mfma_f32_16x16x32_bf16 {acc(T,2*hb+par)}, {vr(sel[T&1],4)}, {vr(Wf[slot]+8*par+4*(T>>1),4)}, {acc(T,2*hb+par)}") for par in range(2) for T in range(4)]
        else:
            c0 = (lambda T, tile: "0") if i == 0 else acc
            mm = [mfma(f"v_mfma_f32_16x16x32_bf16 {acc(T,tile)}, {vr(Wf[slot]+4*T,4)}, {vr(Cf+4*tile,4)}, {c0(T,tile)}") for tile in range(4) for T in range(4)]
        B = Block(mm); n = len(mm)
        head = [wait(lg=[f"f{i}"] + ([] if isx else ["cr0"]))]
        if k == 7: head += [wait(vm="C1"), other("s_barrier")]
        elif opts.get("abar") and i and i % opts["abar"] == 0: head += [other("s_barrier")]
        B.fix(-1, head)
        if not isx:
            for tile in range(1, 4): B.fix(4*tile-1, wait(lg=f"cr{tile}"))
        ops = dma(i+NSL) if i + NSL < NS else []
        if i == opts.get("c2pos", 1): ops = ops + c_dma(1, "C1")
        if i == NS-2 and opts.get("touch", 0):
            ops = [other(f"v_lshlrev_b32 v{t0}, 7, v1"), other(f"s_lshl_b32 s{sU0}, s{sW_}, 13"), other(f"s_add_u32 s{sU0}, s{sU0}, s{sU0+2}"),
                   vmem(f"buffer_load_dword v200, v{t0}, s[{S_F}:{S_F+3}], s{sU0} offen", "touch")]
        sc = n/16
        for q, op in enumerate(ops): B.put(q*0.6*sc*(6/max(6, len(ops))), op)
        if i + 1 < NS:
            B.put(5*sc, wait(vm=f"D{i+1}"))
            for q, op in enumerate(frag_reads(i+1)): B.put((5.5+q)*sc, op)
        if not isx and k < 15:
            for tile in range(4): B.put(4*tile+3.9, c_read(tile, k+1))
        return B.layout(cap=2, slack=1)
    pre = [wait(vm="C0"), other("s_barrier")] + dma(1) + [c_read(t, 0) for t in range(4)] + [wait(vm="D0")] + frag_reads(0) + sum([dma(i) for i in range(2, NSL)], [])
    steps = sum([step(i) for i in range(NS)], [])
    resolve([pro, pre, steps])
    st(2)
    if opts.get("fine"):
        a("s_waitcnt vmcnt(7)"); st(9); a("s_waitcnt vmcnt(4)"); st(10); a("s_waitcnt vmcnt(0)"); st(11)
    for op in merge_waits(pre): a(op.render())
    st(3)
    for op in merge_waits(steps):
        if opts.get("nomfma") and op.kind == "mfma": continue
        if opts.get("nocr") and op.kind == "ds" and op.tag.startswith("cr"): continue
        if opts.get("nods") and op.kind == "ds": continue
        a(op.render())
    st(4)
    A = lambda T, tile, j: vAcc + (T*4+tile)*4 + j
    a("s_nop 7")
    vE = 4; vH = 5
    def part_stats():
        S_ = [6, 7, 8, 9]; Q_ = [10, 11, 12, 13]; M_ = [112, 114, 116, 118]; tp = 120
        TS = [96, 98, 100, 102]; TD = [104, 106, 108, 110]
        for tile in range(4): a(f"v_pk_add_f32 {vr(TS[tile],2)}, {vr(A(0,tile,0),2)}, {vr(A(0,tile,2),2)}")
        for tile in range(4): a(f"v_pk_mul_f32 {vr(TD[tile],2)}, {vr(A(0,tile,0),2)}, {vr(A(0,tile,0),2)}")
        for T in range(4):
            for j in (0, 2):
                if T >= 1:
                    for tile in range(4): a(f"v_pk_add_f32 {vr(TS[tile],2)}, {vr(TS[tile],2)}, {vr(A(T,tile,j),2)}")
                if (T, j) != (0, 0):
                    for tile in range(4): a(f"v_pk_fma_f32 {vr(TD[tile],2)}, {vr(A(T,tile,j),2)}, {vr(A(T,tile,j),2)}, {vr(TD[tile],2)}")
        for tile in range(4): a(f"v_add_f32 v{S_[tile]}, v{TS[tile]}, v{TS[tile]+1}")
        for tile in range(4): a(f"v_add_f32 v{Q_[tile]}, v{TD[tile]}, v{TD[tile]+1}")
        for tile in range(4): a(f"v_mul_f32 v{M_[tile]}, 0xbd800000, v{S_[tile]}")
        for tile in range(4): a(f"v_fmac_f32 v{Q_[tile]}, v{M_[tile]}, v{S_[tile]}")
        def merge(x, y, swap, n):
            a("s_nop 1")
            a(f"{swap} v{S_[x]}, v{S_[y]}"); a(f"{swap} v{Q_[x]}, v{Q_[y]}")
            a("s_nop 0")
            a(f"v_sub_f32 v{tp}, v{S_[x]}, v{S_[y]}"); a(f"v_add_f32 v{S_[x]}, v{S_[x]}, v{S_[y]}")
            a(f"v_mul_f32 v{tp+1}, {hex(f32bits(1.0/(2*n)))}, v{tp}"); a(f"v_add_f32 v{Q_[x]}, v{Q_[x]}, v{Q_[y]}")
            a(f"v_fmac_f32 v{Q_[x]}, v{tp}, v{tp+1}")
        merge(0, 2, "v_permlane32_swap_b32", 16); merge(1, 3, "v_permlane32_swap_b32", 16); merge(0, 1, "v_permlane16_swap_b32", 32)
        a(f"v_mov_b32 v7, v{Q_[0]}")
        a(f"v_lshlrev_b32 v8, 3, v1"); a(f"v_add_u32 v9, s{sWm}, v8")
        a(f"ds_write_b64 v9, v[6:7]")
        a(f"v_add_u32 v8, 65536, v8"); a(f"v_add_u32 v14, {65536+4*NSL*4096}, v8") if False else None
        a(f"v_add_u32 v14, {4*NSL*4096}, v8")
        st(5)
    def part_e():
        a(f"v_lshlrev_b32 v{vE}, 4, v1")
        a(f"s_lshr_b32 s{sU0}, s{sR}, 3"); a(f"s_lshl_b32 s{sU0}, s{sU0}, 19")
        a(f"s_and_b32 s{sU0+1}, s{sR}, 7"); a(f"s_lshl_b32 s{sU0+1}, s{sU0+1}, 10"); a(f"s_add_u32 s{sU0}, s{sU0}, s{sU0+1}")
        a(f"s_and_b32 s{sU0+1}, s{sW_}, 3"); a(f"s_lshl_b32 s{sU0+1}, s{sU0+1}, 14"); a(f"s_add_u32 s{sU0}, s{sU0}, s{sU0+1}")
        a(f"s_add_u32 s{sU0}, s{sU0}, {E_OFF}")
        P = [140+4*i for i in range(8)]
        a(f"s_cmp_ge_u32 s{sW_}, 4"); a(f"s_cbranch_scc1 {name}_eb")
        a("s_nop 1")
        k = 0
        for hb in range(2):
            for hp in range(2):
                for par in range(2):
                    d = P[k % 8]; k += 1; n = "-" if par else ""
                    for q in range(4):
                        T = 2*hp + (q >> 1); j = 2*(q & 1)
                        a(f"v_cvt_pk_bf16_f32 v{d+q}, {n}v{A(T,2*hb+par,j)}, {n}v{A(T,2*hb+par,j+1)}")
                    a(f"s_add_u32 s{sU0+1}, s{sU0}, {hb*262144 + (3 if par else 0)*65536 + hp*8192}")
                    a(f"buffer_store_dwordx4 {vr(d,4)}, v{vE}, s[{S_WS}:{S_WS+3}], s{sU0+1} offen")
        a(f"s_branch {name}_ej")
        a.label(f"{name}_eb")
        a("s_nop 1")
        k = 0
        for hb in range(2):
            for hp in range(2):
                for sg in range(2):
                    d = P[k % 8]; k += 1
                    for q in range(4):
                        T = 2*hp + (q >> 1); j = 2*(q & 1)
                        neg = " neg_lo:[0,1] neg_hi:[0,1]" if sg else ""
                        a(f"v_pk_add_f32 v[124:125], {vr(A(T,2*hb,j),2)}, {vr(A(T,2*hb+1,j),2)}{neg}")
                        a(f"v_cvt_pk_bf16_f32 v{d+q}, v124, v125")
                    a(f"s_add_u32 s{sU0+1}, s{sU0}, {hb*262144 + (1+sg)*65536 + hp*8192}")
                    a(f"buffer_store_dwordx4 {vr(d,4)}, v{vE}, s[{S_WS}:{S_WS+3}], s{sU0+1} offen")
        a.label(f"{name}_ej")
        st(6)
    mode = opts.get("efirst", 2)
    if mode == 1: part_e(); part_stats()
    elif mode == 0: part_stats(); part_e()
    else:
        n0 = len(a.lines); part_stats(); SL = a.lines[n0:]; del a.lines[n0:]
        part_e(); EL = a.lines[n0:]; del a.lines[n0:]
        cut = [i for i, l in enumerate(SL) if l.startswith("s_nop 1")][0]
        SA, SB = SL[:cut], SL[cut:]
        k = 0
        for l in EL:
            a(l)
            if l.startswith("buffer_store"):
                q = k % 8; k += 1
                if q < 7:
                    for x in SA[q*len(SA)//7:(q+1)*len(SA)//7]: a(x)
        for x in SB: a(x)
    a("s_waitcnt lgkmcnt(0)"); a("s_barrier")
    for i in range(8): a(f"ds_read_b64 {vr(80+2*i,2)}, v{8 if i < 4 else 14} offset:{(i&3)*NSL*4096}")
    a(f"v_and_b32 v6, 15, v1"); a(f"v_lshrrev_b32 v7, 4, v1")
    a(f"v_lshrrev_b32 v9, 1, v6"); a(f"v_and_b32 v9, 2, v9"); a(f"v_xor_b32 v9, v9, v7")
    a(f"v_lshlrev_b32 v{vH}, 6, v6"); a(f"v_lshl_add_u32 v{vH}, v9, 4, v{vH}")
    a(f"s_lshl_b32 s{sU0}, s{sR}, 12"); a(f"s_lshl_b32 s{sU0+1}, s{sW_}, 20"); a(f"s_add_u32 s{sU0}, s{sU0}, s{sU0+1}"); a(f"s_add_u32 s{sU0}, s{sU0}, {H_OFF}")
    a("s_waitcnt lgkmcnt(0)")
    for i in range(4): a(f"v_pk_add_f32 v[{96+2*i}:{97+2*i}], v[{80+4*i}:{81+4*i}], v[{82+4*i}:{83+4*i}]")
    a("v_pk_add_f32 v[96:97], v[96:97], v[98:99]"); a("v_pk_add_f32 v[100:101], v[100:101], v[102:103]")
    a("v_pk_add_f32 v[6:7], v[96:97], v[100:101]")
    a("v_mul_f32 v8, 0x3e000000, v6")
    for i in range(8): a(f"v_sub_f32 v{96+i}, v{80+2*i}, v8")
    a("v_pk_mul_f32 v[10:11], v[96:97], v[96:97]"); a("v_pk_mul_f32 v[12:13], v[98:99], v[98:99]")
    a("v_pk_fma_f32 v[10:11], v[100:101], v[100:101], v[10:11]"); a("v_pk_fma_f32 v[12:13], v[102:103], v[102:103], v[12:13]")
    a("v_pk_add_f32 v[10:11], v[10:11], v[12:13]"); a("v_add_f32 v9, v10, v11")
    a("v_fmac_f32 v7, 0x3c800000, v9")
    a(f"v_mov_b32 v10, {hex(f32bits(1e-5))}")
    a("v_fmac_f32 v10, 0x3b000000, v7")
    a("v_rsq_f32 v10, v10")
    a("v_mul_f32 v6, 0x3b000000, v6")
    a("v_mov_b32 v8, v6"); a("v_mov_b32 v12, v10"); a("s_nop 0")
    a("v_permlane32_swap_b32 v6, v8"); a("v_permlane32_swap_b32 v10, v12")
    a("v_mov_b32 v7, v6"); a("v_mov_b32 v9, v8"); a("v_mov_b32 v11, v10"); a("v_mov_b32 v13, v12")
    a("v_permlane16_swap_b32 v6, v7"); a("v_permlane16_swap_b32 v8, v9"); a("s_nop 0") if False else None
    a("v_permlane16_swap_b32 v10, v11"); a("v_permlane16_swap_b32 v12, v13")
    K = [80, 82, 84, 86]
    for tile in range(4): a(f"v_mul_f32 v{K[tile]}, {hex(f32bits(-LOG2E))}, v{10+tile}")
    for tile in range(4): a(f"v_mul_f32 v{K[tile]+1}, -v{6+tile}, v{K[tile]}")
    st(7)
    D = [96, 100, 104, 108]; kk = 0
    r8 = opts.get("hround", 1)
    if r8: a("s_mov_b32 s60, 0x00040004")
    for tile in range(4):
        k = K[tile]; hb, par = tile >> 1, tile & 1
        for hp in range(2):
            d = D[kk % 4]; kk += 1
            E2 = [112, 114, 116, 118] if False else [6, 8, 10, 12]
            for q in range(4):
                T = 2*hp + (q >> 1); j = 2*(q & 1); r = vr(A(T, tile, j), 2); e = E2[q]
                a(f"v_pk_fma_f32 {r}, {r}, {vr(k,2)}, {vr(k,2)} op_sel:[0,0,1] op_sel_hi:[1,0,1]")
                a(f"v_exp_f32 v{e}, v{A(T,tile,j)}"); a(f"v_exp_f32 v{e+1}, v{A(T,tile,j)+1}")
            for q in range(4):
                e = E2[q]
                a(f"v_pk_add_f32 v[{e}:{e+1}], v[{e}:{e+1}], 1.0 op_sel_hi:[1,0]")
                a(f"v_rcp_f32 v{e}, v{e}"); a(f"v_rcp_f32 v{e+1}, v{e+1}")
            for q in range(4):
                T = 2*hp + (q >> 1); j = 2*(q & 1); r = vr(A(T, tile, j), 2); e = E2[q]
                a(f"v_pk_mul_f32 v[{e}:{e+1}], v[{e}:{e+1}], {r}")
                a(f"v_cvt_pk_f16_f32 v{d+q}, v{e}, v{e+1}")
                if r8: a(f"v_pk_add_u16 v{d+q}, v{d+q}, s60"); a(f"v_and_b32 v{d+q}, 0xfff8fff8, v{d+q}")
            a(f"s_add_u32 s{sU0+1}, s{sU0}, {hp*524288 + par*2048 + hb*1024}")
            a(f"buffer_store_dwordx4 {vr(d,4)}, v{vH}, s[{S_WS}:{S_WS+3}], s{sU0+1} offen")
    st(8)

def xf_touch(a, opts):
    if opts.get("xft", 0) != 1: return
    a(f"s_load_dwordx2 s[{S_F}:{S_F+1}], s[0:1], 0"); a(f"s_mov_b32 s{S_F+2}, {8*MB}"); a(f"s_mov_b32 s{S_F+3}, 0x20000")
    a(f"s_sub_u32 s72, s{sJ}, 16"); a(f"s_lshl_b32 s74, s{sXc}, 4"); a("s_add_u32 s72, s72, s74"); a("s_lshl_b32 s72, s72, 16")
    a(f"s_lshl_b32 s74, s{sW_}, 13"); a("s_add_u32 s72, s72, s74"); a("v_lshlrev_b32 v210, 7, v1")
    a("s_waitcnt lgkmcnt(0)")
    a(f"buffer_load_dword v213, v210, s[{S_F}:{S_F+3}], s72 offen")

def helper_touch(a, name, role, opts):
    duties = [("W", 16, 0, opts.get("nWa", 1), 1), ("W", 48, 131072, opts.get("nWb", 3), 0), ("C", 64, 0, opts.get("nC", 4), 0), ("X", 128, 0, opts.get("nX", 4), 0)]
    a(f"s_load_dwordx4 s[64:67], s[0:1], 16")
    a("v_lshlrev_b32 v210, 7, v1")
    a("v_and_b32 v211, 3, v1"); a("v_lshrrev_b32 v212, 2, v1"); a("v_lshlrev_b32 v211, 7, v211"); a("v_lshl_add_u32 v211, v212, 10, v211"); a("v_add_u32 v211, 512, v211")
    a(f"s_sub_u32 s72, s{sJ}, {16 if role == 'c' else 28}")
    a(f"s_lshl_b32 s73, s{sXc}, 20")
    a("s_waitcnt lgkmcnt(0)")
    a("s_mov_b32 s68, s66"); a("s_mov_b32 s69, s67"); a(f"s_mov_b32 s70, {MB//2}"); a("s_mov_b32 s71, 0x20000")
    a(f"s_mov_b32 s66, {8*MB}"); a("s_mov_b32 s67, 0x20000")
    rot = 0
    for di, (src, tot, off, nc, wt) in enumerate(duties):
        assert (tot - 12*nc) % 4 == 0 and tot >= 12*nc
        n = nc if role == "c" else (tot - 12*nc)//4
        first = 0 if role == "c" else 12*nc
        sh = 14 if src == "C" else 13
        srd, va = {"W": (68, 210), "C": (64, 211), "X": (S_X, 210)}[src]
        if n:
            a(f"s_sub_u32 s74, s{sW_}, {rot}"); a("s_and_b32 s74, s74, 7")
            a(f"s_mul_i32 s75, s72, {n}"); a("s_add_u32 s75, s75, s74"); a(f"s_lshl_b32 s75, s75, {sh}")
            a(f"s_add_u32 s75, s75, {off + (first << sh)}")
            if src != "W": a("s_add_u32 s75, s75, s73")
            for i in range((n+7)//8):
                part = n - 8*i < 8
                if part: a(f"s_cmp_ge_u32 s74, {n-8*i}"); a(f"s_cbranch_scc1 {name}_h{di}")
                a(f"buffer_load_dword v{213+(i&1)}, v{va}, s[{srd}:{srd+3}], s75 offen")
                if not part and 8*(i+1) < n: a(f"s_add_u32 s75, s75, {8 << sh}")
            if wt: a("s_waitcnt vmcnt(0)")
            if n % 8: a.label(f"{name}_h{di}")
            rot = (rot + n) & 7
            a("s_barrier")

def gen_c(a, name, st, opts):
    sDi, sNq, sCh, sAo, sBo, sZc, sM = sT, sT+1, sT+2, sT+3, sT+4, sT+5, sT+6
    sU0 = sT+8
    vA = 2
    vB = 5
    vAr = 8
    vBr = 10
    vZr = 12
    vAcc = 16
    vZf = 64
    Af = [72, 96]; Bf = [120 - 0, 0]
    SLOT = 40960
    acc = lambda dj, kt, nt: vr(vAcc + ((dj*2+kt)*2+nt)*4, 4)
    a(f"s_load_dwordx2 s[{S_A}:{S_A+1}], s[0:1], 40")
    a(f"s_load_dwordx2 s[{S_B}:{S_B+1}], s[0:1], 32")
    a(f"s_sub_u32 s{sNq}, s{sJ}, 16"); a(f"s_lshr_b32 s{sDi}, s{sNq}, 2"); a(f"s_and_b32 s{sNq}, s{sNq}, 3")
    a(f"s_mov_b32 s{S_A+2}, {9*MB//2}"); a(f"s_mov_b32 s{S_A+3}, 0x20000")
    a(f"s_mov_b32 s{S_B+2}, {MB//2}"); a(f"s_mov_b32 s{S_B+3}, 0x20000")
    a(f"s_lshl_b32 s{sCh}, s{sNq}, 1"); a(f"s_mul_i32 s{sU0}, s{sDi}, 3"); a(f"s_add_u32 s{sCh}, s{sCh}, s{sU0}"); a(f"s_and_b32 s{sCh}, s{sCh}, 7")
    t0, t1, t2, t3 = 116, 117, 118, 119
    a(f"v_lshrrev_b32 v{t0}, 3, v1"); a(f"v_and_b32 v{t1}, 7, v1"); a(f"v_lshrrev_b32 v{t2}, 4, v1")
    a(f"s_and_b32 s{sU0}, s{sW_}, 1"); a(f"s_lshl_b32 s{sU0}, s{sU0}, 2")
    a(f"v_xor_b32 v{t3}, v{t1}, v{t2}"); a(f"v_xor_b32 v{t3}, s{sU0}, v{t3}")
    a(f"v_lshlrev_b32 v{vA}, 10, v{t0}"); a(f"v_lshl_add_u32 v{vA}, v{t3}, 4, v{vA}")
    a(f"s_mul_i32 s{sU0}, s{sDi}, 1572864"); a(f"s_lshl_b32 s{sU0+1}, s{sXc}, 16"); a(f"s_add_u32 s{sU0}, s{sU0}, s{sU0+1}")
    a(f"s_lshl_b32 s{sU0+1}, s{sW_}, 13"); a(f"s_add_u32 s{sU0}, s{sU0}, s{sU0+1}")
    a(f"v_add_u32 v{vA}, s{sU0}, v{vA}")
    a(f"v_add_u32 v{vA+1}, 524288, v{vA}"); a(f"v_add_u32 v{vA+2}, 1048576, v{vA}")
    a(f"v_and_b32 v{t3}, 15, v1"); a(f"s_and_b32 s{sU0}, s{sW_}, 1"); a(f"s_lshl_b32 s{sU0}, s{sU0}, 3")
    a(f"v_lshlrev_b32 v{t0}, 1, v{t2}"); a(f"v_xor_b32 v{t0}, s{sU0}, v{t0}"); a(f"v_xor_b32 v{t0}, v{t0}, v{t3}")
    a(f"v_lshlrev_b32 v{vB}, 10, v{t2}"); a(f"v_lshl_add_u32 v{vB}, v{t0}, 4, v{vB}")
    a(f"s_lshl_b32 s{sU0}, s{sW_}, 13"); a(f"s_lshl_b32 s{sU0+1}, s{sNq}, 8"); a(f"s_add_u32 s{sU0}, s{sU0}, s{sU0+1}")
    a(f"v_add_u32 v{vB}, s{sU0}, v{vB}"); a(f"v_add_u32 v{vB+1}, 3072, v{vB}")
    a(f"s_lshl_b32 s{sM}, s{sW_}, 10")
    def dma(slot, tag):
        ops = [other(f"s_lshl_b32 s{sAo}, s{sCh}, 7"), other(f"s_lshl_b32 s{sBo}, s{sCh}, 16")]
        for dj in range(3):
            ops += [other(f"s_add_u32 m0, s{sM}, {slot*SLOT+dj*8192}"), other("s_nop 0"),
                    vmem(f"buffer_load_dwordx4 v{vA+dj}, s[{S_A}:{S_A+3}], s{sAo} offen lds", tag)]
        ops += [other(f"s_lshl_b32 s{sU0}, s{sM}, 1"), other(f"s_add_u32 m0, s{sU0}, {slot*SLOT+24576}"), other("s_nop 0")]
        ops += [vmem(f"buffer_load_dwordx4 v{vB+i}, s[{S_B}:{S_B+3}], s{sBo} offen offset:{i*1024} lds", tag) for i in range(2)]
        ops += [other(f"s_add_u32 s{sCh}, s{sCh}, 1"), other(f"s_and_b32 s{sCh}, s{sCh}, 7")]
        return ops
    a(f"s_sub_u32 s{sZc}, s{sXc}, s{sCh}"); a(f"s_and_b32 s{sZc}, s{sZc}, 7")
    a("s_waitcnt lgkmcnt(0)")
    st(1)
    pro = dma(0, "D0")
    for op in pro: a(op.render())
    a(f"v_lshrrev_b32 v{t1}, 1, v{t3}"); a(f"v_xor_b32 v{t1}, v{t1}, v{t2}")
    a(f"v_lshlrev_b32 v{vAr}, 7, v{t3}"); a(f"v_lshl_add_u32 v{vAr}, v{t1}, 4, v{vAr}")
    a(f"s_lshr_b32 s{sU0}, s{sW_}, 2"); a(f"s_lshl_b32 s{sU0+1}, s{sU0}, 12"); a(f"v_add_u32 v{vAr}, s{sU0+1}, v{vAr}")
    a(f"v_xor_b32 v{vAr+1}, 64, v{vAr}")
    a(f"v_lshrrev_b32 v{t0}, 2, v{t3}")
    a(f"v_and_b32 v{t1}, 3, v{t3}"); a(f"v_lshlrev_b32 v{t1}, 3, v{t1}"); a(f"v_add_u32 v{t1}, 24576, v{t1}")
    a(f"s_and_b32 s{sU0+1}, s{sW_}, 3"); a(f"s_lshl_b32 s{sU0+1}, s{sU0+1}, 1")
    a(f"v_lshl_add_u32 v{vBr}, v{t2}, 3, v{t0}"); a(f"v_lshl_add_u32 v{vBr}, v{vBr}, 8, v{t1}")
    a(f"v_and_b32 v{vBr+1}, 1, v{t2}"); a(f"v_lshl_add_u32 v{vBr+1}, v{vBr+1}, 2, v{t0}"); a(f"v_xor_b32 v{vBr+1}, s{sU0+1}, v{vBr+1}")
    a(f"v_lshl_add_u32 v{vBr}, v{vBr+1}, 5, v{vBr}"); a(f"v_xor_b32 v{vBr+1}, 32, v{vBr}")
    a(f"v_lshl_add_u32 v{vZr}, v{t2}, 2, v{t0}"); a(f"v_lshl_add_u32 v{vZr}, v{vZr}, 8, v{t1}")
    a(f"s_lshl_b32 s{sU0}, s{sU0}, 13"); a(f"v_add_u32 v{vZr}, s{sU0}, v{vZr}")
    a(f"v_lshrrev_b32 v{vZr+1}, 1, v{t2}"); a(f"v_lshl_add_u32 v{vZr+1}, v{vZr+1}, 2, v{t0}"); a(f"v_xor_b32 v{vZr+1}, s{sU0+1}, v{vZr+1}")
    a(f"v_lshl_add_u32 v{vZr}, v{vZr+1}, 5, v{vZr}"); a(f"v_xor_b32 v{vZr+1}, 32, v{vZr}")
    st(2)
    AF = [72, 96]
    BF = [120, 128]
    FS = [72, 136]
    def rd(c):
        out = []
        for h in range(2):
            b = FS[c & 1] + 32*h
            out += [ds(f"ds_read_b64_tr_b16 {vr(b+24+4*nt+2*t,2)}, v{vBr+nt} offset:{h*8192+t*1024}", f"r{h}b") for nt in range(2) for t in range(2)]
            out += [ds(f"ds_read_b128 {vr(b+4*(dj*2+kt),4)}, v{vAr+h} offset:{dj*8192+kt*2048}", f"r{h}" if dj or kt else f"r{h}a") for dj in range(3) for kt in range(2)]
        return out
    def mm(c):
        return [mfma(f"v_mfma_f32_16x16x32_bf16 {acc(dj,kt,nt)}, {vr(FS[c&1]+32*h+4*(dj*2+kt),4)}, {vr(FS[c&1]+32*h+24+4*nt,4)}, {'0' if c == 0 and h == 0 else acc(dj,kt,nt)}")
                for h in range(2) for dj in range(3) for kt in range(2) for nt in range(2)]
    def zread(c):
        lab = f"{name}_z{c}"
        return [other(f"s_cmp_lg_u32 s{sZc}, {c}"), other(f"s_cbranch_scc1 {lab}"), other("s_waitcnt lgkmcnt(0)")] + \
               [other(f"ds_read_b64_tr_b16 {vr(vZf+4*nt+2*t,2)}, v{vZr+nt} offset:{t*4096}") for nt in range(2) for t in range(2)] + \
               [other("s_waitcnt lgkmcnt(0)"), other(f"{lab}:")]
    r0 = rd(0)
    seq = [other("s_barrier ")] + dma(1, "D1") + [wait(vm="D0"), other("s_barrier")] + zread(0) + r0[:14] + dma(2, "D2") + [wait(lg="r0")] + r0[14:]
    for c in range(8):
        B = Block(mm(c))
        if c < 7:
            step = SLOT if c % 3 < 2 else -2*SLOT
            B.fix(-1, [wait(lg="r1", vm=f"D{c+1}"), other("s_barrier")] + [other(f"v_add_u32 v{r}, {step & 0xffffffff}, v{r}") for r in (vBr, vBr+1)])
            rr = rd(c+1)
            B.put(0, [other(f"v_add_u32 v{vAr}, {step & 0xffffffff}, v{vAr}")])
            for q, r in enumerate((vAr+1, vZr, vZr+1)): B.put(1+2*q+0.5, other(f"v_add_u32 v{r}, {step & 0xffffffff}, v{r}"))
            for q, op in enumerate(rr):
                if q == 14: B.put(q*1.05-0.1, wait(lg="r0a"))
                B.put(q*1.05, op)
            if c + 3 < 8:
                for q, op in enumerate(dma(c % 3, f"D{c+3}")): B.put(2+q*1.0, op)
            seq += B.layout(cap=2, slack=1) + zread(c+1)
        else:
            B.fix(-1, wait(lg="r1"))
            seq += B.layout()
    resolve([pro, seq])
    nb_ = 0
    def cst(k):
        if opts.get("cfine"):
            a("s_memrealtime s[94:95]"); a("s_memtime s[96:97]"); a("s_waitcnt lgkmcnt(0)"); a(f"v_writelane_b32 v250, s94, {16+k}"); a(f"v_writelane_b32 v250, s96, {32+k}")
    for op in merge_waits(seq):
        if op.text == "s_barrier":
            nb_ += 1
            if nb_ == 8: a("s_barrier"); xf_touch(a, opts); cst(nb_); continue
        if opts.get("cnomfma") and op.kind == "mfma": continue
        a(op.render())
        if op.text == "s_barrier": cst(nb_)
    st(4)
    A = lambda dj, kt, nt, j: vAcc + ((dj*2+kt)*2+nt)*4 + j
    U1, U2 = 72, 88
    a("s_nop 7")
    a("v_mov_b32 v2, 0"); a("v_mov_b32 v3, 0")
    for kt in range(2):
        for nt in range(2):
            for j in (0, 2):
                o = (kt*2+nt)*4 + j
                g0, g1, g2 = [vr(A(dj, kt, nt, j), 2) for dj in range(3)]
                a(f"v_pk_add_f32 v[4:5], {g0}, {g2}")
                for r in (A(0, kt, nt, j), A(2, kt, nt, j)): a(f"v_max3_f32 v2, abs(v{r}), abs(v{r+1}), v2")
                a(f"v_pk_add_f32 {vr(U1+o,2)}, v[4:5], {g1}")
                a(f"v_pk_add_f32 {vr(U2+o,2)}, v[4:5], {g1} neg_lo:[0,1] neg_hi:[0,1]")
                for r in (U1+o, U2+o): a(f"v_max3_f32 v3, abs(v{r}), abs(v{r+1}), v3")
    a("v_mul_f32 v3, 0.5, v3"); a("v_max_f32 v2, v2, v3")
    for sh in (8, 4, 2, 1):
        a("s_nop 1"); a(f"v_max_f32_dpp v2, v2, v2 row_ror:{sh} row_mask:0xf bank_mask:0xf")
    a("v_mov_b32 v3, v2"); a("s_nop 1"); a("v_permlane32_swap_b32 v2, v3"); a("s_nop 0"); a("v_max_f32 v2, v2, v3")
    a("v_mov_b32 v3, v2"); a("s_nop 1"); a("v_permlane16_swap_b32 v2, v3"); a("s_nop 0"); a("v_max_f32 v2, v2, v3")
    MX = 3*SLOT
    a(f"s_lshl_b32 s{sU0}, s{sW_}, 2"); a(f"s_add_u32 s{sU0}, s{sU0}, {MX}"); a(f"v_mov_b32 v3, s{sU0}")
    a("ds_write_b32 v3, v2"); a(f"v_mov_b32 v3, {MX}")
    a("s_waitcnt lgkmcnt(0)"); a("s_barrier")
    a("ds_read_b128 v[4:7], v3"); a("ds_read_b128 v[8:11], v3 offset:16")
    a(f"s_lshl_b32 s{sU0}, s{sNq}, 1"); a(f"s_bfe_u32 s{sU0+1}, s{sW_}, 0x10001"); a(f"s_add_u32 s{sU0}, s{sU0}, s{sU0+1}")
    a(f"s_lshl_b32 s{sU0+1}, s{sXc}, 1"); a(f"s_lshr_b32 s{sU0+2}, s{sW_}, 2"); a(f"s_add_u32 s{sU0+1}, s{sU0+1}, s{sU0+2}")
    a(f"s_and_b32 s{sU0+2}, s{sW_}, 1"); a(f"s_lshl_b32 s{sU0+2}, s{sU0+2}, 11")
    a(f"s_mul_i32 s{sU0+3}, s{sU0}, 786432"); a(f"s_mul_i32 s{sU0+4}, s{sU0+1}, 12288"); a(f"s_add_u32 s{sU0+3}, s{sU0+3}, s{sU0+4}")
    a(f"s_lshl_b32 s{sU0+4}, s{sDi}, 12"); a(f"s_add_u32 s{sU0+3}, s{sU0+3}, s{sU0+4}"); a(f"s_add_u32 s{sU0+3}, s{sU0+3}, s{sU0+2}")
    a(f"s_add_u32 s{sU0+3}, s{sU0+3}, {U_OFF}")
    a(f"s_lshl_b32 s{sU0+4}, s{sU0}, 16"); a(f"s_lshl_b32 s{sU0+5}, s{sU0+1}, 12"); a(f"s_add_u32 s{sU0+4}, s{sU0+4}, s{sU0+5}")
    a(f"s_add_u32 s{sU0+4}, s{sU0+4}, s{sU0+2}"); a(f"s_add_u32 s{sU0+4}, s{sU0+4}, {Z_OFF}")
    a("v_lshlrev_b32 v12, 4, v1")
    a("s_waitcnt lgkmcnt(0)")
    a("v_max3_f32 v4, v4, v5, v6"); a("v_max3_f32 v4, v4, v7, v8"); a("v_max3_f32 v4, v4, v9, v10"); a("v_max_f32 v4, v4, v11")
    a("s_nop 0"); a(f"v_readfirstlane_b32 s{sU0+6}, v4"); a("s_nop 3")
    a(f"s_lshr_b32 s{sU0+6}, s{sU0+6}, 23")
    a(f"s_sub_u32 s{sU0+7}, 121, s{sU0+6}"); a(f"s_and_b32 s{sU0+7}, s{sU0+7}, 7")
    a(f"s_sub_u32 s{sU0+6}, 267, s{sU0+6}"); a(f"s_sub_u32 s{sU0+6}, s{sU0+6}, s{sU0+7}")
    a(f"s_max_u32 s{sU0+6}, s{sU0+6}, 18"); a(f"s_min_u32 s{sU0+6}, s{sU0+6}, 186")
    a(f"s_lshl_b32 s60, s{sU0+6}, 23"); a("s_mov_b32 s62, 0x00040004")
    a(f"v_mov_b32 v6, {hex(f32bits(-1.0/LOG2E))}"); a("v_mul_f32 v6, s60, v6"); a("v_mul_f32 v8, 0.5, v6")
    D = [104, 108, 112, 116]; kk = 0
    for p in range(4):
        for nt in range(2):
            d = D[kk % 4]; kk += 1
            for q in range(4):
                kt, j = q >> 1, 2*(q & 1)
                r = [A(0, kt, nt, j), U1+(kt*2+nt)*4+j, U2+(kt*2+nt)*4+j, A(2, kt, nt, j)][p]
                a(f"v_pk_mul_f32 v[4:5], {vr(r,2)}, v[{8 if p in (1, 2) else 6}:{9 if p in (1, 2) else 7}] op_sel_hi:[1,0]")
                a(f"v_cvt_pk_f16_f32 v{d+q}, v4, v5")
                if opts.get("wround", 1): a(f"v_pk_add_u16 v{d+q}, v{d+q}, s62"); a(f"v_and_b32 v{d+q}, 0xfff8fff8, v{d+q}")
            a(f"s_add_u32 s{sU0+5}, s{sU0+3}, {p*196608}")
            a(f"buffer_store_dwordx4 {vr(d,4)}, v12, s[{S_WS}:{S_WS+3}], s{sU0+5} offen offset:{nt*1024}")
    a(f"s_lshl_b32 s{sU0+5}, s{sNq}, 5"); a(f"s_lshl_b32 s{sU0+6}, s{sDi}, 3"); a(f"s_add_u32 s{sU0+5}, s{sU0+5}, s{sU0+6}")
    a(f"s_add_u32 s{sU0+5}, s{sU0+5}, s{sXc}"); a(f"s_lshl_b32 s{sU0+5}, s{sU0+5}, 2"); a(f"s_add_u32 s{sU0+5}, s{sU0+5}, {SCL_OFF}")
    a("v_mov_b32 v4, s60"); a("v_mov_b32 v5, 0")
    a(f"s_cmp_lg_u32 s{sW_}, 0"); a(f"s_cbranch_scc1 {name}_ns")
    a("s_mov_b64 exec, 1"); a(f"buffer_store_dword v4, v5, s[{S_WS}:{S_WS+3}], s{sU0+5} offen"); a("s_mov_b64 exec, -1")
    a.label(f"{name}_ns")
    a(f"s_cmp_lg_u32 s{sDi}, 1"); a(f"s_cbranch_scc1 {name}_nz")
    a(f"s_cmp_ge_u32 s{sXc}, 4"); a(f"s_cselect_b32 s61, 0x800000, 0"); a("s_sub_u32 s60, s60, s61")
    for i in range(8):
        a(f"v_lshlrev_b32 v4, 16, v{vZf+i}"); a(f"v_and_b32 v5, 0xffff0000, v{vZf+i}")
        a("v_mul_f32 v4, s60, v4"); a("v_mul_f32 v5, s60, v5")
        a(f"v_cvt_pk_bf16_f32 v{vZf+i}, v4, v5")
    for nt in range(2): a(f"buffer_store_dwordx4 {vr(vZf+4*nt,4)}, v12, s[{S_WS}:{S_WS+3}], s{sU0+4} offen offset:{nt*1024}")
    a.label(f"{name}_nz")
    st(8)

if __name__ == "__main__":
    import sys
    import k2
    opts = {}; out = "full.s"
    for x in sys.argv[1:]:
        if x.endswith(".s"): out = x
        elif "=" in x:
            k, v = x.split("="); opts[k] = float(v) if "." in v else int(v)
    stamp = 1 if ("stamp" in sys.argv or "stamp2" in sys.argv) else 3 if "lite" in sys.argv else 0
    a = Asm()
    a("; @launch kernel=cn_k1_kernel grid=(256,1,1) block=(512,1,1) lds=163840")
    a("; @launch kernel=cn_k2_kernel grid=(256,1,1) block=(256,1,1) lds=131072")
    a('.amdgcn_target "amdgcn-amd-amdhsa--gfx950"')
    gen_k1(a, "cn_k1_kernel", stamp=stamp, opts=opts)
    o2 = dict(lead=48, nv0=3, npre=4); o2.update(opts)
    opts.setdefault("st1", 1); opts.setdefault("st2", 1)
    k2.gen_k2(a, "cn_k2_kernel", stamp=(2 if "stamp2" in sys.argv else stamp), opts=o2)
    a(".text"); a("cn_code_end:"); a("s_endpgm")
    if opts.get("noH") or opts.get("noE"):
        keep = []
        for l in a.lines:
            if l.startswith("cn_k1_kernel_c:"): break
            keep.append(l)
        n = len(keep)
        for i in range(n):
            l = a.lines[i]
            if l.startswith("buffer_store_dwordx4") and ((opts.get("noH") and ", v5, " in l) or (opts.get("noE") and ", v4, " in l)): a.lines[i] = "s_nop 0"
    txt = a.text()
    pol1 = {0: "", 1: " sc1", 2: " sc0 sc1", 3: " nt", 4: " sc1 nt"}
    lines = []; ink2 = False
    for l in txt.split("\n"):
        if l.startswith("cn_k2_kernel:"): ink2 = True
        if l.startswith("buffer_store_dwordx4"): l += pol1[opts.get("st2" if ink2 else "st1", 0)]
        lines.append(l)
    open(out, "w").write("\n".join(lines))
```

```python
from asmlib import *
from sched import *
from layouts import *

TILE = 21760
ROWB = 2176
S_H, S_WS, S_XF, S_OUT = 4, 8, 12, 16
sU, sE, sZ, sHA, sHB, sW, sCnt, sSgn = 20, 21, 22, 23, 24, 25, 26, 27
sInv = 28
sMask = 30
sO = 32
sP, sNB, sHBk, sR0 = 36, 37, 38, 39
sScl = 40
sT = 64
sFix = 80
sNinv = 82
vL = 1
vD = 8
vX, vY = 14, 15
vVA, vVB = 16, 56
vRaw = 96
vZ = 120
vXF = 136
vXU = 168
vOut = 232
vEW = 233
vER = 250
vT = 238
vSc = 254
aU, aE = 128, 224

def acc(o, f): return ar((o*4+f)*4, 4)

def gen_k2(a, name, stamp=False, opts=None):
    opts = opts or {}
    kernel_begin(a, name)
    a(f"s_cmp_ge_u32 s2, 256")
    a(f"s_cbranch_scc1 {name}_end")
    def st(k, dyn=None):
        if stamp == 3:
            if k == 0: a("s_memrealtime s[84:85]")
            if k == 16: a("s_memrealtime s[86:87]"); a("s_waitcnt lgkmcnt(0)"); a("v_writelane_b32 v7, s84, 0"); a("v_writelane_b32 v7, s86, 16")
            return
        if not stamp: return
        a("s_memrealtime s[84:85]"); a("s_memtime s[86:87]"); a("s_waitcnt lgkmcnt(0)")
        if dyn is None:
            a(f"v_writelane_b32 v7, s84, {k}"); a(f"v_writelane_b32 v237, s86, {k}")
        else:
            a(f"s_sub_u32 s88, {k}, s{dyn}"); a("s_lshl_b64 exec, 1, s88"); a("v_mov_b32 v7, s84"); a("v_mov_b32 v237, s86"); a("s_mov_b64 exec, -1")
    st(0)
    a(f"s_load_dwordx2 s[{S_XF}:{S_XF+1}], s[0:1], 0")
    a(f"s_load_dwordx2 s[{S_OUT}:{S_OUT+1}], s[0:1], 48")
    a(f"s_load_dwordx2 s[{S_WS}:{S_WS+1}], s[0:1], 64")
    if opts.get("icw2", 1):
        a(f"s_getpc_b64 s[{sT+4}:{sT+5}]")
        a.label(f"{name}_pc")
        if opts.get("icw2", 1) == 1:
            a(f"v_lshlrev_b32 v{vT}, 7, v0"); a(f"v_cmp_gt_u32 vcc, {name}_end-{name}_pc, v{vT}")
        else:
            a(f"s_lshr_b32 s{sT+6}, s2, 3"); a(f"s_mul_i32 s{sT+6}, s{sT+6}, 384")
            a(f"v_lshl_add_u32 v{vT}, v0, 7, s{sT+6}"); a(f"v_min_u32 v{vT}, {name}_end-{name}_pc, v{vT}"); a(f"v_cmp_gt_u32 vcc, 3, v0")
        a(f"s_and_saveexec_b64 s[{sT+6}:{sT+7}], vcc"); a(f"s_cbranch_execz {name}_nic")
        a(f"global_load_dword v{vXU}, v{vT}, s[{sT+4}:{sT+5}]")
        a.label(f"{name}_nic")
        a(f"s_mov_b64 exec, s[{sT+6}:{sT+7}]")
    a(f"v_lshrrev_b32 v{vT}, 6, v0")
    a(f"s_and_b32 s{sT}, s2, 7")
    a(f"v_readfirstlane_b32 s{sP}, v{vT}")
    a(f"s_lshr_b32 s{sT+1}, s2, 3")
    a(f"s_and_b32 s{sNB}, s{sT}, 1")
    a(f"s_lshl_b32 s{sNB}, s{sNB}, 2")
    a(f"s_and_b32 s{sT+2}, s{sT+1}, 3")
    a(f"s_or_b32 s{sNB}, s{sNB}, s{sT+2}")
    a(f"s_bfe_u32 s{sHBk}, s{sT+1}, 0x10002")
    a(f"s_lshr_b32 s{sT+2}, s{sT+1}, 3")
    a(f"s_lshr_b32 s{sT+3}, s{sT}, 1")
    a(f"s_lshl_b32 s{sT+3}, s{sT+3}, 2")
    a(f"s_add_u32 s{sT+3}, s{sT+3}, s{sT+2}")
    a(f"s_lshl_b32 s{sR0}, s{sT+3}, 3")
    a(f"v_and_b32 v{vT+1}, 63, v0")
    a(f"v_lshlrev_b32 v{vL}, 4, v{vT+1}")
    a(f"s_mul_i32 s{sT+4}, s{sP}, 340")
    a(f"s_lshl_b32 s{sT+8}, s{sR0}, 12"); a(f"s_lshl_b32 s{sT+5}, s{sHBk}, 10"); a(f"s_add_u32 s{sT+8}, s{sT+8}, s{sT+5}")
    a(f"s_lshl_b32 s{sT+5}, s{sHBk}, 2"); a(f"s_sub_u32 s{sT+5}, 68, s{sT+5}")
    a(f"s_and_b32 s{sT+6}, s{sR0}, 63")
    a(f"s_cmp_eq_u32 s{sT+6}, 0"); a(f"s_cselect_b32 s{sT+9}, 136, 0")
    a(f"s_cmp_eq_u32 s{sT+6}, 56"); a(f"s_movk_i32 s{sT+6}, 1400"); a(f"s_cselect_b32 s{sT+6}, 1224, s{sT+6}")
    a(f"s_sub_u32 s{sT+6}, s{sT+6}, s{sT+9}")
    a(f"s_movk_i32 s{sT+7}, 964"); a(f"s_movk_i32 s{sT+12}, 896"); a(f"s_movk_i32 s{sT+13}, -136")
    a(f"v_add_u32 v{vT+2}, s{sT+4}, v{vT+1}")
    a(f"v_mov_b32 v{vT+8}, 0x40000000")
    for q in range(1410): assert (q*964) >> 16 == q // 68
    def dma_off(j):
        q, z, r, o, t1, t2 = vT+2, vT+3, vT+4, vT+5, vT+6, vT+7
        if j: a(f"v_add_u32 v{q}, 64, v{q}")
        a(f"v_mul_u32_u24 v{z}, s{sT+7}, v{q}")
        a(f"v_lshl_add_u32 v{o}, v{q}, 4, s{sT+8}")
        a(f"v_lshrrev_b32 v{r}, 17, v{z}"); a(f"v_lshrrev_b32 v{z}, 16, v{z}")
        a(f"v_subrev_u32 v{t2}, s{sT+9}, v{q}")
        a(f"v_mad_i32_i24 v{t1}, v{r}, s{sT+13}, v{q}")
        a(f"v_cmp_gt_u32 s[{sT+10}:{sT+11}], s{sT+6}, v{t2}")
        a(f"v_subrev_u32 v{t1}, s{sT+5}, v{t1}")
        a(f"v_mad_u32_u24 v{o}, v{z}, s{sT+12}, v{o}")
        a(f"v_cmp_le_u32 vcc, 4, v{t1}")
        a(f"v_lshl_add_u32 v{o}, v{r}, 7, v{o}")
        if j in (1, 2, 3): a(f"s_sub_u32 s{sT+8}, s{sT+8}, 1024") if False else None
        a(f"s_and_b64 vcc, vcc, s[{sT+10}:{sT+11}]")
        if j & 3: a(f"v_subrev_u32 v{o}, {(j&3)*1024}, v{o}")
        a(f"v_cndmask_b32 v{vD+j}, v{vT+8}, v{o}, vcc")
    for j in range(6): dma_off(j)
    for j in range(1, 6): a(f"v_add_u32 v{vL+j}, {4096*j}, v{vL}")
    a(f"s_lshl_b32 s{sT+4}, s{sNB}, 2"); a(f"s_add_u32 s{sT+4}, s{sT+4}, s{sP}")
    a(f"s_mul_i32 s{sU}, s{sT+4}, 196608"); a(f"s_add_u32 s{sU}, s{sU}, {U_OFF}")
    a(f"s_lshl_b32 s{sT+4}, s{sT+3}, 1"); a(f"s_add_u32 s{sT+4}, s{sT+4}, s{sHBk}")
    a(f"s_lshl_b32 s{sT+4}, s{sT+4}, 2"); a(f"s_add_u32 s{sT+4}, s{sT+4}, s{sP}")
    a(f"s_lshl_b32 s{sE}, s{sT+4}, 16"); a(f"s_add_u32 s{sE}, s{sE}, {E_OFF}")
    a(f"s_add_u32 s{sT+4}, s{sP}, 1"); a(f"s_bfe_u32 s{sT+4}, s{sT+4}, 0x10001")
    a(f"s_lshl_b32 s{sT+4}, s{sT+4}, 15"); a(f"s_lshl_b32 s{sZ}, s{sNB}, 16")
    a(f"s_add_u32 s{sZ}, s{sZ}, s{sT+4}"); a(f"s_add_u32 s{sZ}, s{sZ}, {Z_OFF}")
    a(f"s_mul_i32 s{sW}, s{sP}, 5440"); a(f"s_add_u32 s{sW}, s{sW}, 0x10000")
    a(f"s_mov_b32 s{sMask}, 0xfffff"); a(f"s_mov_b32 s{sMask+1}, 0")
    a(f"s_mov_b64 s[{sFix}:{sFix+1}], 0")
    a("s_waitcnt lgkmcnt(0)")
    st(1)
    a(f"s_add_u32 s{S_H}, s{S_WS}, {H_OFF-4096}"); a(f"s_addc_u32 s{S_H+1}, s{S_WS+1}, 0")
    a(f"s_mov_b32 s{S_H+2}, {8*MB+4096}"); a(f"s_mov_b32 s{S_H+3}, 0x20000")
    a(f"s_mov_b32 s{S_WS+2}, 0x10000000"); a(f"s_mov_b32 s{S_WS+3}, 0x20000")
    a(f"s_mov_b32 s{S_XF+2}, {8*MB}"); a(f"s_mov_b32 s{S_XF+3}, 0x20000")
    a(f"s_mov_b32 s{S_OUT+2}, {8*MB}"); a(f"s_mov_b32 s{S_OUT+3}, 0x20000")
    a(f"s_lshr_b32 s{sScl}, s{sNB}, 1"); a(f"s_lshl_b32 s{sScl}, s{sScl}, 7"); a(f"s_add_u32 s{sScl}, s{sScl}, {SCL_OFF}")
    a(f"v_min_u32 v{vSc}, 23, v{vT+1}"); a(f"v_lshlrev_b32 v{vSc}, 2, v{vSc}")

    def dma_ops(j, soff, m0const, tag):
        ops = []
        if j in (0, 4): ops.append([other(f"s_add_u32 m0, s{sW}, {m0const + (4096 if j == 4 else 0)}")])
        ld = vmem(f"buffer_load_dwordx4 v{vD+j}, s[{S_H}:{S_H+3}], {soff} offen offset:{(j&3)*1024} lds", tag)
        if j == 5:
            ops.append([other(f"s_mov_b64 exec, s[{sMask}:{sMask+1}]"), ld, other("s_mov_b64 exec, -1")])
        else: ops.append([ld])
        return ops
    def u_load(X, k):
        kk = X*12 + k
        return vmem(f"buffer_load_dwordx4 {ar(aU+4*kk,4)}, v{vL+kk//4}, s[{S_WS}:{S_WS+3}], s{sU} offen offset:{(kk%4)*1024}", f"U{kk}")
    def e_load(o):
        return vmem(f"buffer_load_dwordx4 {ar(aE+4*o,4)}, v{vL+o//4}, s[{S_WS}:{S_WS+3}], s{sE} offen offset:{(o%4)*1024}", f"E{o}")
    def z_load(f):
        return vmem(f"buffer_load_dwordx4 {vr(vZ+4*f,4)}, v{vL}, s[{S_WS}:{S_WS+3}], s{sZ} offen offset:{f*1024}", f"Z{f}")
    def v_row(dst, r, half, k):
        rw = vRaw + 8*(k % 3)
        off = half*TILE + r*ROWB
        rd = [ds(f"ds_read_b128 {vr(rw,4)}, v{vX} offset:{off}", f"Ra{k%3}"), ds(f"ds_read_b128 {vr(rw+4,4)}, v{vY} offset:{off}", f"Rb{k%3}")]
        pk = [other(f"v_pk_fma_f16 v{dst+4*r+i}, v{rw+4+i}, s{sSgn}, v{rw+i}") for i in range(4)]
        return rd, wait(lg=f"Rb{k%3}"), pk
    def conv(X, rowmajor=False):
        V = vVA if X == 0 else vVB
        out = []
        order = [(di, f, o) for di in range(3) for f in range(4) for o in range(8)] if not rowmajor else \
                [(di, f, o) for o in range(8) for di in range(3) for f in range(4)]
        for di, f, o in order:
            out.append(mfma(f"v_mfma_f32_16x16x32_f16 {acc(o,f)}, {ar(aU+4*(X*12+di*4+f),4)}, {vr(V+4*(o+di),4)}, {acc(o,f)}"))
        return out
    def bpart():
        return [mfma(f"v_mfma_f32_16x16x32_bf16 {acc(o,f)}, {vr(vZ+4*f,4)}, {ar(aE+4*o,4)}, {acc(o,f)}") for f in range(4) for o in range(8)]
    def place_v(B, dst, half, lo, hi, k0):
        step = (hi - lo) / 10.0
        for r in range(10):
            rd, w, pk = v_row(dst, r, half, k0 + r)
            p = lo + r*step
            B.put(p, rd[0]); B.put(p+1, rd[1])
            lat = opts.get("lds_lat", 9)
            B.put(p+lat, [w, pk[0]])
            for i in range(1, 4): B.put(p+lat+i, pk[i])

    NM = 224
    LEAD = opts.get("lead", 64)
    ug = opts.get("ugroup", 2)
    def edf_items():
        it = []
        for j in range(6): it.append((0, ("HA", j)))
        for k in range(12): it.append((8*(k//ug*ug), ("U", k)))
        for j in range(6): it.append((96, ("HB", j)))
        for k in range(12): it.append((96 + 8*(k//ug*ug), ("U", 12+k)))
        for o in range(8): it.append((192, ("E", o)))
        for f in range(4): it.append((192 + 8*f, ("Z", f)))
        it.sort(key=lambda x: x[0])
        sp = NM / len(it)
        off = min(d - i*sp for i, (d, _) in enumerate(it)) - LEAD
        return [(off + i*sp, w) for i, (d, w) in enumerate(it)]
    def item_ops(w):
        k, j = w
        if k == "HA":
            g = dma_ops(j, f"s{sHA}", 0, f"HA{j}")
            if j == 0: g = [[other(f"s_xor_b32 s{sW}, s{sW}, 0x10000")]] + g
            if j == 5: g.append([other(f"s_add_u32 s{sHA}, s{sHA}, {1*MB}")])
        elif k == "HB":
            g = dma_ops(j, f"s{sHB}", TILE, f"HB{j}")
            if j == 5: g.append([other(f"s_add_u32 s{sHB}, s{sHB}, {1*MB}")])
        elif k == "U":
            g = [[u_load(j // 12, j % 12)]]
            if j == 23: g.append([other(f"s_add_u32 s{sU}, s{sU}, 24576")])
        elif k == "E":
            g = [[e_load(j)]]
            if j == 7: g.append([other(f"s_add_u32 s{sE}, s{sE}, 8192")])
        else:
            g = [[z_load(j)]]
            if j == 3: g.append([other(f"s_add_u32 s{sZ}, s{sZ}, 4096")])
        return g
    ITEMS = edf_items()
    WRAP = [w for p, w in ITEMS if p < 0]
    INIT = [w for p, w in ITEMS if p >= 0]

    def body(final):
        if not final:
            B = Block(conv(0) + conv(1) + bpart())
            for k in range(0, 12, ug):
                if k: B.fix(8*k-1, wait(vm=f"U{k+ug-1}")); B.fix(96+8*k-1, wait(vm=f"U{12+k+ug-1}"))
            B.fix(-1, [wait(vm=["HA5", f"U{ug-1}"]), other("s_barrier")])
            B.fix(95, [wait(vm=["HB5", f"U{12+ug-1}"]), other("s_barrier")])
            B.fix(191, wait(vm=["E7", "Z0"]))
            for f in range(1, 4): B.fix(191+8*f, wait(vm=f"Z{f}"))
            place_v(B, vVB, 0, 0, 84, 0)
            place_v(B, vVA, 1, 96, 210, 10)
            for p, w in ITEMS:
                for i, ops in enumerate(item_ops(w)): B.put((p % NM) + 0.9*i if (p % NM) + 0.9*i < NM-0.2 else NM-0.2, ops)
            B.put(220, other(f"v_xor_b32 v{vX}, 0x10000, v{vX}"))
            B.put(221, other(f"v_xor_b32 v{vY}, 0x10000, v{vY}"))
            B.put(223.9, other(f"s_sub_u32 s{sCnt}, s{sCnt}, 1"))
        else:
            cA = conv(0); cAr = conv(0, rowmajor=True); cB = conv(1, rowmajor=True)
            tail = []
            for o in range(8): tail += cAr[12*o+8:12*o+12] + cB[12*o:12*o+12]
            B = Block(cA[:64] + tail)
            for k in range(ug, 8, ug): B.fix(8*k-1, wait(vm=f"U{k+ug-1}"))
            B.fix(-1, [wait(vm=["HA5", f"U{ug-1}"]), other("s_barrier")])
            rest = [w for w in INIT if w[0] == "U"]
            assert all(w[1] >= 8 for w in rest)
            sp = opts.get("fin_sp", 3.5)
            for i, w in enumerate(rest): B.put(1 + i*sp, item_ops(w)[0])
            for d in range(4): B.fix(63+4*d, wait(vm=f"U{11+4*d}"))
            place_v(B, vVB, 0, 0, opts.get("fin_vhi", 92), 0)
            x0 = 1 + len(rest)*sp
            for i in range(8):
                B.put(x0 + 4*i, vmem(f"buffer_load_dwordx4 {vr(vXF+4*i,4)}, v{vOut}, s[{S_XF}:{S_XF+3}], s{sO+(i>>1)} offen offset:{(i&1)*1024}", f"XF{i}"))
            for o in range(7):
                for f in range(4): B.put(64+16*(o+1)+5+f*3, ex_write(o, f))
            hb = [f"HB{j}" for k, j in WRAP if k == "HB"][-1:]
            NH = opts.get("nhid", 2)
            b = [64 + 32*(ph+1) + 18 for ph in range(NH)]
            for ph in range(NH):
                B.put(b[ph], [wait(lg=f"W{2*ph+1}", vm=(hb if ph == 0 and hb else None)), other("s_barrier")])
            allops = [(ph, op) for ph in range(NH) for op in phase_ops(ph, False)]
            if NH == 0: B.put(100, [wait(vm=hb), other("s_barrier")] if hb else [other("s_barrier")])
            pos = 0
            for i, (ph, op) in enumerate(allops):
                pos = max(pos, b[ph] + 0.5)
                B.put(pos, op)
                pos += (191.0 - b[0]) / len(allops)
            NU = opts.get("unp", 0)
            if NU:
                for ph in range(NH, 4):
                    for i in range(8):
                        k = (ph-NH)*8 + i; p = NU + k*(190-NU)/(8*(4-NH))
                        ops = [other(f"v_lshlrev_b32 v{vXU+16*ph+2*i}, 16, v{vXF+8*ph+i}")]
                        if i == 0: ops = [wait(vm=f"XF{2*ph+1}")] + ops
                        B.put(p, ops); B.put(p+0.5, other(f"v_and_b32 v{vXU+16*ph+2*i+1}, 0xffff0000, v{vXF+8*ph+i}"))
        seq = B.layout(cap=1, slack=opts.get("slack", 3), capf=(lambda p: 2 if p >= 114 else 1) if final and opts.get("nhid", 2) else None)
        return seq, B
    def ex_write(o, f):
        return ds(f"ds_write_b128 v{vEW + (f&1) + 2*(o>>2)}, {acc(o,f)} offset:{(o&3)*16384 + (f>>1)*128}", f"W{o}")
    def phase_reads(ph, M):
        return [ds(f"ds_read_b128 {vr(M+8*src+4*e,4)}, v{vER+e+2*(ph>>1)} offset:{(ph&1)*32768+src*4096}", f"X{ph}") for src in range(4) for e in range(2)]
    def phase_ops(ph, packed, M=None, reads=True):
        pre = packed and opts.get("unp", 0)
        if M is None: M = vXU
        ops = phase_reads(ph, M) if reads else []
        y0 = vZ + 8*(ph & 1); y1 = y0 + 4
        for q in range(4):
            m0, m1, m2, m3 = [M+8*s_+2*q for s_ in range(4)]
            t, u = vT + 4*(q & 1), vT + 4*(q & 1) + 2
            x0_, x1_ = vXF + 8*ph + q, vXF + 8*ph + 4 + q
            unp = [other(f"v_lshlrev_b32 v{t}, 16, v{x0_}"), other(f"v_and_b32 v{t+1}, 0xffff0000, v{x0_}"),
                   other(f"v_lshlrev_b32 v{u}, 16, v{x1_}"), other(f"v_and_b32 v{u+1}, 0xffff0000, v{x1_}")]
            if packed:
                xa, xb = (vr(vXU+16*ph+2*q, 2), vr(vXU+16*ph+8+2*q, 2)) if pre else (vr(t, 2), vr(u, 2))
                ng = " neg_lo:[1,0,0] neg_hi:[1,0,0]"
                grp = ([] if pre else unp) + \
                      [other(f"v_pk_add_f32 {vr(m0,2)}, {vr(m0,2)}, {vr(m1,2)}"),
                       other(f"v_pk_add_f32 {vr(m3,2)}, {vr(m1,2)}, {vr(m3,2)} neg_lo:[0,1] neg_hi:[0,1]"),
                       other(f"v_pk_add_f32 {vr(m0,2)}, {vr(m0,2)}, {vr(m2,2)}"),
                       other(f"v_pk_add_f32 {vr(m3,2)}, {vr(m3,2)}, {vr(m2,2)} neg_lo:[0,1] neg_hi:[0,1]"),
                       other(f"v_pk_fma_f32 {vr(t,2)}, {vr(m0,2)}, s[{sInv}:{sInv+1}], {xa}"),
                       other(f"v_pk_fma_f32 {vr(u,2)}, {vr(m3,2)}, s[{sInv}:{sInv+1}], {xb}")]
                wl = 0 if pre else 4
            else:
                grp = unp + [other(f"v_fmac_f32 v{d+i}, s{sc}, v{m+i}") for d, sc, m in
                             ((t, sInv, m0), (u, sInv, m1), (t, sInv, m1), (u, sNinv, m2), (t, sInv, m2), (u, sNinv, m3)) for i in range(2)]
                wl = 4
            grp += [other(f"v_cvt_pk_bf16_f32 v{y0+q}, v{t}, v{t+1}"), other(f"v_cvt_pk_bf16_f32 v{y1+q}, v{u}, v{u+1}")]
            if q == 0:
                grp.insert(wl, wait(lg=f"X{ph}"))
                if not pre: grp.insert(0, wait(vm=f"XF{2*ph+1}"))
            ops += grp
        ops += [vmem(f"buffer_store_dwordx4 {vr(y0,4)}, v{vOut}, s[{S_OUT}:{S_OUT+3}], s{sO+ph} offen", "ST"),
                vmem(f"buffer_store_dwordx4 {vr(y1,4)}, v{vOut}, s[{S_OUT}:{S_OUT+3}], s{sO+ph} offen offset:1024", "ST")]
        return ops

    loop_seq, LB = body(False)
    fin_seq, FB = body(True)
    def flat(groups):
        out = []
        for ops in groups:
            out += ops
            if " m0," in (ops[-1].text or ""): out.append(other("s_nop 0"))
        return out
    pro = []
    a.label(f"{name}_reload")
    pro.append(other(f"s_mov_b32 s{sHA}, 0"))
    for j in range(6): pro += flat(dma_ops(j, f"s{sHA}", 0, f"H0{j}"))
    pro.append(vmem(f"buffer_load_dword v{vSc+1}, v{vSc}, s[{S_WS}:{S_WS+3}], s{sScl} offen", "SC"))
    pro.append(other(f"s_mov_b32 s{sHA}, {MB//2}"))
    pro.append(other(f"s_mov_b32 s{sHB}, {MB}"))
    ez = [("E", o) for o in range(8)] + [("Z", f) for f in range(4)]
    ez = [ez[8]] + ez[:8] + ez[9:]
    npre = opts.get("npre", 2)
    for w in ez[:npre]: pro += flat(item_ops(w))
    rows = [v_row(vVA, r, 0, r) for r in range(10)]
    pro2 = [wait(vm="SC"), other("s_barrier"),
            other(f"v_readfirstlane_b32 s{sT}, v{vSc+1}"), other("s_nop 1"),
            other(f"v_cmp_ne_u32 vcc, s{sT}, v{vSc+1}"),
            other(f"s_sub_u32 s{sInv}, 0x7f000000, s{sT}"), other(f"s_mov_b32 s{sInv+1}, s{sInv}"), other(f"s_xor_b32 s{sNinv}, s{sInv}, 0x80000000"),
            other(f"s_andn2_b64 vcc, vcc, s[{sFix}:{sFix+1}]"),
            other(f"s_cbranch_scc1 {name}_fix")]
    nv0 = opts.get("nv0", 6)
    pro2 += rows[0][0] + rows[1][0] + rows[2][0]
    rem = ez[npre:]
    for r in range(nv0):
        n0, n1 = r*len(rem)//nv0, (r+1)*len(rem)//nv0
        for w in rem[n0:n1]: pro2 += flat(item_ops(w))
        pro2 += [rows[r][1]] + rows[r][2]
        if r + 3 < 10: pro2 += rows[r+3][0]
    B0 = Block([mfma(f"v_mfma_f32_16x16x32_bf16 {acc(o,f)}, {vr(vZ+4*f,4)}, {ar(aE+4*o,4)}, 0") for f in range(4) for o in range(8)])
    B0.fix(-1, wait(vm=["E7", "Z0"]))
    for f in range(1, 4): B0.fix(8*f-1, wait(vm=f"Z{f}"))
    for r in range(nv0, 10):
        p = (r-nv0)*26.0/(10-nv0)
        B0.put(p, [rows[r][1], rows[r][2][0]])
        for i in range(1, 4): B0.put(p+i, rows[r][2][i])
        if r + 3 < 10:
            for i in range(2): B0.put(p+4+i, rows[r+3][0][i])
    for i, w in enumerate(WRAP):
        for k, ops in enumerate(item_ops(w)): B0.put(min(i*31.0/len(WRAP) + 0.3*k, 31.5), ops)
    B0.put(31.6, [other(f"v_xor_b32 v{vX}, 0x10000, v{vX}"), other(f"v_xor_b32 v{vY}, 0x10000, v{vY}")])
    pro2 += B0.layout(cap=2, slack=1)
    epi = [other("s_nop 4")]
    for f in range(4): epi.append(ex_write(7, f))
    epi += [wait(lg="ALL"), other("s_barrier")]
    NH = opts.get("nhid", 2); MS = [vVA, vVA+32]
    epi += phase_reads(NH, MS[NH & 1])
    for ph in range(NH, 4):
        ops = phase_ops(ph, True, MS[ph & 1], reads=False)
        k = [i for i, op in enumerate(ops) if op.kind == "wait" and op.lg is not None][0] + 1
        epi += ops[:k] + (phase_reads(ph+1, MS[(ph+1) & 1]) if ph < 3 else []) + ops[k:]
    resolve([pro, pro2, loop_seq, loop_seq, loop_seq, fin_seq, epi])
    def fix_haz(seq):
        out = []
        for op in seq:
            if out and op.kind == "vmem" and op.text.endswith("lds") and out[-1].kind == "x" and " m0," in out[-1].text:
                out.append(other("s_nop 0"))
            out.append(op)
        return out
    loop_seq = fix_haz(loop_seq); pro2 = fix_haz(pro2)
    for op in pro: a(op.render())
    st(2)
    t_, g_ = vT, vT+1
    a(f"v_and_b32 v{t_}, 15, v0"); a(f"v_bfe_u32 v{g_}, v0, 4, 2")
    a(f"s_and_b32 s{sT}, s{sP}, 1"); a(f"s_xor_b32 s{sT}, s{sT}, 1")
    a(f"s_cmp_eq_u32 s{sP}, 2"); a(f"s_cselect_b32 s{sT+1}, 1, 0"); a(f"s_cselect_b32 s{sT+3}, 0, 1")
    a(f"s_cmp_lt_u32 s{sP}, 2"); a(f"s_cselect_b32 s{sT+2}, 1, 0")
    a(f"s_cmp_eq_u32 s{sP}, 1"); a(f"s_mov_b32 s{sSgn}, 0xbc00bc00"); a(f"s_cselect_b32 s{sSgn}, 0x3c003c00, s{sSgn}")
    for dst, par, du in ((vX, sT, sT+1), (vY, sT+2, sT+3)):
        a(f"v_add_u32 v{vT+2}, s{du}, v{t_}")
        a(f"v_subrev_u32 v{vT+3}, s{par}, v{vT+2}")
        a(f"v_lshrrev_b32 v{vT+3}, 1, v{vT+3}"); a(f"v_and_b32 v{vT+3}, 2, v{vT+3}")
        a(f"v_xor_b32 v{vT+3}, v{vT+3}, v{g_}")
        a(f"v_lshlrev_b32 v{vT+2}, 6, v{vT+2}"); a(f"v_lshl_add_u32 v{vT+2}, v{vT+3}, 4, v{vT+2}")
        a(f"s_mul_i32 s{sT+4}, s{par}, 1088"); a(f"s_add_u32 s{sT+4}, s{sT+4}, 0x10000")
        a(f"v_add_u32 v{dst}, s{sT+4}, v{vT+2}")
    a(f"s_lshl_b32 s{sT+4}, s{sP}, 12")
    a(f"v_and_b32 v{vT+2}, 7, v{t_}"); a(f"v_xor_b32 v{vT+2}, v{vT+2}, v{g_}")
    a(f"v_lshlrev_b32 v{vT+3}, 8, v{t_}"); a(f"v_add_u32 v{vT+3}, s{sT+4}, v{vT+3}")
    a(f"v_lshl_add_u32 v{vEW}, v{vT+2}, 4, v{vT+3}")
    a(f"v_xor_b32 v{vEW+1}, 64, v{vEW}")
    a(f"v_add_u32 v{vEW+2}, 0x10000, v{vEW}"); a(f"v_add_u32 v{vEW+3}, 0x10000, v{vEW+1}")
    a(f"v_bfe_u32 v{vT+2}, v0, 3, 3"); a(f"v_and_b32 v{vT+3}, 7, v0")
    a(f"v_lshlrev_b32 v{vT+4}, 1, v{vT+3}"); a(f"v_xor_b32 v{vT+4}, v{vT+4}, v{vT+2}")
    a(f"s_lshr_b32 s{sT+6}, s{sP}, 1"); a(f"s_and_b32 s{sT+7}, s{sP}, 1")
    a(f"s_lshl_b32 s{sT+4}, s{sT+6}, 14"); a(f"s_lshl_b32 s{sT+5}, s{sT+7}, 11"); a(f"s_add_u32 s{sT+4}, s{sT+4}, s{sT+5}")
    a(f"v_lshlrev_b32 v{vT+5}, 8, v{vT+2}"); a(f"v_add_u32 v{vT+5}, s{sT+4}, v{vT+5}")
    a(f"v_lshl_add_u32 v{vER}, v{vT+4}, 4, v{vT+5}"); a(f"v_xor_b32 v{vER+1}, 16, v{vER}")
    a(f"v_add_u32 v{vER+2}, 0x10000, v{vER}"); a(f"v_add_u32 v{vER+3}, 0x10000, v{vER+1}")
    a(f"v_lshlrev_b32 v{vOut}, 11, v{vT+2}"); a(f"v_lshl_add_u32 v{vOut}, v{vT+3}, 4, v{vOut}")
    a(f"s_add_u32 s{sT+4}, s{sT+6}, s{sR0}"); a(f"s_lshl_b32 s{sT+4}, s{sT+4}, 16")
    a(f"s_lshl_b32 s{sT+5}, s{sHBk}, 15"); a(f"s_add_u32 s{sT+4}, s{sT+4}, s{sT+5}")
    a(f"s_lshl_b32 s{sT+5}, s{sT+7}, 14"); a(f"s_add_u32 s{sT+4}, s{sT+4}, s{sT+5}")
    a(f"s_lshl_b32 s{sT+5}, s{sNB}, 7"); a(f"s_add_u32 s{sO}, s{sT+4}, s{sT+5}")
    for i in range(1, 4): a(f"s_add_u32 s{sO+i}, s{sO}, {i*131072}")
    a(f"s_mov_b32 s{sCnt}, 6")
    st(3)
    p2 = merge_waits(pro2)
    for op in p2[:2]: a(op.render())
    st(4)
    for op in p2[2:]: a(op.render())
    st(5)
    a(".p2align 6")
    a.label(f"{name}_loop")
    ls = merge_waits(loop_seq)
    for op in ls[:2]: a(op.render())
    if stamp == 2: st(12, sCnt)
    for op in ls[2:]: a(op.render())
    a(f"s_cbranch_scc0 {name}_loop")
    a.label(f"{name}_fin")
    fs = merge_waits(fin_seq)
    for op in fs[:2]: a(op.render())
    if stamp == 2: st(13)
    nm = 0
    for op in fs[2:]:
        a(op.render())
        if op.kind == "mfma":
            nm += 1
            if stamp == 2 and nm in (62, 80, 113, 160): a("s_waitcnt lgkmcnt(0)"); st({62: 17, 80: 18, 113: 19, 160: 20}[nm])
    ep = merge_waits(epi)
    nb = [i for i, op in enumerate(ep) if op.text == "s_barrier"][0] + 1
    for op in ep[:nb]: a(op.render())
    st(14)
    for op in ep[nb:]: a(op.render())
    st(15)
    if stamp:
        a("s_waitcnt vmcnt(0)")
        st(16)
        a(f"s_lshl_b32 s{sT}, s2, 2"); a(f"s_add_u32 s{sT}, s{sT}, s{sP}"); a(f"s_lshl_b32 s{sT}, s{sT}, 9"); a(f"s_add_u32 s{sT}, s{sT}, {24*MB}")
        a(f"v_lshrrev_b32 v2, 2, v{vL}")
        a(f"buffer_store_dword v7, v2, s[{S_WS}:{S_WS+3}], s{sT} offen")
        a(f"buffer_store_dword v237, v2, s[{S_WS}:{S_WS+3}], s{sT} offen offset:256")
    a.label(f"{name}_end")
    a("s_endpgm")
    a.label(f"{name}_fix")
    a("s_waitcnt vmcnt(0)")
    a(f"s_mov_b64 s[{sFix}:{sFix+1}], -1")
    assert npre <= 8
    a(f"s_mov_b32 s{sT+2}, s{sU}"); a(f"s_mov_b32 s{sT+3}, s{sZ}")
    a(f"s_lshl_b32 s{sT+4}, s2, 2"); a(f"s_add_u32 s{sT+4}, s{sT+4}, s{sP}"); a(f"s_mul_i32 s{sU}, s{sT+4}, {PRIV_STRIDE}")
    a(f"s_add_u32 s{sU}, s{sU}, {PRIV_OFF}"); a(f"s_add_u32 s{sZ}, s{sU}, 196608")
    a(f"s_mov_b32 s{sT+4}, s{sU}")
    for i in range(1, 24):
        a(f"v_readlane_b32 s{sT+5}, v{vSc+1}, {i}"); a("s_nop 0"); a(f"s_min_u32 s{sT}, s{sT}, s{sT+5}")
    a(f"v_subrev_u32 v{vT+8}, s{sT}, v{vSc+1}")
    a(f"v_cmp_eq_u32 vcc, 0, v{vT+8}")
    a(f"v_min_u32 v{vT+8}, 0x3f000000, v{vT+8}"); a(f"v_sub_u32 v{vT+8}, 0x3f800000, v{vT+8}")
    a(f"s_ff1_i32_b64 s{sT+5}, vcc"); a(f"s_min_u32 s{sT+5}, s{sT+5}, 23"); a(f"s_lshl_b32 s{sT+5}, s{sT+5}, 2")
    a(f"v_mov_b32 v{vSc}, s{sT+5}")
    a(f"s_mov_b32 s{sT+6}, 0")
    a.label(f"{name}_fixU")
    a(f"s_mul_hi_u32 s{sT+7}, s{sT+6}, 0x55555556")
    a(f"s_mul_i32 s{sT+8}, s{sT+7}, 3"); a(f"s_sub_u32 s{sT+8}, s{sT+6}, s{sT+8}")
    a(f"s_lshr_b32 s{sT+7}, s{sT+7}, 1"); a(f"s_lshl_b32 s{sT+8}, s{sT+8}, 3"); a(f"s_add_u32 s{sT+7}, s{sT+7}, s{sT+8}")
    a("s_nop 3")
    a(f"v_readlane_b32 s{sT+9}, v{vT+8}, s{sT+7}")
    for f in range(4): a(f"buffer_load_dwordx4 {vr(16+4*f,4)}, v{vL}, s[{S_WS}:{S_WS+3}], s{sT+2} offen offset:{f*1024}")
    a(f"v_cvt_f16_f32 v{vT+9}, s{sT+9}"); a("s_nop 0"); a(f"v_pack_b32_f16 v{vT+9}, v{vT+9}, v{vT+9}")
    a("s_waitcnt vmcnt(0)")
    for i in range(16): a(f"v_pk_mul_f16 v{16+i}, v{16+i}, v{vT+9}")
    for f in range(4): a(f"buffer_store_dwordx4 {vr(16+4*f,4)}, v{vL}, s[{S_WS}:{S_WS+3}], s{sT+4} offen offset:{f*1024}")
    a("s_waitcnt vmcnt(0)")
    a(f"s_add_u32 s{sT+2}, s{sT+2}, 4096"); a(f"s_add_u32 s{sT+4}, s{sT+4}, 4096"); a(f"s_add_u32 s{sT+6}, s{sT+6}, 1")
    a(f"s_cmp_lt_u32 s{sT+6}, 48"); a(f"s_cbranch_scc1 {name}_fixU")
    a(f"s_add_u32 s{sT+6}, s{sP}, 1"); a(f"s_bfe_u32 s{sT+6}, s{sT+6}, 0x10001"); a(f"s_lshl_b32 s{sT+6}, s{sT+6}, 3")
    a(f"s_add_u32 s{sT+10}, s{sT+6}, 8")
    a.label(f"{name}_fixZ")
    a(f"s_lshr_b32 s{sT+7}, s{sT+6}, 1"); a(f"s_add_u32 s{sT+7}, s{sT+7}, 8")
    a("s_nop 3")
    a(f"v_readlane_b32 s{sT+9}, v{vT+8}, s{sT+7}")
    for f in range(4): a(f"buffer_load_dwordx4 {vr(16+4*f,4)}, v{vL}, s[{S_WS}:{S_WS+3}], s{sT+3} offen offset:{f*1024}")
    a("s_waitcnt vmcnt(0)")
    for i in range(16):
        a(f"v_lshlrev_b32 v{vT+9}, 16, v{16+i}"); a(f"v_and_b32 v{vT+10}, 0xffff0000, v{16+i}")
        a(f"v_mul_f32 v{vT+9}, s{sT+9}, v{vT+9}"); a(f"v_mul_f32 v{vT+10}, s{sT+9}, v{vT+10}")
        a(f"v_cvt_pk_bf16_f32 v{16+i}, v{vT+9}, v{vT+10}")
    for f in range(4): a(f"buffer_store_dwordx4 {vr(16+4*f,4)}, v{vL}, s[{S_WS}:{S_WS+3}], s{sT+4} offen offset:{f*1024}")
    a("s_waitcnt vmcnt(0)")
    a(f"s_add_u32 s{sT+3}, s{sT+3}, 4096"); a(f"s_add_u32 s{sT+4}, s{sT+4}, 4096"); a(f"s_add_u32 s{sT+6}, s{sT+6}, 1")
    a(f"s_cmp_lt_u32 s{sT+6}, s{sT+10}"); a(f"s_cbranch_scc1 {name}_fixZ")
    a(f"s_mul_i32 s{sW}, s{sP}, 5440"); a(f"s_add_u32 s{sW}, s{sW}, 0x10000")
    a(f"s_branch {name}_reload")
    kernel_desc(a, name, 512, 102, 256)
    return LB, FB

if __name__ == "__main__":
    import sys
    a = Asm()
    a("; @launch kernel=k2_kernel grid=(256,1,1) block=(256,1,1) lds=131072")
    a('.amdgcn_target "amdgcn-amd-amdhsa--gfx950"')
    opts = {}
    out = "k2_only.s"
    for x in sys.argv[1:]:
        if x.endswith(".s"): out = x
        elif "=" in x:
            k, v = x.split("="); opts[k] = float(v) if "." in v else int(v)
    LB, FB = gen_k2(a, "k2_kernel", stamp=(2 if "stamp2" in sys.argv else 1 if "stamp" in sys.argv else 0), opts=opts)
    open(out, "w").write(a.text())
    print("loop gap load:", LB.hist)
    print("final gap load:", FB.hist)
```

```python
from asmlib import *
from sched import *
from layouts import *

LOG2E = 1.4426950408889634
def f32bits(x):
    import struct
    return struct.unpack("<I", struct.pack("<f", x))[0]

S_A, S_B, S_X, S_F, S_WS = 4, 8, 12, 16, 20
sW_, sJ, sXc = 24, 25, 26
sT = 28

def gen_k1(a, name, stamp=0, opts=None):
    opts = opts or {}
    kernel_begin(a, name)
    def st(k):
        if stamp == 3:
            MID = {0: 76, 4: 78, 5: 80, 6: 82, 7: 84, 8: 86, 15: 88, 3: 90, 2: 92}
            if k in MID and (k in (0, 15) or opts.get("mid")): a(f"s_memrealtime s[{MID[k]}:{MID[k]+1}]")
            if k == 15:
                a("s_waitcnt lgkmcnt(0)")
                for kk, r in MID.items(): a(f"v_writelane_b32 v250, s{r}, {kk}")
            return
        if not stamp: return
        a("s_memrealtime s[84:85]"); a("s_memtime s[86:87]"); a("s_waitcnt lgkmcnt(0)")
        a(f"v_writelane_b32 v250, s84, {k}"); a(f"v_writelane_b32 v251, s86, {k}")
    def st_flush():
        if not stamp: return
        a("s_waitcnt vmcnt(0)"); st(15)
        a(f"s_lshl_b32 s{sT}, s2, 3"); a(f"s_add_u32 s{sT}, s{sT}, s{sW_}"); a(f"s_lshl_b32 s{sT}, s{sT}, 9"); a(f"s_add_u32 s{sT}, s{sT}, {25*MB}")
        a("v_and_b32 v2, 63, v0"); a("v_lshlrev_b32 v2, 2, v2")
        a(f"buffer_store_dword v250, v2, s[{S_WS}:{S_WS+3}], s{sT} offen")
        a(f"buffer_store_dword v251, v2, s[{S_WS}:{S_WS+3}], s{sT} offen offset:256")
    a("s_cmp_ge_u32 s2, 256")
    a(f"s_cbranch_scc1 {name}_end")
    st(0)
    a(f"s_load_dwordx2 s[{S_WS}:{S_WS+1}], s[0:1], 64")
    a(f"s_load_dwordx2 s[{S_X}:{S_X+1}], s[0:1], 8")
    if opts.get("icw", 2) == 2:
        a("s_getpc_b64 s[74:75]")
        a.label(f"{name}_pc")
        a("s_lshr_b32 s73, s2, 3"); a("s_lshl_b32 s73, s73, 10")
        a("v_lshl_add_u32 v2, v0, 7, s73"); a(f"v_min_u32 v2, cn_code_end-{name}_pc-4, v2")
        a("v_cmp_gt_u32 vcc, 8, v0"); a("s_and_saveexec_b64 s[72:73], vcc"); a(f"s_cbranch_execz {name}_nic")
        a("global_load_dword v215, v2, s[74:75]")
        a.label(f"{name}_nic")
        a("s_mov_b64 exec, s[72:73]")
    a("v_lshrrev_b32 v1, 6, v0")
    a(f"s_and_b32 s{sXc}, s2, 7")
    a(f"v_readfirstlane_b32 s{sW_}, v1")
    a(f"s_lshr_b32 s{sJ}, s2, 3")
    a("v_and_b32 v1, 63, v0")
    a(f"s_mov_b32 s{S_WS+2}, 0x10000000"); a(f"s_mov_b32 s{S_WS+3}, 0x20000")
    a(f"s_mov_b32 s{S_X+2}, {8*MB}"); a(f"s_mov_b32 s{S_X+3}, 0x20000")
    a(f"s_cmp_ge_u32 s{sJ}, 28"); a(f"s_cbranch_scc1 {name}_pf")
    a(f"s_cmp_ge_u32 s{sJ}, 16"); a(f"s_cbranch_scc1 {name}_c")
    gen_a(a, name, st, opts)
    st_flush()
    a("s_endpgm")
    a.label(f"{name}_c")
    helper_touch(a, name + "_c", "c", opts)
    if opts.get("noc"): a("s_waitcnt vmcnt(0) lgkmcnt(0)"); st(1); st(2); st(4); st(8)
    else: gen_c(a, name, st, opts)
    st_flush()
    a("s_endpgm")
    a.label(f"{name}_pf")
    if opts.get("icw", 2) == 1:
        a("s_getpc_b64 s[74:75]")
        a.label(f"{name}_pc")
        a(f"s_sub_u32 s74, s74, {name}_pc-{name}"); a("s_subb_u32 s75, s75, 0")
        a(f"s_sub_u32 s73, s{sJ}, 28"); a(f"s_lshl_b32 s73, s73, 3"); a(f"s_add_u32 s73, s73, s{sW_}"); a("s_lshl_b32 s73, s73, 11")
        a("v_lshlrev_b32 v2, 5, v1"); a("v_add_u32 v2, s73, v2"); a(f"v_min_u32 v2, cn_code_end-{name}-4, v2")
        a("global_load_dword v3, v2, s[74:75]")
    helper_touch(a, name + "_p", "p", opts)
    if opts.get("xft", 0) == 2:
        a(f"s_load_dwordx2 s[{S_F}:{S_F+1}], s[0:1], 0"); a(f"s_mov_b32 s{S_F+2}, {8*MB}"); a(f"s_mov_b32 s{S_F+3}, 0x20000")
        a(f"s_sub_u32 s72, s{sJ}, 28"); a(f"s_lshl_b32 s74, s{sXc}, 2"); a("s_add_u32 s72, s72, s74"); a("s_lshl_b32 s72, s72, 18")
        a(f"s_lshl_b32 s74, s{sW_}, 15"); a("s_add_u32 s72, s72, s74"); a("s_waitcnt lgkmcnt(0)"); a("s_barrier")
        for i in range(4): a(f"buffer_load_dword v213, v210, s[{S_F}:{S_F+3}], s72 offen"); a("s_add_u32 s72, s72, 8192")
    else: xf_touch(a, opts)
    a("s_waitcnt vmcnt(0) lgkmcnt(0)")
    st_flush()
    a.label(f"{name}_end")
    a("s_endpgm")
    kernel_desc(a, name, 256 if stamp else 216, 100, 256 if stamp else 216)

def gen_a(a, name, st, opts):
    sR, sSo, sM, sWm, sS, sM2 = sT, sT+3, sT+4, sT+5, sT+7, sT+6
    sU0 = sT+8
    vC = 2
    vW = 4
    vTr = 8
    vCa, vCb, vXa, vXb = 12, 13, 14, 15
    vAcc = 16
    Wf = [80, 96]; Cf = 112; sel = [128, 132]
    acc = lambda T, tile: vr(vAcc + (T*4+tile)*4, 4)
    a(f"s_load_dwordx2 s[{S_A}:{S_A+1}], s[0:1], 16")
    a(f"s_load_dwordx2 s[{S_B}:{S_B+1}], s[0:1], 24")
    a(f"s_load_dwordx2 s[{S_F}:{S_F+1}], s[0:1], 0")
    a(f"s_lshl_b32 s{sR}, s{sXc}, 4"); a(f"s_add_u32 s{sR}, s{sR}, s{sJ}")
    a(f"s_mov_b32 s{S_A+2}, {8*MB}"); a(f"s_mov_b32 s{S_A+3}, 0x20000")
    a(f"s_mov_b32 s{S_B+2}, {MB//2}"); a(f"s_mov_b32 s{S_B+3}, 0x20000")
    a(f"s_mov_b32 s{S_F+2}, {8*MB}"); a(f"s_mov_b32 s{S_F+3}, 0x20000")
    t0, t1, t2, t3 = 136, 137, 138, 139
    a(f"v_lshrrev_b32 v{t0}, 3, v1")
    a(f"v_and_b32 v{t1}, 7, v1")
    a(f"v_lshrrev_b32 v{t2}, 4, v1")
    a(f"v_xor_b32 v{t3}, v{t1}, v{t2}")
    a(f"v_lshlrev_b32 v{vC}, 11, v{t0}"); a(f"v_lshl_add_u32 v{vC}, v{t3}, 4, v{vC}")
    a(f"v_xor_b32 v{vC+1}, 64, v{vC}"); a(f"v_add_u32 v{vC+1}, 16384, v{vC+1}")
    a(f"s_lshl_b32 s{sU0+2}, s{sR}, 16"); a(f"s_lshl_b32 s{sU0}, s{sW_}, 7"); a(f"s_add_u32 s{sSo}, s{sU0+2}, s{sU0}")
    NSL = opts.get("nsl", 3)
    a(f"s_mul_i32 s{sWm}, s{sW_}, {NSL*4096}"); a(f"s_add_u32 s{sWm}, s{sWm}, 65536")
    if opts.get("prio"):
        a(f"s_cmp_lt_u32 s{sW_}, 4"); a(f"s_cbranch_scc1 {name}_np"); a("s_setprio 1"); a.label(f"{name}_np")
    a(f"s_and_b32 s{sU0+1}, s{sW_}, 3"); a(f"s_lshr_b32 s{sU0+3}, s{sW_}, 2")
    a(f"s_lshl_b32 s{sM}, s{sU0+1}, 13"); a(f"s_lshl_b32 s{sU0+4}, s{sU0+3}, 12"); a(f"s_add_u32 s{sM}, s{sM}, s{sU0+4}")
    a(f"s_lshl_b32 s{sM2}, s{sU0+1}, 7"); a(f"s_lshl_b32 s{sU0+4}, s{sU0+3}, 15"); a(f"s_add_u32 s{sM2}, s{sM2}, s{sU0+4}"); a(f"s_add_u32 s{sM2}, s{sM2}, s{sU0+2}")
    a(f"v_and_b32 v{t3}, 1, v{t2}"); a(f"v_lshlrev_b32 v{t3}, 1, v{t3}"); a(f"v_xor_b32 v{t3}, v{t3}, v{t1}")
    a(f"v_lshlrev_b32 v{vW}, 10, v{t0}"); a(f"v_lshl_add_u32 v{vW}, v{t3}, 4, v{vW}"); a(f"v_add_u32 v{vW}, s{sU0}, v{vW}")
    a(f"v_xor_b32 v{vW+1}, 64, v{vW}"); a(f"v_add_u32 v{vW+1}, 7168, v{vW+1}")
    a(f"v_add_u32 v{vW+2}, 14336, v{vW}"); a(f"v_add_u32 v{vW+3}, 14336, v{vW+1}")
    def c_dma(half, tag):
        ops = []
        for par in range(2):
            for th in range(2):
                ops += [other(f"s_add_u32 m0, s{sM}, {half*32768+par*2048+th*1024}"),
                        other(f"s_add_u32 s{sU0+1}, s{sM2}, {half*512+par*1024}"),
                        vmem(f"buffer_load_dwordx4 v{vC+th}, s[{S_A}:{S_A+3}], s{sU0+1} offen lds", tag)]
        return ops
    ORDER = list(range(16))
    xpos = opts.get("xpos", 14)
    ORDER = ORDER[:xpos] + ["xa", "xb"] + ORDER[xpos:]
    NS = len(ORDER)
    def dma(i):
        k = ORDER[i]; slot = i % NSL
        if k in ("xa", "xb"):
            hb = 0 if k == "xa" else 1
            ops = []
            for par in range(2):
                for th in range(2):
                    ops += [other(f"s_add_u32 m0, s{sWm}, {slot*4096+par*2048+th*1024}"),
                            other(f"s_add_u32 s{sU0+1}, s{sSo}, {hb*32768+par*1024}"),
                            vmem(f"buffer_load_dwordx4 v{vC+th}, s[{S_X}:{S_X+3}], s{sU0+1} offen lds", f"D{i}")]
            return ops
        return [other(f"s_add_u32 m0, s{sWm}, {slot*4096}"), other(f"s_mov_b32 s{sS}, {k*32768}")] + \
               [vmem(f"buffer_load_dwordx4 v{vW+q}, s[{S_B}:{S_B+3}], s{sS} offen offset:{q*1024} lds", f"D{i}") for q in range(4)]
    def frag_reads(i):
        k = ORDER[i]; slot = i % NSL; dst = Wf[i & 1]
        if k in ("xa", "xb"):
            return [ds(f"ds_read_b128 {vr(dst+8*par+4*h,4)}, v{vXa+h} offset:{slot*4096+par*2048}", f"f{i}") for par in range(2) for h in range(2)]
        return [ds(f"ds_read_b64_tr_b16 {vr(dst+4*T+2*t,2)}, v{vTr+T} offset:{slot*4096+t*512}", f"f{i}") for T in range(4) for t in range(2)]
    def c_read(tile, k): return ds(f"ds_read_b128 {vr(Cf+4*tile,4)}, v{vCa+(k&1)} offset:{(k>>1)*8192+tile*2048}", f"cr{tile}")
    a("s_waitcnt lgkmcnt(0)")
    st(1)
    pro = c_dma(0, "C0") + [other("s_barrier")] + dma(0)
    for op in pro: a(op.render())
    a(f"v_and_b32 v{t0}, 15, v1")
    a(f"v_lshrrev_b32 v{t1}, 1, v{t0}")
    a(f"v_xor_b32 v{t1}, v{t1}, v{t2}")
    a(f"v_lshlrev_b32 v{vCa}, 7, v{t0}"); a(f"v_lshl_add_u32 v{vCa}, v{t1}, 4, v{vCa}")
    a(f"v_xor_b32 v{vCb}, 64, v{vCa}"); a(f"v_add_u32 v{vXa}, s{sWm}, v{vCa}"); a(f"v_add_u32 v{vXb}, s{sWm}, v{vCb}")
    a(f"v_lshrrev_b32 v{t1}, 2, v{t0}")
    a(f"v_lshl_add_u32 v{t3}, v{t2}, 3, v{t1}")
    a(f"v_lshlrev_b32 v{vTr}, 7, v{t3}")
    a(f"v_and_b32 v{t3}, 3, v{t0}"); a(f"v_lshl_add_u32 v{vTr}, v{t3}, 3, v{vTr}")
    a(f"v_lshrrev_b32 v{t1}, 1, v{t1}"); a(f"v_and_b32 v{t3}, 1, v{t2}"); a(f"v_lshl_add_u32 v{t1}, v{t3}, 1, v{t1}")
    a(f"v_lshl_add_u32 v{vTr}, v{t1}, 5, v{vTr}"); a(f"v_add_u32 v{vTr}, s{sWm}, v{vTr}")
    for T in range(1, 4): a(f"v_xor_b32 v{vTr+T}, {T*32}, v{vTr}")
    a(f"v_lshrrev_b32 v{t1}, 3, v{t0}"); a(f"v_sub_u32 v{t1}, v{t2}, v{t1}")
    a(f"v_bfe_u32 v{t3}, v{t0}, 1, 2"); a(f"v_lshl_add_u32 v{t1}, v{t1}, 2, v{t3}")
    a(f"v_and_b32 v{t3}, 1, v{t0}"); a(f"v_lshlrev_b32 v{t3}, 4, v{t3}"); a(f"v_mov_b32 v{t0}, 0x3f80"); a(f"v_lshlrev_b32 v{t3}, v{t3}, v{t0}")
    for hh in range(2):
        for d in range(4):
            a(f"v_cmp_eq_u32 vcc, {8*hh+d}, v{t1}"); a("s_nop 1"); a(f"v_cndmask_b32 v{sel[hh]+d}, 0, v{t3}, vcc")
    def step(i):
        k = ORDER[i]; slot = i & 1
        isx = k in ("xa", "xb")
        if isx:
            hb = 0 if k == "xa" else 1
            mm = [mfma(f"v_mfma_f32_16x16x32_bf16 {acc(T,2*hb+par)}, {vr(sel[T&1],4)}, {vr(Wf[slot]+8*par+4*(T>>1),4)}, {acc(T,2*hb+par)}") for par in range(2) for T in range(4)]
        else:
            c0 = (lambda T, tile: "0") if i == 0 else acc
            mm = [mfma(f"v_mfma_f32_16x16x32_bf16 {acc(T,tile)}, {vr(Wf[slot]+4*T,4)}, {vr(Cf+4*tile,4)}, {c0(T,tile)}") for tile in range(4) for T in range(4)]
        B = Block(mm); n = len(mm)
        head = [wait(lg=[f"f{i}"] + ([] if isx else ["cr0"]))]
        if k == 7: head += [wait(vm="C1"), other("s_barrier")]
        elif opts.get("abar") and i and i % opts["abar"] == 0: head += [other("s_barrier")]
        B.fix(-1, head)
        if not isx:
            for tile in range(1, 4): B.fix(4*tile-1, wait(lg=f"cr{tile}"))
        ops = dma(i+NSL) if i + NSL < NS else []
        if i == opts.get("c2pos", 1): ops = ops + c_dma(1, "C1")
        if i == NS-2 and opts.get("touch", 0):
            ops = [other(f"v_lshlrev_b32 v{t0}, 7, v1"), other(f"s_lshl_b32 s{sU0}, s{sW_}, 13"), other(f"s_add_u32 s{sU0}, s{sU0}, s{sU0+2}"),
                   vmem(f"buffer_load_dword v200, v{t0}, s[{S_F}:{S_F+3}], s{sU0} offen", "touch")]
        sc = n/16
        for q, op in enumerate(ops): B.put(q*0.6*sc*(6/max(6, len(ops))), op)
        if i + 1 < NS:
            B.put(5*sc, wait(vm=f"D{i+1}"))
            for q, op in enumerate(frag_reads(i+1)): B.put((5.5+q)*sc, op)
        if not isx and k < 15:
            for tile in range(4): B.put(4*tile+3.9, c_read(tile, k+1))
        return B.layout(cap=2, slack=1)
    pre = [wait(vm="C0"), other("s_barrier")] + dma(1) + [c_read(t, 0) for t in range(4)] + [wait(vm="D0")] + frag_reads(0) + sum([dma(i) for i in range(2, NSL)], [])
    steps = sum([step(i) for i in range(NS)], [])
    resolve([pro, pre, steps])
    st(2)
    if opts.get("fine"):
        a("s_waitcnt vmcnt(7)"); st(9); a("s_waitcnt vmcnt(4)"); st(10); a("s_waitcnt vmcnt(0)"); st(11)
    for op in merge_waits(pre): a(op.render())
    st(3)
    for op in merge_waits(steps):
        if opts.get("nomfma") and op.kind == "mfma": continue
        if opts.get("nocr") and op.kind == "ds" and op.tag.startswith("cr"): continue
        if opts.get("nods") and op.kind == "ds": continue
        a(op.render())
    st(4)
    A = lambda T, tile, j: vAcc + (T*4+tile)*4 + j
    a("s_nop 7")
    vE = 4; vH = 5
    def part_stats():
        S_ = [6, 7, 8, 9]; Q_ = [10, 11, 12, 13]; M_ = [112, 114, 116, 118]; tp = 120
        TS = [96, 98, 100, 102]; TD = [104, 106, 108, 110]
        for tile in range(4): a(f"v_pk_add_f32 {vr(TS[tile],2)}, {vr(A(0,tile,0),2)}, {vr(A(0,tile,2),2)}")
        for tile in range(4): a(f"v_pk_mul_f32 {vr(TD[tile],2)}, {vr(A(0,tile,0),2)}, {vr(A(0,tile,0),2)}")
        for T in range(4):
            for j in (0, 2):
                if T >= 1:
                    for tile in range(4): a(f"v_pk_add_f32 {vr(TS[tile],2)}, {vr(TS[tile],2)}, {vr(A(T,tile,j),2)}")
                if (T, j) != (0, 0):
                    for tile in range(4): a(f"v_pk_fma_f32 {vr(TD[tile],2)}, {vr(A(T,tile,j),2)}, {vr(A(T,tile,j),2)}, {vr(TD[tile],2)}")
        for tile in range(4): a(f"v_add_f32 v{S_[tile]}, v{TS[tile]}, v{TS[tile]+1}")
        for tile in range(4): a(f"v_add_f32 v{Q_[tile]}, v{TD[tile]}, v{TD[tile]+1}")
        for tile in range(4): a(f"v_mul_f32 v{M_[tile]}, 0xbd800000, v{S_[tile]}")
        for tile in range(4): a(f"v_fmac_f32 v{Q_[tile]}, v{M_[tile]}, v{S_[tile]}")
        def merge(x, y, swap, n):
            a("s_nop 1")
            a(f"{swap} v{S_[x]}, v{S_[y]}"); a(f"{swap} v{Q_[x]}, v{Q_[y]}")
            a("s_nop 0")
            a(f"v_sub_f32 v{tp}, v{S_[x]}, v{S_[y]}"); a(f"v_add_f32 v{S_[x]}, v{S_[x]}, v{S_[y]}")
            a(f"v_mul_f32 v{tp+1}, {hex(f32bits(1.0/(2*n)))}, v{tp}"); a(f"v_add_f32 v{Q_[x]}, v{Q_[x]}, v{Q_[y]}")
            a(f"v_fmac_f32 v{Q_[x]}, v{tp}, v{tp+1}")
        merge(0, 2, "v_permlane32_swap_b32", 16); merge(1, 3, "v_permlane32_swap_b32", 16); merge(0, 1, "v_permlane16_swap_b32", 32)
        a(f"v_mov_b32 v7, v{Q_[0]}")
        a(f"v_lshlrev_b32 v8, 3, v1"); a(f"v_add_u32 v9, s{sWm}, v8")
        a(f"ds_write_b64 v9, v[6:7]")
        a(f"v_add_u32 v8, 65536, v8"); a(f"v_add_u32 v14, {65536+4*NSL*4096}, v8") if False else None
        a(f"v_add_u32 v14, {4*NSL*4096}, v8")
        st(5)
    def part_e():
        a(f"v_lshlrev_b32 v{vE}, 4, v1")
        a(f"s_lshr_b32 s{sU0}, s{sR}, 3"); a(f"s_lshl_b32 s{sU0}, s{sU0}, 19")
        a(f"s_and_b32 s{sU0+1}, s{sR}, 7"); a(f"s_lshl_b32 s{sU0+1}, s{sU0+1}, 10"); a(f"s_add_u32 s{sU0}, s{sU0}, s{sU0+1}")
        a(f"s_and_b32 s{sU0+1}, s{sW_}, 3"); a(f"s_lshl_b32 s{sU0+1}, s{sU0+1}, 14"); a(f"s_add_u32 s{sU0}, s{sU0}, s{sU0+1}")
        a(f"s_add_u32 s{sU0}, s{sU0}, {E_OFF}")
        P = [140+4*i for i in range(8)]
        a(f"s_cmp_ge_u32 s{sW_}, 4"); a(f"s_cbranch_scc1 {name}_eb")
        a("s_nop 1")
        k = 0
        for hb in range(2):
            for hp in range(2):
                for par in range(2):
                    d = P[k % 8]; k += 1; n = "-" if par else ""
                    for q in range(4):
                        T = 2*hp + (q >> 1); j = 2*(q & 1)
                        a(f"v_cvt_pk_bf16_f32 v{d+q}, {n}v{A(T,2*hb+par,j)}, {n}v{A(T,2*hb+par,j+1)}")
                    a(f"s_add_u32 s{sU0+1}, s{sU0}, {hb*262144 + (3 if par else 0)*65536 + hp*8192}")
                    a(f"buffer_store_dwordx4 {vr(d,4)}, v{vE}, s[{S_WS}:{S_WS+3}], s{sU0+1} offen")
        a(f"s_branch {name}_ej")
        a.label(f"{name}_eb")
        a("s_nop 1")
        k = 0
        for hb in range(2):
            for hp in range(2):
                for sg in range(2):
                    d = P[k % 8]; k += 1
                    for q in range(4):
                        T = 2*hp + (q >> 1); j = 2*(q & 1)
                        neg = " neg_lo:[0,1] neg_hi:[0,1]" if sg else ""
                        a(f"v_pk_add_f32 v[124:125], {vr(A(T,2*hb,j),2)}, {vr(A(T,2*hb+1,j),2)}{neg}")
                        a(f"v_cvt_pk_bf16_f32 v{d+q}, v124, v125")
                    a(f"s_add_u32 s{sU0+1}, s{sU0}, {hb*262144 + (1+sg)*65536 + hp*8192}")
                    a(f"buffer_store_dwordx4 {vr(d,4)}, v{vE}, s[{S_WS}:{S_WS+3}], s{sU0+1} offen")
        a.label(f"{name}_ej")
        st(6)
    mode = opts.get("efirst", 2)
    if mode == 1: part_e(); part_stats()
    elif mode == 0: part_stats(); part_e()
    else:
        n0 = len(a.lines); part_stats(); SL = a.lines[n0:]; del a.lines[n0:]
        part_e(); EL = a.lines[n0:]; del a.lines[n0:]
        cut = [i for i, l in enumerate(SL) if l.startswith("s_nop 1")][0]
        SA, SB = SL[:cut], SL[cut:]
        k = 0
        for l in EL:
            a(l)
            if l.startswith("buffer_store"):
                q = k % 8; k += 1
                if q < 7:
                    for x in SA[q*len(SA)//7:(q+1)*len(SA)//7]: a(x)
        for x in SB: a(x)
    a("s_waitcnt lgkmcnt(0)"); a("s_barrier")
    for i in range(8): a(f"ds_read_b64 {vr(80+2*i,2)}, v{8 if i < 4 else 14} offset:{(i&3)*NSL*4096}")
    a(f"v_and_b32 v6, 15, v1"); a(f"v_lshrrev_b32 v7, 4, v1")
    a(f"v_lshrrev_b32 v9, 1, v6"); a(f"v_and_b32 v9, 2, v9"); a(f"v_xor_b32 v9, v9, v7")
    a(f"v_lshlrev_b32 v{vH}, 6, v6"); a(f"v_lshl_add_u32 v{vH}, v9, 4, v{vH}")
    a(f"s_lshl_b32 s{sU0}, s{sR}, 12"); a(f"s_lshl_b32 s{sU0+1}, s{sW_}, 20"); a(f"s_add_u32 s{sU0}, s{sU0}, s{sU0+1}"); a(f"s_add_u32 s{sU0}, s{sU0}, {H_OFF}")
    a("s_waitcnt lgkmcnt(0)")
    for i in range(4): a(f"v_pk_add_f32 v[{96+2*i}:{97+2*i}], v[{80+4*i}:{81+4*i}], v[{82+4*i}:{83+4*i}]")
    a("v_pk_add_f32 v[96:97], v[96:97], v[98:99]"); a("v_pk_add_f32 v[100:101], v[100:101], v[102:103]")
    a("v_pk_add_f32 v[6:7], v[96:97], v[100:101]")
    a("v_mul_f32 v8, 0x3e000000, v6")
    for i in range(8): a(f"v_sub_f32 v{96+i}, v{80+2*i}, v8")
    a("v_pk_mul_f32 v[10:11], v[96:97], v[96:97]"); a("v_pk_mul_f32 v[12:13], v[98:99], v[98:99]")
    a("v_pk_fma_f32 v[10:11], v[100:101], v[100:101], v[10:11]"); a("v_pk_fma_f32 v[12:13], v[102:103], v[102:103], v[12:13]")
    a("v_pk_add_f32 v[10:11], v[10:11], v[12:13]"); a("v_add_f32 v9, v10, v11")
    a("v_fmac_f32 v7, 0x3c800000, v9")
    a(f"v_mov_b32 v10, {hex(f32bits(1e-5))}")
    a("v_fmac_f32 v10, 0x3b000000, v7")
    a("v_rsq_f32 v10, v10")
    a("v_mul_f32 v6, 0x3b000000, v6")
    a("v_mov_b32 v8, v6"); a("v_mov_b32 v12, v10"); a("s_nop 0")
    a("v_permlane32_swap_b32 v6, v8"); a("v_permlane32_swap_b32 v10, v12")
    a("v_mov_b32 v7, v6"); a("v_mov_b32 v9, v8"); a("v_mov_b32 v11, v10"); a("v_mov_b32 v13, v12")
    a("v_permlane16_swap_b32 v6, v7"); a("v_permlane16_swap_b32 v8, v9"); a("s_nop 0") if False else None
    a("v_permlane16_swap_b32 v10, v11"); a("v_permlane16_swap_b32 v12, v13")
    K = [80, 82, 84, 86]
    for tile in range(4): a(f"v_mul_f32 v{K[tile]}, {hex(f32bits(-LOG2E))}, v{10+tile}")
    for tile in range(4): a(f"v_mul_f32 v{K[tile]+1}, -v{6+tile}, v{K[tile]}")
    st(7)
    D = [96, 100, 104, 108]; kk = 0
    r8 = opts.get("hround", 1)
    if r8: a("s_mov_b32 s60, 0x00040004")
    for tile in range(4):
        k = K[tile]; hb, par = tile >> 1, tile & 1
        for hp in range(2):
            d = D[kk % 4]; kk += 1
            E2 = [112, 114, 116, 118] if False else [6, 8, 10, 12]
            for q in range(4):
                T = 2*hp + (q >> 1); j = 2*(q & 1); r = vr(A(T, tile, j), 2); e = E2[q]
                a(f"v_pk_fma_f32 {r}, {r}, {vr(k,2)}, {vr(k,2)} op_sel:[0,0,1] op_sel_hi:[1,0,1]")
                a(f"v_exp_f32 v{e}, v{A(T,tile,j)}"); a(f"v_exp_f32 v{e+1}, v{A(T,tile,j)+1}")
            for q in range(4):
                e = E2[q]
                a(f"v_pk_add_f32 v[{e}:{e+1}], v[{e}:{e+1}], 1.0 op_sel_hi:[1,0]")
                a(f"v_rcp_f32 v{e}, v{e}"); a(f"v_rcp_f32 v{e+1}, v{e+1}")
            for q in range(4):
                T = 2*hp + (q >> 1); j = 2*(q & 1); r = vr(A(T, tile, j), 2); e = E2[q]
                a(f"v_pk_mul_f32 v[{e}:{e+1}], v[{e}:{e+1}], {r}")
                a(f"v_cvt_pk_f16_f32 v{d+q}, v{e}, v{e+1}")
                if r8: a(f"v_pk_add_u16 v{d+q}, v{d+q}, s60"); a(f"v_and_b32 v{d+q}, 0xfff8fff8, v{d+q}")
            a(f"s_add_u32 s{sU0+1}, s{sU0}, {hp*524288 + par*2048 + hb*1024}")
            a(f"buffer_store_dwordx4 {vr(d,4)}, v{vH}, s[{S_WS}:{S_WS+3}], s{sU0+1} offen")
    st(8)

def xf_touch(a, opts):
    if opts.get("xft", 0) != 1: return
    a(f"s_load_dwordx2 s[{S_F}:{S_F+1}], s[0:1], 0"); a(f"s_mov_b32 s{S_F+2}, {8*MB}"); a(f"s_mov_b32 s{S_F+3}, 0x20000")
    a(f"s_sub_u32 s72, s{sJ}, 16"); a(f"s_lshl_b32 s74, s{sXc}, 4"); a("s_add_u32 s72, s72, s74"); a("s_lshl_b32 s72, s72, 16")
    a(f"s_lshl_b32 s74, s{sW_}, 13"); a("s_add_u32 s72, s72, s74"); a("v_lshlrev_b32 v210, 7, v1")
    a("s_waitcnt lgkmcnt(0)")
    a(f"buffer_load_dword v213, v210, s[{S_F}:{S_F+3}], s72 offen")

def helper_touch(a, name, role, opts):
    duties = [("W", 16, 0, opts.get("nWa", 1), 1), ("W", 48, 131072, opts.get("nWb", 3), 0), ("C", 64, 0, opts.get("nC", 4), 0), ("X", 128, 0, opts.get("nX", 4), 0)]
    a(f"s_load_dwordx4 s[64:67], s[0:1], 16")
    a("v_lshlrev_b32 v210, 7, v1")
    a("v_and_b32 v211, 3, v1"); a("v_lshrrev_b32 v212, 2, v1"); a("v_lshlrev_b32 v211, 7, v211"); a("v_lshl_add_u32 v211, v212, 10, v211"); a("v_add_u32 v211, 512, v211")
    a(f"s_sub_u32 s72, s{sJ}, {16 if role == 'c' else 28}")
    a(f"s_lshl_b32 s73, s{sXc}, 20")
    a("s_waitcnt lgkmcnt(0)")
    a("s_mov_b32 s68, s66"); a("s_mov_b32 s69, s67"); a(f"s_mov_b32 s70, {MB//2}"); a("s_mov_b32 s71, 0x20000")
    a(f"s_mov_b32 s66, {8*MB}"); a("s_mov_b32 s67, 0x20000")
    rot = 0
    for di, (src, tot, off, nc, wt) in enumerate(duties):
        assert (tot - 12*nc) % 4 == 0 and tot >= 12*nc
        n = nc if role == "c" else (tot - 12*nc)//4
        first = 0 if role == "c" else 12*nc
        sh = 14 if src == "C" else 13
        srd, va = {"W": (68, 210), "C": (64, 211), "X": (S_X, 210)}[src]
        if n:
            a(f"s_sub_u32 s74, s{sW_}, {rot}"); a("s_and_b32 s74, s74, 7")
            a(f"s_mul_i32 s75, s72, {n}"); a("s_add_u32 s75, s75, s74"); a(f"s_lshl_b32 s75, s75, {sh}")
            a(f"s_add_u32 s75, s75, {off + (first << sh)}")
            if src != "W": a("s_add_u32 s75, s75, s73")
            for i in range((n+7)//8):
                part = n - 8*i < 8
                if part: a(f"s_cmp_ge_u32 s74, {n-8*i}"); a(f"s_cbranch_scc1 {name}_h{di}")
                a(f"buffer_load_dword v{213+(i&1)}, v{va}, s[{srd}:{srd+3}], s75 offen")
                if not part and 8*(i+1) < n: a(f"s_add_u32 s75, s75, {8 << sh}")
            if wt: a("s_waitcnt vmcnt(0)")
            if n % 8: a.label(f"{name}_h{di}")
            rot = (rot + n) & 7
            a("s_barrier")

def gen_c(a, name, st, opts):
    sDi, sNq, sCh, sAo, sBo, sZc, sM = sT, sT+1, sT+2, sT+3, sT+4, sT+5, sT+6
    sU0 = sT+8
    vA = 2
    vB = 5
    vAr = 8
    vBr = 10
    vZr = 12
    vAcc = 16
    vZf = 64
    Af = [72, 96]; Bf = [120 - 0, 0]
    SLOT = 40960
    acc = lambda dj, kt, nt: vr(vAcc + ((dj*2+kt)*2+nt)*4, 4)
    a(f"s_load_dwordx2 s[{S_A}:{S_A+1}], s[0:1], 40")
    a(f"s_load_dwordx2 s[{S_B}:{S_B+1}], s[0:1], 32")
    a(f"s_sub_u32 s{sNq}, s{sJ}, 16"); a(f"s_lshr_b32 s{sDi}, s{sNq}, 2"); a(f"s_and_b32 s{sNq}, s{sNq}, 3")
    a(f"s_mov_b32 s{S_A+2}, {9*MB//2}"); a(f"s_mov_b32 s{S_A+3}, 0x20000")
    a(f"s_mov_b32 s{S_B+2}, {MB//2}"); a(f"s_mov_b32 s{S_B+3}, 0x20000")
    a(f"s_lshl_b32 s{sCh}, s{sNq}, 1"); a(f"s_mul_i32 s{sU0}, s{sDi}, 3"); a(f"s_add_u32 s{sCh}, s{sCh}, s{sU0}"); a(f"s_and_b32 s{sCh}, s{sCh}, 7")
    t0, t1, t2, t3 = 116, 117, 118, 119
    a(f"v_lshrrev_b32 v{t0}, 3, v1"); a(f"v_and_b32 v{t1}, 7, v1"); a(f"v_lshrrev_b32 v{t2}, 4, v1")
    a(f"s_and_b32 s{sU0}, s{sW_}, 1"); a(f"s_lshl_b32 s{sU0}, s{sU0}, 2")
    a(f"v_xor_b32 v{t3}, v{t1}, v{t2}"); a(f"v_xor_b32 v{t3}, s{sU0}, v{t3}")
    a(f"v_lshlrev_b32 v{vA}, 10, v{t0}"); a(f"v_lshl_add_u32 v{vA}, v{t3}, 4, v{vA}")
    a(f"s_mul_i32 s{sU0}, s{sDi}, 1572864"); a(f"s_lshl_b32 s{sU0+1}, s{sXc}, 16"); a(f"s_add_u32 s{sU0}, s{sU0}, s{sU0+1}")
    a(f"s_lshl_b32 s{sU0+1}, s{sW_}, 13"); a(f"s_add_u32 s{sU0}, s{sU0}, s{sU0+1}")
    a(f"v_add_u32 v{vA}, s{sU0}, v{vA}")
    a(f"v_add_u32 v{vA+1}, 524288, v{vA}"); a(f"v_add_u32 v{vA+2}, 1048576, v{vA}")
    a(f"v_and_b32 v{t3}, 15, v1"); a(f"s_and_b32 s{sU0}, s{sW_}, 1"); a(f"s_lshl_b32 s{sU0}, s{sU0}, 3")
    a(f"v_lshlrev_b32 v{t0}, 1, v{t2}"); a(f"v_xor_b32 v{t0}, s{sU0}, v{t0}"); a(f"v_xor_b32 v{t0}, v{t0}, v{t3}")
    a(f"v_lshlrev_b32 v{vB}, 10, v{t2}"); a(f"v_lshl_add_u32 v{vB}, v{t0}, 4, v{vB}")
    a(f"s_lshl_b32 s{sU0}, s{sW_}, 13"); a(f"s_lshl_b32 s{sU0+1}, s{sNq}, 8"); a(f"s_add_u32 s{sU0}, s{sU0}, s{sU0+1}")
    a(f"v_add_u32 v{vB}, s{sU0}, v{vB}"); a(f"v_add_u32 v{vB+1}, 3072, v{vB}")
    a(f"s_lshl_b32 s{sM}, s{sW_}, 10")
    def dma(slot, tag):
        ops = [other(f"s_lshl_b32 s{sAo}, s{sCh}, 7"), other(f"s_lshl_b32 s{sBo}, s{sCh}, 16")]
        for dj in range(3):
            ops += [other(f"s_add_u32 m0, s{sM}, {slot*SLOT+dj*8192}"), other("s_nop 0"),
                    vmem(f"buffer_load_dwordx4 v{vA+dj}, s[{S_A}:{S_A+3}], s{sAo} offen lds", tag)]
        ops += [other(f"s_lshl_b32 s{sU0}, s{sM}, 1"), other(f"s_add_u32 m0, s{sU0}, {slot*SLOT+24576}"), other("s_nop 0")]
        ops += [vmem(f"buffer_load_dwordx4 v{vB+i}, s[{S_B}:{S_B+3}], s{sBo} offen offset:{i*1024} lds", tag) for i in range(2)]
        ops += [other(f"s_add_u32 s{sCh}, s{sCh}, 1"), other(f"s_and_b32 s{sCh}, s{sCh}, 7")]
        return ops
    a(f"s_sub_u32 s{sZc}, s{sXc}, s{sCh}"); a(f"s_and_b32 s{sZc}, s{sZc}, 7")
    a("s_waitcnt lgkmcnt(0)")
    st(1)
    pro = dma(0, "D0")
    for op in pro: a(op.render())
    a(f"v_lshrrev_b32 v{t1}, 1, v{t3}"); a(f"v_xor_b32 v{t1}, v{t1}, v{t2}")
    a(f"v_lshlrev_b32 v{vAr}, 7, v{t3}"); a(f"v_lshl_add_u32 v{vAr}, v{t1}, 4, v{vAr}")
    a(f"s_lshr_b32 s{sU0}, s{sW_}, 2"); a(f"s_lshl_b32 s{sU0+1}, s{sU0}, 12"); a(f"v_add_u32 v{vAr}, s{sU0+1}, v{vAr}")
    a(f"v_xor_b32 v{vAr+1}, 64, v{vAr}")
    a(f"v_lshrrev_b32 v{t0}, 2, v{t3}")
    a(f"v_and_b32 v{t1}, 3, v{t3}"); a(f"v_lshlrev_b32 v{t1}, 3, v{t1}"); a(f"v_add_u32 v{t1}, 24576, v{t1}")
    a(f"s_and_b32 s{sU0+1}, s{sW_}, 3"); a(f"s_lshl_b32 s{sU0+1}, s{sU0+1}, 1")
    a(f"v_lshl_add_u32 v{vBr}, v{t2}, 3, v{t0}"); a(f"v_lshl_add_u32 v{vBr}, v{vBr}, 8, v{t1}")
    a(f"v_and_b32 v{vBr+1}, 1, v{t2}"); a(f"v_lshl_add_u32 v{vBr+1}, v{vBr+1}, 2, v{t0}"); a(f"v_xor_b32 v{vBr+1}, s{sU0+1}, v{vBr+1}")
    a(f"v_lshl_add_u32 v{vBr}, v{vBr+1}, 5, v{vBr}"); a(f"v_xor_b32 v{vBr+1}, 32, v{vBr}")
    a(f"v_lshl_add_u32 v{vZr}, v{t2}, 2, v{t0}"); a(f"v_lshl_add_u32 v{vZr}, v{vZr}, 8, v{t1}")
    a(f"s_lshl_b32 s{sU0}, s{sU0}, 13"); a(f"v_add_u32 v{vZr}, s{sU0}, v{vZr}")
    a(f"v_lshrrev_b32 v{vZr+1}, 1, v{t2}"); a(f"v_lshl_add_u32 v{vZr+1}, v{vZr+1}, 2, v{t0}"); a(f"v_xor_b32 v{vZr+1}, s{sU0+1}, v{vZr+1}")
    a(f"v_lshl_add_u32 v{vZr}, v{vZr+1}, 5, v{vZr}"); a(f"v_xor_b32 v{vZr+1}, 32, v{vZr}")
    st(2)
    AF = [72, 96]
    BF = [120, 128]
    FS = [72, 136]
    def rd(c):
        out = []
        for h in range(2):
            b = FS[c & 1] + 32*h
            out += [ds(f"ds_read_b64_tr_b16 {vr(b+24+4*nt+2*t,2)}, v{vBr+nt} offset:{h*8192+t*1024}", f"r{h}b") for nt in range(2) for t in range(2)]
            out += [ds(f"ds_read_b128 {vr(b+4*(dj*2+kt),4)}, v{vAr+h} offset:{dj*8192+kt*2048}", f"r{h}" if dj or kt else f"r{h}a") for dj in range(3) for kt in range(2)]
        return out
    def mm(c):
        return [mfma(f"v_mfma_f32_16x16x32_bf16 {acc(dj,kt,nt)}, {vr(FS[c&1]+32*h+4*(dj*2+kt),4)}, {vr(FS[c&1]+32*h+24+4*nt,4)}, {'0' if c == 0 and h == 0 else acc(dj,kt,nt)}")
                for h in range(2) for dj in range(3) for kt in range(2) for nt in range(2)]
    def zread(c):
        lab = f"{name}_z{c}"
        return [other(f"s_cmp_lg_u32 s{sZc}, {c}"), other(f"s_cbranch_scc1 {lab}"), other("s_waitcnt lgkmcnt(0)")] + \
               [other(f"ds_read_b64_tr_b16 {vr(vZf+4*nt+2*t,2)}, v{vZr+nt} offset:{t*4096}") for nt in range(2) for t in range(2)] + \
               [other("s_waitcnt lgkmcnt(0)"), other(f"{lab}:")]
    r0 = rd(0)
    seq = [other("s_barrier ")] + dma(1, "D1") + [wait(vm="D0"), other("s_barrier")] + zread(0) + r0[:14] + dma(2, "D2") + [wait(lg="r0")] + r0[14:]
    for c in range(8):
        B = Block(mm(c))
        if c < 7:
            step = SLOT if c % 3 < 2 else -2*SLOT
            B.fix(-1, [wait(lg="r1", vm=f"D{c+1}"), other("s_barrier")] + [other(f"v_add_u32 v{r}, {step & 0xffffffff}, v{r}") for r in (vBr, vBr+1)])
            rr = rd(c+1)
            B.put(0, [other(f"v_add_u32 v{vAr}, {step & 0xffffffff}, v{vAr}")])
            for q, r in enumerate((vAr+1, vZr, vZr+1)): B.put(1+2*q+0.5, other(f"v_add_u32 v{r}, {step & 0xffffffff}, v{r}"))
            for q, op in enumerate(rr):
                if q == 14: B.put(q*1.05-0.1, wait(lg="r0a"))
                B.put(q*1.05, op)
            if c + 3 < 8:
                for q, op in enumerate(dma(c % 3, f"D{c+3}")): B.put(2+q*1.0, op)
            seq += B.layout(cap=2, slack=1) + zread(c+1)
        else:
            B.fix(-1, wait(lg="r1"))
            seq += B.layout()
    resolve([pro, seq])
    nb_ = 0
    def cst(k):
        if opts.get("cfine"):
            a("s_memrealtime s[94:95]"); a("s_memtime s[96:97]"); a("s_waitcnt lgkmcnt(0)"); a(f"v_writelane_b32 v250, s94, {16+k}"); a(f"v_writelane_b32 v250, s96, {32+k}")
    for op in merge_waits(seq):
        if op.text == "s_barrier":
            nb_ += 1
            if nb_ == 8: a("s_barrier"); xf_touch(a, opts); cst(nb_); continue
        if opts.get("cnomfma") and op.kind == "mfma": continue
        a(op.render())
        if op.text == "s_barrier": cst(nb_)
    st(4)
    A = lambda dj, kt, nt, j: vAcc + ((dj*2+kt)*2+nt)*4 + j
    U1, U2 = 72, 88
    a("s_nop 7")
    a("v_mov_b32 v2, 0"); a("v_mov_b32 v3, 0")
    for kt in range(2):
        for nt in range(2):
            for j in (0, 2):
                o = (kt*2+nt)*4 + j
                g0, g1, g2 = [vr(A(dj, kt, nt, j), 2) for dj in range(3)]
                a(f"v_pk_add_f32 v[4:5], {g0}, {g2}")
                for r in (A(0, kt, nt, j), A(2, kt, nt, j)): a(f"v_max3_f32 v2, abs(v{r}), abs(v{r+1}), v2")
                a(f"v_pk_add_f32 {vr(U1+o,2)}, v[4:5], {g1}")
                a(f"v_pk_add_f32 {vr(U2+o,2)}, v[4:5], {g1} neg_lo:[0,1] neg_hi:[0,1]")
                for r in (U1+o, U2+o): a(f"v_max3_f32 v3, abs(v{r}), abs(v{r+1}), v3")
    a("v_mul_f32 v3, 0.5, v3"); a("v_max_f32 v2, v2, v3")
    for sh in (8, 4, 2, 1):
        a("s_nop 1"); a(f"v_max_f32_dpp v2, v2, v2 row_ror:{sh} row_mask:0xf bank_mask:0xf")
    a("v_mov_b32 v3, v2"); a("s_nop 1"); a("v_permlane32_swap_b32 v2, v3"); a("s_nop 0"); a("v_max_f32 v2, v2, v3")
    a("v_mov_b32 v3, v2"); a("s_nop 1"); a("v_permlane16_swap_b32 v2, v3"); a("s_nop 0"); a("v_max_f32 v2, v2, v3")
    MX = 3*SLOT
    a(f"s_lshl_b32 s{sU0}, s{sW_}, 2"); a(f"s_add_u32 s{sU0}, s{sU0}, {MX}"); a(f"v_mov_b32 v3, s{sU0}")
    a("ds_write_b32 v3, v2"); a(f"v_mov_b32 v3, {MX}")
    a("s_waitcnt lgkmcnt(0)"); a("s_barrier")
    a("ds_read_b128 v[4:7], v3"); a("ds_read_b128 v[8:11], v3 offset:16")
    a(f"s_lshl_b32 s{sU0}, s{sNq}, 1"); a(f"s_bfe_u32 s{sU0+1}, s{sW_}, 0x10001"); a(f"s_add_u32 s{sU0}, s{sU0}, s{sU0+1}")
    a(f"s_lshl_b32 s{sU0+1}, s{sXc}, 1"); a(f"s_lshr_b32 s{sU0+2}, s{sW_}, 2"); a(f"s_add_u32 s{sU0+1}, s{sU0+1}, s{sU0+2}")
    a(f"s_and_b32 s{sU0+2}, s{sW_}, 1"); a(f"s_lshl_b32 s{sU0+2}, s{sU0+2}, 11")
    a(f"s_mul_i32 s{sU0+3}, s{sU0}, 786432"); a(f"s_mul_i32 s{sU0+4}, s{sU0+1}, 12288"); a(f"s_add_u32 s{sU0+3}, s{sU0+3}, s{sU0+4}")
    a(f"s_lshl_b32 s{sU0+4}, s{sDi}, 12"); a(f"s_add_u32 s{sU0+3}, s{sU0+3}, s{sU0+4}"); a(f"s_add_u32 s{sU0+3}, s{sU0+3}, s{sU0+2}")
    a(f"s_add_u32 s{sU0+3}, s{sU0+3}, {U_OFF}")
    a(f"s_lshl_b32 s{sU0+4}, s{sU0}, 16"); a(f"s_lshl_b32 s{sU0+5}, s{sU0+1}, 12"); a(f"s_add_u32 s{sU0+4}, s{sU0+4}, s{sU0+5}")
    a(f"s_add_u32 s{sU0+4}, s{sU0+4}, s{sU0+2}"); a(f"s_add_u32 s{sU0+4}, s{sU0+4}, {Z_OFF}")
    a("v_lshlrev_b32 v12, 4, v1")
    a("s_waitcnt lgkmcnt(0)")
    a("v_max3_f32 v4, v4, v5, v6"); a("v_max3_f32 v4, v4, v7, v8"); a("v_max3_f32 v4, v4, v9, v10"); a("v_max_f32 v4, v4, v11")
    a("s_nop 0"); a(f"v_readfirstlane_b32 s{sU0+6}, v4"); a("s_nop 3")
    a(f"s_lshr_b32 s{sU0+6}, s{sU0+6}, 23")
    a(f"s_sub_u32 s{sU0+7}, 121, s{sU0+6}"); a(f"s_and_b32 s{sU0+7}, s{sU0+7}, 7")
    a(f"s_sub_u32 s{sU0+6}, 267, s{sU0+6}"); a(f"s_sub_u32 s{sU0+6}, s{sU0+6}, s{sU0+7}")
    a(f"s_max_u32 s{sU0+6}, s{sU0+6}, 18"); a(f"s_min_u32 s{sU0+6}, s{sU0+6}, 186")
    a(f"s_lshl_b32 s60, s{sU0+6}, 23"); a("s_mov_b32 s62, 0x00040004")
    a(f"v_mov_b32 v6, {hex(f32bits(-1.0/LOG2E))}"); a("v_mul_f32 v6, s60, v6"); a("v_mul_f32 v8, 0.5, v6")
    D = [104, 108, 112, 116]; kk = 0
    for p in range(4):
        for nt in range(2):
            d = D[kk % 4]; kk += 1
            for q in range(4):
                kt, j = q >> 1, 2*(q & 1)
                r = [A(0, kt, nt, j), U1+(kt*2+nt)*4+j, U2+(kt*2+nt)*4+j, A(2, kt, nt, j)][p]
                a(f"v_pk_mul_f32 v[4:5], {vr(r,2)}, v[{8 if p in (1, 2) else 6}:{9 if p in (1, 2) else 7}] op_sel_hi:[1,0]")
                a(f"v_cvt_pk_f16_f32 v{d+q}, v4, v5")
                if opts.get("wround", 1): a(f"v_pk_add_u16 v{d+q}, v{d+q}, s62"); a(f"v_and_b32 v{d+q}, 0xfff8fff8, v{d+q}")
            a(f"s_add_u32 s{sU0+5}, s{sU0+3}, {p*196608}")
            a(f"buffer_store_dwordx4 {vr(d,4)}, v12, s[{S_WS}:{S_WS+3}], s{sU0+5} offen offset:{nt*1024}")
    a(f"s_lshl_b32 s{sU0+5}, s{sNq}, 5"); a(f"s_lshl_b32 s{sU0+6}, s{sDi}, 3"); a(f"s_add_u32 s{sU0+5}, s{sU0+5}, s{sU0+6}")
    a(f"s_add_u32 s{sU0+5}, s{sU0+5}, s{sXc}"); a(f"s_lshl_b32 s{sU0+5}, s{sU0+5}, 2"); a(f"s_add_u32 s{sU0+5}, s{sU0+5}, {SCL_OFF}")
    a("v_mov_b32 v4, s60"); a("v_mov_b32 v5, 0")
    a(f"s_cmp_lg_u32 s{sW_}, 0"); a(f"s_cbranch_scc1 {name}_ns")
    a("s_mov_b64 exec, 1"); a(f"buffer_store_dword v4, v5, s[{S_WS}:{S_WS+3}], s{sU0+5} offen"); a("s_mov_b64 exec, -1")
    a.label(f"{name}_ns")
    a(f"s_cmp_lg_u32 s{sDi}, 1"); a(f"s_cbranch_scc1 {name}_nz")
    a(f"s_cmp_ge_u32 s{sXc}, 4"); a(f"s_cselect_b32 s61, 0x800000, 0"); a("s_sub_u32 s60, s60, s61")
    for i in range(8):
        a(f"v_lshlrev_b32 v4, 16, v{vZf+i}"); a(f"v_and_b32 v5, 0xffff0000, v{vZf+i}")
        a("v_mul_f32 v4, s60, v4"); a("v_mul_f32 v5, s60, v5")
        a(f"v_cvt_pk_bf16_f32 v{vZf+i}, v4, v5")
    for nt in range(2): a(f"buffer_store_dwordx4 {vr(vZf+4*nt,4)}, v12, s[{S_WS}:{S_WS+3}], s{sU0+4} offen offset:{nt*1024}")
    a.label(f"{name}_nz")
    st(8)

if __name__ == "__main__":
    import sys
    import k2
    opts = {}; out = "full.s"
    for x in sys.argv[1:]:
        if x.endswith(".s"): out = x
        elif "=" in x:
            k, v = x.split("="); opts[k] = float(v) if "." in v else int(v)
    stamp = 1 if ("stamp" in sys.argv or "stamp2" in sys.argv) else 3 if "lite" in sys.argv else 0
    a = Asm()
    a("; @launch kernel=cn_k1_kernel grid=(256,1,1) block=(512,1,1) lds=163840")
    a("; @launch kernel=cn_k2_kernel grid=(256,1,1) block=(256,1,1) lds=131072")
    a('.amdgcn_target "amdgcn-amd-amdhsa--gfx950"')
    gen_k1(a, "cn_k1_kernel", stamp=stamp, opts=opts)
    o2 = dict(lead=48, nv0=3, npre=4); o2.update(opts)
    opts.setdefault("st1", 1); opts.setdefault("st2", 1)
    k2.gen_k2(a, "cn_k2_kernel", stamp=(2 if "stamp2" in sys.argv else stamp), opts=o2)
    a(".text"); a("cn_code_end:"); a("s_endpgm")
    if opts.get("noH") or opts.get("noE"):
        keep = []
        for l in a.lines:
            if l.startswith("cn_k1_kernel_c:"): break
            keep.append(l)
        n = len(keep)
        for i in range(n):
            l = a.lines[i]
            if l.startswith("buffer_store_dwordx4") and ((opts.get("noH") and ", v5, " in l) or (opts.get("noE") and ", v4, " in l)): a.lines[i] = "s_nop 0"
    txt = a.text()
    pol1 = {0: "", 1: " sc1", 2: " sc0 sc1", 3: " nt", 4: " sc1 nt"}
    lines = []; ink2 = False
    for l in txt.split("\n"):
        if l.startswith("cn_k2_kernel:"): ink2 = True
        if l.startswith("buffer_store_dwordx4"): l += pol1[opts.get("st2" if ink2 else "st1", 0)]
        lines.append(l)
    open(out, "w").write("\n".join(lines))
```

```python
from asmlib import *
from sched import *
from layouts import *

TILE = 21760
ROWB = 2176
S_H, S_WS, S_XF, S_OUT = 4, 8, 12, 16
sU, sE, sZ, sHA, sHB, sW, sCnt, sSgn = 20, 21, 22, 23, 24, 25, 26, 27
sInv = 28
sMask = 30
sO = 32
sP, sNB, sHBk, sR0 = 36, 37, 38, 39
sScl = 40
sT = 64
sFix = 80
sNinv = 82
vL = 1
vD = 8
vX, vY = 14, 15
vVA, vVB = 16, 56
vRaw = 96
vZ = 120
vXF = 136
vXU = 168
vOut = 232
vEW = 233
vER = 250
vT = 238
vSc = 254
aU, aE = 128, 224

def acc(o, f): return ar((o*4+f)*4, 4)

def gen_k2(a, name, stamp=False, opts=None):
    opts = opts or {}
    kernel_begin(a, name)
    a(f"s_cmp_ge_u32 s2, 256")
    a(f"s_cbranch_scc1 {name}_end")
    def st(k, dyn=None):
        if stamp == 3:
            if k == 0: a("s_memrealtime s[84:85]")
            if k == 16: a("s_memrealtime s[86:87]"); a("s_waitcnt lgkmcnt(0)"); a("v_writelane_b32 v7, s84, 0"); a("v_writelane_b32 v7, s86, 16")
            return
        if not stamp: return
        a("s_memrealtime s[84:85]"); a("s_memtime s[86:87]"); a("s_waitcnt lgkmcnt(0)")
        if dyn is None:
            a(f"v_writelane_b32 v7, s84, {k}"); a(f"v_writelane_b32 v237, s86, {k}")
        else:
            a(f"s_sub_u32 s88, {k}, s{dyn}"); a("s_lshl_b64 exec, 1, s88"); a("v_mov_b32 v7, s84"); a("v_mov_b32 v237, s86"); a("s_mov_b64 exec, -1")
    st(0)
    a(f"s_load_dwordx2 s[{S_XF}:{S_XF+1}], s[0:1], 0")
    a(f"s_load_dwordx2 s[{S_OUT}:{S_OUT+1}], s[0:1], 48")
    a(f"s_load_dwordx2 s[{S_WS}:{S_WS+1}], s[0:1], 64")
    if opts.get("icw2", 2):
        a(f"s_getpc_b64 s[{sT+4}:{sT+5}]")
        a.label(f"{name}_pc")
        if opts.get("icw2", 2) == 1:
            a(f"v_lshlrev_b32 v{vT}, 7, v0"); a(f"v_cmp_gt_u32 vcc, {name}_end-{name}_pc, v{vT}")
        else:
            a(f"s_lshr_b32 s{sT+6}, s2, 3"); NL = 9 if opts.get("unroll") else 3; a(f"s_mul_i32 s{sT+6}, s{sT+6}, {128*NL}")
            a(f"v_lshl_add_u32 v{vT}, v0, 7, s{sT+6}"); a(f"v_min_u32 v{vT}, {name}_end-{name}_pc, v{vT}"); a(f"v_cmp_gt_u32 vcc, {NL}, v0")
        a(f"s_and_saveexec_b64 s[{sT+6}:{sT+7}], vcc"); a(f"s_cbranch_execz {name}_nic")
        a(f"global_load_dword v{vXU}, v{vT}, s[{sT+4}:{sT+5}]")
        a.label(f"{name}_nic")
        a(f"s_mov_b64 exec, s[{sT+6}:{sT+7}]")
    a(f"v_lshrrev_b32 v{vT}, 6, v0")
    a(f"s_and_b32 s{sT}, s2, 7")
    a(f"v_readfirstlane_b32 s{sP}, v{vT}")
    a(f"s_lshr_b32 s{sT+1}, s2, 3")
    a(f"s_and_b32 s{sNB}, s{sT}, 1")
    a(f"s_lshl_b32 s{sNB}, s{sNB}, 2")
    a(f"s_and_b32 s{sT+2}, s{sT+1}, 3")
    a(f"s_or_b32 s{sNB}, s{sNB}, s{sT+2}")
    a(f"s_bfe_u32 s{sHBk}, s{sT+1}, 0x10002")
    a(f"s_lshr_b32 s{sT+2}, s{sT+1}, 3")
    a(f"s_lshr_b32 s{sT+3}, s{sT}, 1")
    a(f"s_lshl_b32 s{sT+3}, s{sT+3}, 2")
    a(f"s_add_u32 s{sT+3}, s{sT+3}, s{sT+2}")
    a(f"s_lshl_b32 s{sR0}, s{sT+3}, 3")
    a(f"v_and_b32 v{vT+1}, 63, v0")
    a(f"v_lshlrev_b32 v{vL}, 4, v{vT+1}")
    a(f"s_mul_i32 s{sT+4}, s{sP}, 340")
    a(f"s_lshl_b32 s{sT+8}, s{sR0}, 12"); a(f"s_lshl_b32 s{sT+5}, s{sHBk}, 10"); a(f"s_add_u32 s{sT+8}, s{sT+8}, s{sT+5}")
    a(f"s_lshl_b32 s{sT+5}, s{sHBk}, 2"); a(f"s_sub_u32 s{sT+5}, 68, s{sT+5}")
    a(f"s_and_b32 s{sT+6}, s{sR0}, 63")
    a(f"s_cmp_eq_u32 s{sT+6}, 0"); a(f"s_cselect_b32 s{sT+9}, 136, 0")
    a(f"s_cmp_eq_u32 s{sT+6}, 56"); a(f"s_movk_i32 s{sT+6}, 1400"); a(f"s_cselect_b32 s{sT+6}, 1224, s{sT+6}")
    a(f"s_sub_u32 s{sT+6}, s{sT+6}, s{sT+9}")
    a(f"s_movk_i32 s{sT+7}, 964"); a(f"s_movk_i32 s{sT+12}, 896"); a(f"s_movk_i32 s{sT+13}, -136")
    a(f"v_add_u32 v{vT+2}, s{sT+4}, v{vT+1}")
    a(f"v_mov_b32 v{vT+8}, 0x40000000")
    for q in range(1410): assert (q*964) >> 16 == q // 68
    def dma_off(j):
        q, z, r, o, t1, t2 = vT+2, vT+3, vT+4, vT+5, vT+6, vT+7
        if j: a(f"v_add_u32 v{q}, 64, v{q}")
        a(f"v_mul_u32_u24 v{z}, s{sT+7}, v{q}")
        a(f"v_lshl_add_u32 v{o}, v{q}, 4, s{sT+8}")
        a(f"v_lshrrev_b32 v{r}, 17, v{z}"); a(f"v_lshrrev_b32 v{z}, 16, v{z}")
        a(f"v_subrev_u32 v{t2}, s{sT+9}, v{q}")
        a(f"v_mad_i32_i24 v{t1}, v{r}, s{sT+13}, v{q}")
        a(f"v_cmp_gt_u32 s[{sT+10}:{sT+11}], s{sT+6}, v{t2}")
        a(f"v_subrev_u32 v{t1}, s{sT+5}, v{t1}")
        a(f"v_mad_u32_u24 v{o}, v{z}, s{sT+12}, v{o}")
        a(f"v_cmp_le_u32 vcc, 4, v{t1}")
        a(f"v_lshl_add_u32 v{o}, v{r}, 7, v{o}")
        if j in (1, 2, 3): a(f"s_sub_u32 s{sT+8}, s{sT+8}, 1024") if False else None
        a(f"s_and_b64 vcc, vcc, s[{sT+10}:{sT+11}]")
        if j & 3: a(f"v_subrev_u32 v{o}, {(j&3)*1024}, v{o}")
        a(f"v_cndmask_b32 v{vD+j}, v{vT+8}, v{o}, vcc")
    for j in range(6): dma_off(j)
    for j in range(1, 6): a(f"v_add_u32 v{vL+j}, {4096*j}, v{vL}")
    a(f"s_lshl_b32 s{sT+4}, s{sNB}, 2"); a(f"s_add_u32 s{sT+4}, s{sT+4}, s{sP}")
    a(f"s_mul_i32 s{sU}, s{sT+4}, 196608"); a(f"s_add_u32 s{sU}, s{sU}, {U_OFF}")
    a(f"s_lshl_b32 s{sT+4}, s{sT+3}, 1"); a(f"s_add_u32 s{sT+4}, s{sT+4}, s{sHBk}")
    a(f"s_lshl_b32 s{sT+4}, s{sT+4}, 2"); a(f"s_add_u32 s{sT+4}, s{sT+4}, s{sP}")
    a(f"s_lshl_b32 s{sE}, s{sT+4}, 16"); a(f"s_add_u32 s{sE}, s{sE}, {E_OFF}")
    a(f"s_add_u32 s{sT+4}, s{sP}, 1"); a(f"s_bfe_u32 s{sT+4}, s{sT+4}, 0x10001")
    a(f"s_lshl_b32 s{sT+4}, s{sT+4}, 15"); a(f"s_lshl_b32 s{sZ}, s{sNB}, 16")
    a(f"s_add_u32 s{sZ}, s{sZ}, s{sT+4}"); a(f"s_add_u32 s{sZ}, s{sZ}, {Z_OFF}")
    a(f"s_mul_i32 s{sW}, s{sP}, 5440"); a(f"s_add_u32 s{sW}, s{sW}, 0x10000")
    a(f"s_mov_b32 s{sMask}, 0xfffff"); a(f"s_mov_b32 s{sMask+1}, 0")
    a(f"s_mov_b64 s[{sFix}:{sFix+1}], 0")
    a("s_waitcnt lgkmcnt(0)")
    st(1)
    a(f"s_add_u32 s{S_H}, s{S_WS}, {H_OFF-4096}"); a(f"s_addc_u32 s{S_H+1}, s{S_WS+1}, 0")
    a(f"s_mov_b32 s{S_H+2}, {8*MB+4096}"); a(f"s_mov_b32 s{S_H+3}, 0x20000")
    a(f"s_mov_b32 s{S_WS+2}, 0x10000000"); a(f"s_mov_b32 s{S_WS+3}, 0x20000")
    a(f"s_mov_b32 s{S_XF+2}, {8*MB}"); a(f"s_mov_b32 s{S_XF+3}, 0x20000")
    a(f"s_mov_b32 s{S_OUT+2}, {8*MB}"); a(f"s_mov_b32 s{S_OUT+3}, 0x20000")
    S48 = opts.get("scl48", 0); NSC = 48 if S48 else 24
    a(f"s_lshr_b32 s{sScl}, s{sNB}, 1"); a(f"s_lshl_b32 s{sScl}, s{sScl}, {8 if S48 else 7}"); a(f"s_add_u32 s{sScl}, s{sScl}, {SCL_OFF}")
    a(f"v_min_u32 v{vSc}, {NSC-1}, v{vT+1}"); a(f"v_lshlrev_b32 v{vSc}, 2, v{vSc}")

    def dma_ops(j, soff, m0const, tag):
        ops = []
        if j in (0, 4): ops.append([other(f"s_add_u32 m0, s{sW}, {m0const + (4096 if j == 4 else 0)}")])
        ld = vmem(f"buffer_load_dwordx4 v{vD+j}, s[{S_H}:{S_H+3}], {soff} offen offset:{(j&3)*1024} lds", tag)
        if j == 5:
            ops.append([other(f"s_mov_b64 exec, s[{sMask}:{sMask+1}]"), ld, other("s_mov_b64 exec, -1")])
        else: ops.append([ld])
        return ops
    def u_load(X, k):
        kk = X*12 + k
        return vmem(f"buffer_load_dwordx4 {ar(aU+4*kk,4)}, v{vL+kk//4}, s[{S_WS}:{S_WS+3}], s{sU} offen offset:{(kk%4)*1024}", f"U{kk}")
    def e_load(o):
        return vmem(f"buffer_load_dwordx4 {ar(aE+4*o,4)}, v{vL+o//4}, s[{S_WS}:{S_WS+3}], s{sE} offen offset:{(o%4)*1024}", f"E{o}")
    def z_load(f):
        return vmem(f"buffer_load_dwordx4 {vr(vZ+4*f,4)}, v{vL}, s[{S_WS}:{S_WS+3}], s{sZ} offen offset:{f*1024}", f"Z{f}")
    def v_row(dst, r, half, k):
        rw = vRaw + 8*(k % 3)
        off = half*TILE + r*ROWB
        rd = [ds(f"ds_read_b128 {vr(rw,4)}, v{vX} offset:{off}", f"Ra{k%3}"), ds(f"ds_read_b128 {vr(rw+4,4)}, v{vY} offset:{off}", f"Rb{k%3}")]
        pk = [other(f"v_pk_fma_f16 v{dst+4*r+i}, v{rw+4+i}, s{sSgn}, v{rw+i}") for i in range(4)]
        return rd, wait(lg=f"Rb{k%3}"), pk
    def cm(X, di, f, o):
        V = vVA if X == 0 else vVB
        return mfma(f"v_mfma_f32_16x16x32_f16 {acc(o,f)}, {ar(aU+4*(X*12+di*4+f),4)}, {vr(V+4*(o+di),4)}, {acc(o,f)}")
    def conv(X, dis=(0, 1, 2)):
        return [cm(X, di, f, o) for f in range(4) for o in range(8) for di in (dis if o % 2 == 0 else dis[::-1])]
    def bpart():
        return [mfma(f"v_mfma_f32_16x16x32_bf16 {acc(o,f)}, {vr(vZ+4*f,4)}, {ar(aE+4*o,4)}, {acc(o,f)}") for f in range(4) for o in range(8)]
    def place_v(B, dst, half, lo, hi, k0):
        step = (hi - lo) / 10.0
        for r in range(10):
            rd, w, pk = v_row(dst, r, half, k0 + r)
            p = lo + r*step
            B.put(p, rd[0]); B.put(p+1, rd[1])
            lat = opts.get("lds_lat", 9)
            B.put(p+lat, [w, pk[0]])
            for i in range(1, 4): B.put(p+lat+i, pk[i])
            if opts.get("vand"):
                for i in range(4): B.put(p+lat+4+i, other(f"v_and_b32 v{dst+4*r+i}, s{sNinv+1}, v{dst+4*r+i}"))

    NM = 224
    LEAD = opts.get("lead", 64)
    ug = opts.get("ugroup", 2)
    HAD = opts.get("had", 0)
    def edf_items():
        it = []
        for j in range(6): it.append((HAD, ("HA", j)))
        for f in range(4):
            for di in range(3): it.append((24*f, ("U", di*4+f)))
        for j in range(6): it.append((96, ("HB", j)))
        for f in range(4):
            for di in range(3): it.append((96 + 24*f, ("U", 12+di*4+f)))
        for o in range(8): it.append((192, ("E", o)))
        for f in range(4): it.append((192 + 8*f, ("Z", f)))
        it.sort(key=lambda x: x[0])
        sp = NM / len(it)
        off = min(d - i*sp for i, (d, _) in enumerate(it)) - LEAD
        return [(off + i*sp, w) for i, (d, w) in enumerate(it)]
    def item_ops(w):
        k, j = w
        if k == "HA":
            g = dma_ops(j, f"s{sHA}", 0, f"HA{j}")
            if j == 0: g = [[other(f"s_xor_b32 s{sW}, s{sW}, 0x10000")]] + g
            if j == 5: g.append([other(f"s_add_u32 s{sHA}, s{sHA}, {1*MB}")])
        elif k == "HB":
            g = dma_ops(j, f"s{sHB}", TILE, f"HB{j}")
            if j == 5: g.append([other(f"s_add_u32 s{sHB}, s{sHB}, {1*MB}")])
        elif k == "U":
            g = [[u_load(j // 12, j % 12)]]
            if j == 23: g.append([other(f"s_add_u32 s{sU}, s{sU}, 24576")])
        elif k == "E":
            g = [[e_load(j)]]
            if j == 7: g.append([other(f"s_add_u32 s{sE}, s{sE}, 8192")])
        else:
            g = [[z_load(j)]]
            if j == 3: g.append([other(f"s_add_u32 s{sZ}, s{sZ}, 4096")])
        return g
    ITEMS = edf_items()
    WRAP = [w for p, w in ITEMS if p < 0]
    INIT = [w for p, w in ITEMS if p >= 0]

    def body(final):
        if not final:
            B = Block(conv(0) + conv(1) + bpart())
            for f in range(1, 4): B.fix(24*f-1, wait(vm=f"U{8+f}")); B.fix(96+24*f-1, wait(vm=f"U{20+f}"))
            if HAD: B.fix(-1, wait(vm="U8")); B.fix(HAD-1, [wait(vm="HA5"), other("s_barrier")])
            else: B.fix(-1, [wait(vm=["HA5", "U8"]), other("s_barrier")])
            B.fix(95, [wait(vm=["HB5", "U20"]), other("s_barrier")])
            B.fix(191, wait(vm=["E7", "Z0"]))
            for f in range(1, 4): B.fix(191+8*f, wait(vm=f"Z{f}"))
            place_v(B, vVB, 0, HAD, 84 - (5 if opts.get('vand') else 0), 0)
            place_v(B, vVA, 1, 96, 210 - (5 if opts.get('vand') else 0), 10)
            for p, w in ITEMS:
                for i, ops in enumerate(item_ops(w)): B.put((p % NM) + 0.9*i if (p % NM) + 0.9*i < NM-0.2 else NM-0.2, ops)
            B.put(220, other(f"v_xor_b32 v{vX}, 0x10000, v{vX}"))
            B.put(221, other(f"v_xor_b32 v{vY}, 0x10000, v{vY}"))
            B.put(223.9, other(f"s_sub_u32 s{sCnt}, s{sCnt}, 1"))
        else:
            tail = []
            for o in range(8):
                for f in range(4): tail += [cm(0, 2, f, o)] + [cm(1, di, f, o) for di in range(3)]
            B = Block(conv(0, (0, 1)) + tail)
            for f in range(1, 4): B.fix(16*f-1, wait(vm=[f"U{f}", f"U{4+f}"]))
            assert all(w[0] != "HA" for w in INIT)
            if HAD: B.fix(-1, wait(vm=["U0", "U4"])); B.fix(HAD-1, [wait(vm="HA5"), other("s_barrier")])
            else: B.fix(-1, [wait(vm=["HA5", "U0", "U4"]), other("s_barrier")])
            dl = lambda k: 16*(k % 4) if k < 8 else 64 + 4*(k % 4)
            rest = sorted([w for w in INIT if w[0] == "U"], key=lambda w: dl(w[1]))
            sp = opts.get("fin_sp", 3.5)
            for i, w in enumerate(rest):
                assert 1 + i*sp + 8 < dl(w[1]), (w, i)
                B.put(1 + i*sp, item_ops(w)[0])
            for f in range(4): B.fix(63+4*f, wait(vm=[f"U{k+f}" for k in (8, 12, 16, 20)]))
            place_v(B, vVB, 0, HAD, opts.get("fin_vhi", 92), 0)
            x0 = 1 + len(rest)*sp
            for i in range(8):
                B.put(x0 + 4*i, vmem(f"buffer_load_dwordx4 {vr(vXF+4*i,4)}, v{vOut}, s[{S_XF}:{S_XF+3}], s{sO+(i>>1)} offen offset:{(i&1)*1024}", f"XF{i}"))
            for o in range(7):
                for f in range(4): B.put(64+16*o+4*f+3+9, ex_write(o, f))
            for f in range(2): B.put(64+16*7+4*f+3+9-f, ex_write(7, f))
            hb = [f"HB{j}" for k, j in WRAP if k == "HB"][-1:]
            NH = opts.get("nhid", 2)
            b = [64 + 32*(ph+1) + 12 for ph in range(NH)]
            for ph in range(NH):
                B.put(b[ph], [wait(lg=f"W{2*ph+1}", vm=(hb if ph == 0 and hb else None)), other("s_barrier")])
            allops = [(ph, op) for ph in range(NH) for op in phase_ops(ph, False)]
            if NH == 0: B.put(100, [wait(vm=hb), other("s_barrier")] if hb else [other("s_barrier")])
            pos = 0
            for i, (ph, op) in enumerate(allops):
                pos = max(pos, b[ph] + 0.5)
                B.put(pos, op)
                pos += (191.0 - b[0]) / len(allops)
            NU = opts.get("unp", 0)
            if NU:
                for ph in range(NH, 4):
                    for i in range(8):
                        k = (ph-NH)*8 + i; p = NU + k*(190-NU)/(8*(4-NH))
                        ops = [other(f"v_lshlrev_b32 v{vXU+16*ph+2*i}, 16, v{vXF+8*ph+i}")]
                        if i == 0: ops = [wait(vm=f"XF{2*ph+1}")] + ops
                        B.put(p, ops); B.put(p+0.5, other(f"v_and_b32 v{vXU+16*ph+2*i+1}, 0xffff0000, v{vXF+8*ph+i}"))
        seq = B.layout(cap=1, slack=opts.get("slack", 3), capf=(lambda p: 2 if p >= 108 else 1) if final and opts.get("nhid", 2) else None)
        return seq, B
    def ex_write(o, f):
        return ds(f"ds_write_b128 v{vEW + (f&1) + 2*(o>>2)}, {acc(o,f)} offset:{(o&3)*16384 + (f>>1)*128}", f"W{o}")
    def phase_reads(ph, M):
        return [ds(f"ds_read_b128 {vr(M+8*src+4*e,4)}, v{vER+e+2*(ph>>1)} offset:{(ph&1)*32768+src*4096}", f"X{ph}") for src in range(4) for e in range(2)]
    def phase_ops(ph, packed, M=None, reads=True):
        pre = packed and opts.get("unp", 0)
        if M is None: M = vXU
        ops = phase_reads(ph, M) if reads else []
        y0 = vZ + 8*(ph & 1); y1 = y0 + 4
        for q in range(4):
            m0, m1, m2, m3 = [M+8*s_+2*q for s_ in range(4)]
            t, u = vT + 4*(q & 1), vT + 4*(q & 1) + 2
            x0_, x1_ = vXF + 8*ph + q, vXF + 8*ph + 4 + q
            unp = [other(f"v_lshlrev_b32 v{t}, 16, v{x0_}"), other(f"v_and_b32 v{t+1}, 0xffff0000, v{x0_}"),
                   other(f"v_lshlrev_b32 v{u}, 16, v{x1_}"), other(f"v_and_b32 v{u+1}, 0xffff0000, v{x1_}")]
            if packed:
                xa, xb = (vr(vXU+16*ph+2*q, 2), vr(vXU+16*ph+8+2*q, 2)) if pre else (vr(t, 2), vr(u, 2))
                ng = " neg_lo:[1,0,0] neg_hi:[1,0,0]"
                grp = ([] if pre else unp) + \
                      [other(f"v_pk_add_f32 {vr(m0,2)}, {vr(m0,2)}, {vr(m1,2)}"),
                       other(f"v_pk_add_f32 {vr(m3,2)}, {vr(m1,2)}, {vr(m3,2)} neg_lo:[0,1] neg_hi:[0,1]"),
                       other(f"v_pk_add_f32 {vr(m0,2)}, {vr(m0,2)}, {vr(m2,2)}"),
                       other(f"v_pk_add_f32 {vr(m3,2)}, {vr(m3,2)}, {vr(m2,2)} neg_lo:[0,1] neg_hi:[0,1]"),
                       other(f"v_pk_fma_f32 {vr(t,2)}, {vr(m0,2)}, s[{sInv}:{sInv+1}], {xa}"),
                       other(f"v_pk_fma_f32 {vr(u,2)}, {vr(m3,2)}, s[{sInv}:{sInv+1}], {xb}")]
                wl = 0 if pre else 4
            else:
                grp = unp + [other(f"v_fmac_f32 v{d+i}, s{sc}, v{m+i}") for d, sc, m in
                             ((t, sInv, m0), (u, sInv, m1), (t, sInv, m1), (u, sNinv, m2), (t, sInv, m2), (u, sNinv, m3)) for i in range(2)]
                wl = 4
            grp += [other(f"v_cvt_pk_bf16_f32 v{y0+q}, v{t}, v{t+1}"), other(f"v_cvt_pk_bf16_f32 v{y1+q}, v{u}, v{u+1}")]
            if q == 0:
                grp.insert(wl, wait(lg=f"X{ph}"))
                if not pre: grp.insert(0, wait(vm=f"XF{2*ph+1}"))
            ops += grp
        ops += [vmem(f"buffer_store_dwordx4 {vr(y0,4)}, v{vOut}, s[{S_OUT}:{S_OUT+3}], s{sO+ph} offen", "ST"),
                vmem(f"buffer_store_dwordx4 {vr(y1,4)}, v{vOut}, s[{S_OUT}:{S_OUT+3}], s{sO+ph} offen offset:1024", "ST")]
        return ops

    loop_seq, LB = body(False)
    fin_seq, FB = body(True)
    def flat(groups):
        out = []
        for ops in groups:
            out += ops
            if " m0," in (ops[-1].text or ""): out.append(other("s_nop 0"))
        return out
    pro = []
    a.label(f"{name}_reload")
    pro.append(other(f"s_mov_b32 s{sHA}, 0"))
    for j in range(6): pro += flat(dma_ops(j, f"s{sHA}", 0, f"H0{j}"))
    pro.append(vmem(f"buffer_load_dword v{vSc+1}, v{vSc}, s[{S_WS}:{S_WS+3}], s{sScl} offen", "SC"))
    pro.append(other(f"s_mov_b32 s{sHA}, {MB//2}"))
    pro.append(other(f"s_mov_b32 s{sHB}, {MB}"))
    ez = [("E", o) for o in range(8)] + [("Z", f) for f in range(4)]
    ez = [ez[8]] + ez[:8] + ez[9:]
    npre = opts.get("npre", 2)
    for w in ez[:npre]: pro += flat(item_ops(w))
    rows = [v_row(vVA, r, 0, r) for r in range(10)]
    pro2 = [wait(vm="SC"), other("s_barrier"),
            other(f"v_readfirstlane_b32 s{sT}, v{vSc+1}"), other("s_nop 1"),
            other(f"v_cmp_ne_u32 vcc, s{sT}, v{vSc+1}"),
            other(f"s_sub_u32 s{sInv}, 0x7f000000, s{sT}"), other(f"s_mov_b32 s{sInv+1}, s{sInv}"), other(f"s_xor_b32 s{sNinv}, s{sInv}, 0x80000000"),
            other(f"s_andn2_b64 vcc, vcc, s[{sFix}:{sFix+1}]"),
            other(f"s_cbranch_scc1 {name}_fix")]
    nv0 = opts.get("nv0", 6)
    pro2 += rows[0][0] + rows[1][0] + rows[2][0]
    rem = ez[npre:]
    for r in range(nv0):
        n0, n1 = r*len(rem)//nv0, (r+1)*len(rem)//nv0
        for w in rem[n0:n1]: pro2 += flat(item_ops(w))
        pro2 += [rows[r][1]] + rows[r][2]
        if r + 3 < 10: pro2 += rows[r+3][0]
    B0 = Block([mfma(f"v_mfma_f32_16x16x32_bf16 {acc(o,f)}, {vr(vZ+4*f,4)}, {ar(aE+4*o,4)}, 0") for f in range(4) for o in range(8)])
    B0.fix(-1, wait(vm=["E7", "Z0"]))
    for f in range(1, 4): B0.fix(8*f-1, wait(vm=f"Z{f}"))
    for r in range(nv0, 10):
        p = (r-nv0)*26.0/(10-nv0)
        B0.put(p, [rows[r][1], rows[r][2][0]])
        for i in range(1, 4): B0.put(p+i, rows[r][2][i])
        if r + 3 < 10:
            for i in range(2): B0.put(p+4+i, rows[r+3][0][i])
    for i, w in enumerate(WRAP):
        for k, ops in enumerate(item_ops(w)): B0.put(min(i*31.0/len(WRAP) + 0.3*k, 31.5), ops)
    B0.put(31.6, [other(f"v_xor_b32 v{vX}, 0x10000, v{vX}"), other(f"v_xor_b32 v{vY}, 0x10000, v{vY}")])
    if opts.get("xft2", 0):
        B0.put(31.7, vmem(f"buffer_load_dword v{vXU+1}, v{vXF}, s[{S_XF}:{S_XF+3}], s{sO} offen", "XT"))
    pro2 += B0.layout(cap=2, slack=1)
    epi = [other("s_nop 3"), ex_write(7, 2), other("s_nop 2"), ex_write(7, 3)]
    epi += [wait(lg="ALL"), other("s_barrier")]
    NH = opts.get("nhid", 2); MS = [vVA, vVA+32]
    epi += phase_reads(NH, MS[NH & 1])
    for ph in range(NH, 4):
        ops = phase_ops(ph, True, MS[ph & 1], reads=False)
        k = [i for i, op in enumerate(ops) if op.kind == "wait" and op.lg is not None][0] + 1
        epi += ops[:k] + (phase_reads(ph+1, MS[(ph+1) & 1]) if ph < 3 else []) + ops[k:]
    resolve([pro, pro2, loop_seq, loop_seq, loop_seq, fin_seq, epi])
    def fix_haz(seq):
        out = []
        for op in seq:
            if out and op.kind == "vmem" and op.text.endswith("lds") and out[-1].kind == "x" and " m0," in out[-1].text:
                out.append(other("s_nop 0"))
            out.append(op)
        return out
    loop_seq = fix_haz(loop_seq); pro2 = fix_haz(pro2)
    for op in pro: a(op.render())
    st(2)
    t_, g_ = vT, vT+1
    a(f"v_and_b32 v{t_}, 15, v0"); a(f"v_bfe_u32 v{g_}, v0, 4, 2")
    a(f"s_and_b32 s{sT}, s{sP}, 1"); a(f"s_xor_b32 s{sT}, s{sT}, 1")
    a(f"s_cmp_eq_u32 s{sP}, 2"); a(f"s_cselect_b32 s{sT+1}, 1, 0"); a(f"s_cselect_b32 s{sT+3}, 0, 1")
    a(f"s_cmp_lt_u32 s{sP}, 2"); a(f"s_cselect_b32 s{sT+2}, 1, 0")
    a(f"s_cmp_eq_u32 s{sP}, 1"); a(f"s_mov_b32 s{sSgn}, 0xbc00bc00"); a(f"s_cselect_b32 s{sSgn}, 0x3c003c00, s{sSgn}")
    for dst, par, du in ((vX, sT, sT+1), (vY, sT+2, sT+3)):
        a(f"v_add_u32 v{vT+2}, s{du}, v{t_}")
        a(f"v_subrev_u32 v{vT+3}, s{par}, v{vT+2}")
        a(f"v_lshrrev_b32 v{vT+3}, 1, v{vT+3}"); a(f"v_and_b32 v{vT+3}, 2, v{vT+3}")
        a(f"v_xor_b32 v{vT+3}, v{vT+3}, v{g_}")
        a(f"v_lshlrev_b32 v{vT+2}, 6, v{vT+2}"); a(f"v_lshl_add_u32 v{vT+2}, v{vT+3}, 4, v{vT+2}")
        a(f"s_mul_i32 s{sT+4}, s{par}, 1088"); a(f"s_add_u32 s{sT+4}, s{sT+4}, 0x10000")
        a(f"v_add_u32 v{dst}, s{sT+4}, v{vT+2}")
    a(f"s_lshl_b32 s{sT+4}, s{sP}, 12")
    a(f"v_and_b32 v{vT+2}, 7, v{t_}"); a(f"v_xor_b32 v{vT+2}, v{vT+2}, v{g_}")
    a(f"v_lshlrev_b32 v{vT+3}, 8, v{t_}"); a(f"v_add_u32 v{vT+3}, s{sT+4}, v{vT+3}")
    a(f"v_lshl_add_u32 v{vEW}, v{vT+2}, 4, v{vT+3}")
    a(f"v_xor_b32 v{vEW+1}, 64, v{vEW}")
    a(f"v_add_u32 v{vEW+2}, 0x10000, v{vEW}"); a(f"v_add_u32 v{vEW+3}, 0x10000, v{vEW+1}")
    a(f"v_bfe_u32 v{vT+2}, v0, 3, 3"); a(f"v_and_b32 v{vT+3}, 7, v0")
    a(f"v_lshlrev_b32 v{vT+4}, 1, v{vT+3}"); a(f"v_xor_b32 v{vT+4}, v{vT+4}, v{vT+2}")
    a(f"s_lshr_b32 s{sT+6}, s{sP}, 1"); a(f"s_and_b32 s{sT+7}, s{sP}, 1")
    a(f"s_lshl_b32 s{sT+4}, s{sT+6}, 14"); a(f"s_lshl_b32 s{sT+5}, s{sT+7}, 11"); a(f"s_add_u32 s{sT+4}, s{sT+4}, s{sT+5}")
    a(f"v_lshlrev_b32 v{vT+5}, 8, v{vT+2}"); a(f"v_add_u32 v{vT+5}, s{sT+4}, v{vT+5}")
    a(f"v_lshl_add_u32 v{vER}, v{vT+4}, 4, v{vT+5}"); a(f"v_xor_b32 v{vER+1}, 16, v{vER}")
    a(f"v_add_u32 v{vER+2}, 0x10000, v{vER}"); a(f"v_add_u32 v{vER+3}, 0x10000, v{vER+1}")
    a(f"v_lshlrev_b32 v{vOut}, 11, v{vT+2}"); a(f"v_lshl_add_u32 v{vOut}, v{vT+3}, 4, v{vOut}")
    a(f"s_add_u32 s{sT+4}, s{sT+6}, s{sR0}"); a(f"s_lshl_b32 s{sT+4}, s{sT+4}, 16")
    a(f"s_lshl_b32 s{sT+5}, s{sHBk}, 15"); a(f"s_add_u32 s{sT+4}, s{sT+4}, s{sT+5}")
    a(f"s_lshl_b32 s{sT+5}, s{sT+7}, 14"); a(f"s_add_u32 s{sT+4}, s{sT+4}, s{sT+5}")
    a(f"s_lshl_b32 s{sT+5}, s{sNB}, 7"); a(f"s_add_u32 s{sO}, s{sT+4}, s{sT+5}")
    for i in range(1, 4): a(f"s_add_u32 s{sO+i}, s{sO}, {i*131072}")
    a(f"v_and_b32 v{vT+2}, 15, v0"); a(f"v_bfe_u32 v{vT+3}, v0, 4, 2"); a(f"v_lshlrev_b32 v{vXF}, 10, v{vT+2}"); a(f"v_lshl_add_u32 v{vXF}, v{vT+3}, 17, v{vXF}")
    a(f"s_mov_b32 s{sCnt}, 6")
    if opts.get("vand"): a(f"s_mov_b32 s{sNinv+1}, {hex(opts['vand'])}")
    st(3)
    p2 = merge_waits(pro2)
    for op in p2[:2]: a(op.render())
    st(4)
    for op in p2[2:]: a(op.render())
    st(5)
    a(".p2align 6")
    a.label(f"{name}_loop")
    ls = merge_waits(loop_seq)
    if opts.get("x_nobar"): ls = [op if op.text != "s_barrier" else other("s_nop 0") for op in ls]
    if opts.get("x_novalu"): ls = [op for op in ls if not (op.text or "").startswith("v_pk_fma")]
    if opts.get("x_nods"): ls = [op for op in ls if op.kind != "ds"]
    if opts.get("x_novm"): ls = [op for op in ls if op.kind != "vmem"]
    if opts.get("x_nodma"): ls = [op for op in ls if not (op.kind == "vmem" and op.text.endswith("lds"))]
    if opts.get("unroll"):
        for it in range(7):
            for op in ls[:2]: a(op.render())
            if stamp == 2: st(6+it)
            for op in ls[2:]:
                if not (op.text or "").startswith(f"s_sub_u32 s{sCnt},"): a(op.render())
    else:
        for op in ls[:2]: a(op.render())
        if stamp == 2: st(12, sCnt)
        for op in ls[2:]: a(op.render())
        a(f"s_cbranch_scc0 {name}_loop")
    a.label(f"{name}_fin")
    fs = merge_waits(fin_seq)
    for op in fs[:2]: a(op.render())
    if stamp == 2: st(13)
    nm = 0
    for op in fs[2:]:
        a(op.render())
        if op.kind == "mfma":
            nm += 1
            if stamp == 2 and nm in (62, 80, 113, 160): a("s_waitcnt lgkmcnt(0)"); st({62: 17, 80: 18, 113: 19, 160: 20}[nm])
    ep = merge_waits(epi)
    nb = [i for i, op in enumerate(ep) if op.text == "s_barrier"][0] + 1
    for op in ep[:nb]: a(op.render())
    st(14)
    for op in ep[nb:]: a(op.render())
    st(15)
    if stamp:
        a("s_waitcnt vmcnt(0)")
        st(16)
        a(f"s_lshl_b32 s{sT}, s2, 2"); a(f"s_add_u32 s{sT}, s{sT}, s{sP}"); a(f"s_lshl_b32 s{sT}, s{sT}, 9"); a(f"s_add_u32 s{sT}, s{sT}, {24*MB}")
        a(f"v_lshrrev_b32 v2, 2, v{vL}")
        a(f"buffer_store_dword v7, v2, s[{S_WS}:{S_WS+3}], s{sT} offen")
        a(f"buffer_store_dword v237, v2, s[{S_WS}:{S_WS+3}], s{sT} offen offset:256")
    a.label(f"{name}_end")
    a("s_endpgm")
    a.label(f"{name}_fix")
    a("s_waitcnt vmcnt(0)")
    a(f"s_mov_b64 s[{sFix}:{sFix+1}], -1")
    assert npre <= 8
    a(f"s_mov_b32 s{sT+2}, s{sU}"); a(f"s_mov_b32 s{sT+3}, s{sZ}")
    a(f"s_lshl_b32 s{sT+4}, s2, 2"); a(f"s_add_u32 s{sT+4}, s{sT+4}, s{sP}"); a(f"s_mul_i32 s{sU}, s{sT+4}, {PRIV_STRIDE}")
    a(f"s_add_u32 s{sU}, s{sU}, {PRIV_OFF}"); a(f"s_add_u32 s{sZ}, s{sU}, 196608")
    a(f"s_mov_b32 s{sT+4}, s{sU}")
    for i in range(1, NSC):
        a(f"v_readlane_b32 s{sT+5}, v{vSc+1}, {i}"); a("s_nop 0"); a(f"s_min_u32 s{sT}, s{sT}, s{sT+5}")
    a(f"v_subrev_u32 v{vT+8}, s{sT}, v{vSc+1}")
    a(f"v_cmp_eq_u32 vcc, 0, v{vT+8}")
    a(f"v_min_u32 v{vT+8}, 0x3f000000, v{vT+8}"); a(f"v_sub_u32 v{vT+8}, 0x3f800000, v{vT+8}")
    a(f"s_ff1_i32_b64 s{sT+5}, vcc"); a(f"s_min_u32 s{sT+5}, s{sT+5}, {NSC-1}"); a(f"s_lshl_b32 s{sT+5}, s{sT+5}, 2")
    a(f"v_mov_b32 v{vSc}, s{sT+5}")
    a(f"s_mov_b32 s{sT+6}, 0")
    a.label(f"{name}_fixU")
    a(f"s_mul_hi_u32 s{sT+7}, s{sT+6}, 0x55555556")
    a(f"s_mul_i32 s{sT+8}, s{sT+7}, 3"); a(f"s_sub_u32 s{sT+8}, s{sT+6}, s{sT+8}")
    a(f"s_lshr_b32 s{sT+7}, s{sT+7}, 1"); a(f"s_lshl_b32 s{sT+8}, s{sT+8}, 3"); a(f"s_add_u32 s{sT+7}, s{sT+7}, s{sT+8}")
    if S48: a(f"s_mov_b32 s{sT+7}, s{sT+6}")
    a("s_nop 3")
    a(f"v_readlane_b32 s{sT+9}, v{vT+8}, s{sT+7}")
    for f in range(4): a(f"buffer_load_dwordx4 {vr(16+4*f,4)}, v{vL}, s[{S_WS}:{S_WS+3}], s{sT+2} offen offset:{f*1024}")
    a(f"v_cvt_f16_f32 v{vT+9}, s{sT+9}"); a("s_nop 0"); a(f"v_pack_b32_f16 v{vT+9}, v{vT+9}, v{vT+9}")
    a("s_waitcnt vmcnt(0)")
    for i in range(16): a(f"v_pk_mul_f16 v{16+i}, v{16+i}, v{vT+9}")
    for f in range(4): a(f"buffer_store_dwordx4 {vr(16+4*f,4)}, v{vL}, s[{S_WS}:{S_WS+3}], s{sT+4} offen offset:{f*1024}")
    a("s_waitcnt vmcnt(0)")
    a(f"s_add_u32 s{sT+2}, s{sT+2}, 4096"); a(f"s_add_u32 s{sT+4}, s{sT+4}, 4096"); a(f"s_add_u32 s{sT+6}, s{sT+6}, 1")
    a(f"s_cmp_lt_u32 s{sT+6}, 48"); a(f"s_cbranch_scc1 {name}_fixU")
    a(f"s_add_u32 s{sT+6}, s{sP}, 1"); a(f"s_bfe_u32 s{sT+6}, s{sT+6}, 0x10001"); a(f"s_lshl_b32 s{sT+6}, s{sT+6}, 3")
    a(f"s_add_u32 s{sT+10}, s{sT+6}, 8")
    a.label(f"{name}_fixZ")
    if S48: a(f"s_mul_i32 s{sT+7}, s{sT+6}, 3"); a(f"s_add_u32 s{sT+7}, s{sT+7}, 1")
    else: a(f"s_lshr_b32 s{sT+7}, s{sT+6}, 1"); a(f"s_add_u32 s{sT+7}, s{sT+7}, 8")
    a("s_nop 3")
    a(f"v_readlane_b32 s{sT+9}, v{vT+8}, s{sT+7}")
    for f in range(4): a(f"buffer_load_dwordx4 {vr(16+4*f,4)}, v{vL}, s[{S_WS}:{S_WS+3}], s{sT+3} offen offset:{f*1024}")
    a("s_waitcnt vmcnt(0)")
    for i in range(16):
        a(f"v_lshlrev_b32 v{vT+9}, 16, v{16+i}"); a(f"v_and_b32 v{vT+10}, 0xffff0000, v{16+i}")
        a(f"v_mul_f32 v{vT+9}, s{sT+9}, v{vT+9}"); a(f"v_mul_f32 v{vT+10}, s{sT+9}, v{vT+10}")
        a(f"v_cvt_pk_bf16_f32 v{16+i}, v{vT+9}, v{vT+10}")
    for f in range(4): a(f"buffer_store_dwordx4 {vr(16+4*f,4)}, v{vL}, s[{S_WS}:{S_WS+3}], s{sT+4} offen offset:{f*1024}")
    a("s_waitcnt vmcnt(0)")
    a(f"s_add_u32 s{sT+3}, s{sT+3}, 4096"); a(f"s_add_u32 s{sT+4}, s{sT+4}, 4096"); a(f"s_add_u32 s{sT+6}, s{sT+6}, 1")
    a(f"s_cmp_lt_u32 s{sT+6}, s{sT+10}"); a(f"s_cbranch_scc1 {name}_fixZ")
    a(f"s_mul_i32 s{sW}, s{sP}, 5440"); a(f"s_add_u32 s{sW}, s{sW}, 0x10000")
    a(f"s_branch {name}_reload")
    kernel_desc(a, name, 512, 102, 256)
    return LB, FB

if __name__ == "__main__":
    import sys
    a = Asm()
    a("; @launch kernel=k2_kernel grid=(256,1,1) block=(256,1,1) lds=131072")
    a('.amdgcn_target "amdgcn-amd-amdhsa--gfx950"')
    opts = {}
    out = "k2_only.s"
    for x in sys.argv[1:]:
        if x.endswith(".s"): out = x
        elif "=" in x:
            k, v = x.split("="); opts[k] = float(v) if "." in v else int(v)
    LB, FB = gen_k2(a, "k2_kernel", stamp=(2 if "stamp2" in sys.argv else 1 if "stamp" in sys.argv else 0), opts=opts)
    open(out, "w").write(a.text())
    print("loop gap load:", LB.hist)
    print("final gap load:", FB.hist)
```

```python
from asmlib import *
from sched import *
from layouts import *

LOG2E = 1.4426950408889634
def f32bits(x):
    import struct
    return struct.unpack("<I", struct.pack("<f", x))[0]

S_A, S_B, S_X, S_F, S_WS = 4, 8, 12, 16, 20
sW_, sJ, sXc = 24, 25, 26
sT = 28

def gen_k1(a, name, stamp=0, opts=None):
    opts = opts or {}
    kernel_begin(a, name)
    def st(k):
        if stamp == 3:
            MID = {0: 76, 4: 78, 5: 80, 6: 82, 7: 84, 8: 86, 15: 88, 3: 90, 2: 92}
            if k in MID and (k in (0, 15) or opts.get("mid")): a(f"s_memrealtime s[{MID[k]}:{MID[k]+1}]")
            if k == 15:
                a("s_waitcnt lgkmcnt(0)")
                for kk, r in MID.items(): a(f"v_writelane_b32 v250, s{r}, {kk}")
            return
        if not stamp: return
        a("s_memrealtime s[84:85]"); a("s_memtime s[86:87]"); a("s_waitcnt lgkmcnt(0)")
        a(f"v_writelane_b32 v250, s84, {k}"); a(f"v_writelane_b32 v251, s86, {k}")
    def st_flush():
        if not stamp: return
        a("s_waitcnt vmcnt(0)"); st(15)
        a(f"s_lshl_b32 s{sT}, s2, 3"); a(f"s_add_u32 s{sT}, s{sT}, s{sW_}"); a(f"s_lshl_b32 s{sT}, s{sT}, 9"); a(f"s_add_u32 s{sT}, s{sT}, {25*MB}")
        a("v_and_b32 v2, 63, v0"); a("v_lshlrev_b32 v2, 2, v2")
        a(f"buffer_store_dword v250, v2, s[{S_WS}:{S_WS+3}], s{sT} offen")
        a(f"buffer_store_dword v251, v2, s[{S_WS}:{S_WS+3}], s{sT} offen offset:256")
    a("s_cmp_ge_u32 s2, 256")
    a(f"s_cbranch_scc1 {name}_end")
    st(0)
    a(f"s_load_dwordx2 s[{S_WS}:{S_WS+1}], s[0:1], 64")
    a(f"s_load_dwordx2 s[{S_X}:{S_X+1}], s[0:1], 8")
    if opts.get("icw", 2) == 2:
        a("s_getpc_b64 s[74:75]")
        a.label(f"{name}_pc")
        NL = 14 if opts.get("unroll") else 8
        a("s_lshr_b32 s73, s2, 3"); a(f"s_mul_i32 s73, s73, {128*NL}")
        a("v_lshl_add_u32 v2, v0, 7, s73"); a(f"v_min_u32 v2, cn_code_end-{name}_pc-4, v2")
        a(f"v_cmp_gt_u32 vcc, {NL}, v0"); a("s_and_saveexec_b64 s[72:73], vcc"); a(f"s_cbranch_execz {name}_nic")
        a("global_load_dword v215, v2, s[74:75]")
        a.label(f"{name}_nic")
        a("s_mov_b64 exec, s[72:73]")
    a("v_lshrrev_b32 v1, 6, v0")
    a(f"s_and_b32 s{sXc}, s2, 7")
    a(f"v_readfirstlane_b32 s{sW_}, v1")
    a(f"s_lshr_b32 s{sJ}, s2, 3")
    if opts.get("wswap", 1): a(f"s_xor_b32 s{sW_}, s{sW_}, 4")
    a("v_and_b32 v1, 63, v0")
    a(f"s_mov_b32 s{S_WS+2}, 0x10000000"); a(f"s_mov_b32 s{S_WS+3}, 0x20000")
    a(f"s_mov_b32 s{S_X+2}, {8*MB}"); a(f"s_mov_b32 s{S_X+3}, 0x20000")
    a(f"s_cmp_ge_u32 s{sJ}, 28"); a(f"s_cbranch_scc1 {name}_pf")
    a(f"s_cmp_ge_u32 s{sJ}, 16"); a(f"s_cbranch_scc1 {name}_c")
    gen_a(a, name, st, opts)
    st_flush()
    a("s_endpgm")
    a.label(f"{name}_c")
    helper_touch(a, name + "_c", "c", opts)
    if opts.get("noc"): a("s_waitcnt vmcnt(0) lgkmcnt(0)"); st(1); st(2); st(4); st(8)
    else: gen_c(a, name, st, opts)
    st_flush()
    a("s_endpgm")
    a.label(f"{name}_pf")
    if opts.get("icw", 2) == 1:
        a("s_getpc_b64 s[74:75]")
        a.label(f"{name}_pc")
        a(f"s_sub_u32 s74, s74, {name}_pc-{name}"); a("s_subb_u32 s75, s75, 0")
        a(f"s_sub_u32 s73, s{sJ}, 28"); a(f"s_lshl_b32 s73, s73, 3"); a(f"s_add_u32 s73, s73, s{sW_}"); a("s_lshl_b32 s73, s73, 11")
        a("v_lshlrev_b32 v2, 5, v1"); a("v_add_u32 v2, s73, v2"); a(f"v_min_u32 v2, cn_code_end-{name}-4, v2")
        a("global_load_dword v3, v2, s[74:75]")
    helper_touch(a, name + "_p", "p", opts)
    if opts.get("xft", 0) == 2:
        a(f"s_load_dwordx2 s[{S_F}:{S_F+1}], s[0:1], 0"); a(f"s_mov_b32 s{S_F+2}, {8*MB}"); a(f"s_mov_b32 s{S_F+3}, 0x20000")
        a(f"s_sub_u32 s72, s{sJ}, 28"); a(f"s_lshl_b32 s74, s{sXc}, 2"); a("s_add_u32 s72, s72, s74"); a("s_lshl_b32 s72, s72, 18")
        a(f"s_lshl_b32 s74, s{sW_}, 15"); a("s_add_u32 s72, s72, s74"); a("s_waitcnt lgkmcnt(0)"); a("s_barrier")
        for i in range(4): a(f"buffer_load_dword v213, v210, s[{S_F}:{S_F+3}], s72 offen"); a("s_add_u32 s72, s72, 8192")
    else: xf_touch(a, opts)
    a("s_waitcnt vmcnt(0) lgkmcnt(0)")
    st_flush()
    a.label(f"{name}_end")
    a("s_endpgm")
    kernel_desc(a, name, 256 if stamp else 216, 100, 256 if stamp else 216)

def gen_a(a, name, st, opts):
    sR, sSo, sM, sWm, sS, sM2 = sT, sT+3, sT+4, sT+5, sT+7, sT+6
    sU0 = sT+8
    vC = 2
    vW = 4
    vTr = 8
    vCa, vCb, vXa, vXb = 12, 13, 14, 15
    vAcc = 16
    Wf = [80, 96]; Cf = 112; sel = [128, 132]
    acc = lambda T, tile: vr(vAcc + (T*4+tile)*4, 4)
    a(f"s_load_dwordx2 s[{S_A}:{S_A+1}], s[0:1], 16")
    a(f"s_load_dwordx2 s[{S_B}:{S_B+1}], s[0:1], 24")
    a(f"s_load_dwordx2 s[{S_F}:{S_F+1}], s[0:1], 0")
    a(f"s_lshl_b32 s{sR}, s{sXc}, 4"); a(f"s_add_u32 s{sR}, s{sR}, s{sJ}")
    a(f"s_mov_b32 s{S_A+2}, {8*MB}"); a(f"s_mov_b32 s{S_A+3}, 0x20000")
    a(f"s_mov_b32 s{S_B+2}, {MB//2}"); a(f"s_mov_b32 s{S_B+3}, 0x20000")
    a(f"s_mov_b32 s{S_F+2}, {8*MB}"); a(f"s_mov_b32 s{S_F+3}, 0x20000")
    t0, t1, t2, t3 = 136, 137, 138, 139
    a(f"v_lshrrev_b32 v{t0}, 3, v1")
    a(f"v_and_b32 v{t1}, 7, v1")
    a(f"v_lshrrev_b32 v{t2}, 4, v1")
    a(f"v_xor_b32 v{t3}, v{t1}, v{t2}")
    a(f"v_lshlrev_b32 v{vC}, 11, v{t0}"); a(f"v_lshl_add_u32 v{vC}, v{t3}, 4, v{vC}")
    a(f"v_xor_b32 v{vC+1}, 64, v{vC}"); a(f"v_add_u32 v{vC+1}, 16384, v{vC+1}")
    a(f"s_lshl_b32 s{sU0+2}, s{sR}, 16"); a(f"s_lshl_b32 s{sU0}, s{sW_}, 7"); a(f"s_add_u32 s{sSo}, s{sU0+2}, s{sU0}")
    NSL = opts.get("nsl", 3)
    a(f"s_mul_i32 s{sWm}, s{sW_}, {NSL*4096}"); a(f"s_add_u32 s{sWm}, s{sWm}, 65536")
    if opts.get("prio"):
        a(f"s_cmp_lt_u32 s{sW_}, 4"); a(f"s_cbranch_scc1 {name}_np"); a("s_setprio 1"); a.label(f"{name}_np")
    a(f"s_and_b32 s{sU0+1}, s{sW_}, 3"); a(f"s_lshr_b32 s{sU0+3}, s{sW_}, 2")
    a(f"s_lshl_b32 s{sM}, s{sU0+1}, 13"); a(f"s_lshl_b32 s{sU0+4}, s{sU0+3}, 12"); a(f"s_add_u32 s{sM}, s{sM}, s{sU0+4}")
    a(f"s_lshl_b32 s{sM2}, s{sU0+1}, 7"); a(f"s_lshl_b32 s{sU0+4}, s{sU0+3}, 15"); a(f"s_add_u32 s{sM2}, s{sM2}, s{sU0+4}"); a(f"s_add_u32 s{sM2}, s{sM2}, s{sU0+2}")
    a(f"v_and_b32 v{t3}, 1, v{t2}"); a(f"v_lshlrev_b32 v{t3}, 1, v{t3}"); a(f"v_xor_b32 v{t3}, v{t3}, v{t1}")
    a(f"v_lshlrev_b32 v{vW}, 10, v{t0}"); a(f"v_lshl_add_u32 v{vW}, v{t3}, 4, v{vW}"); a(f"v_add_u32 v{vW}, s{sU0}, v{vW}")
    a(f"v_xor_b32 v{vW+1}, 64, v{vW}"); a(f"v_add_u32 v{vW+1}, 7168, v{vW+1}")
    a(f"v_add_u32 v{vW+2}, 14336, v{vW}"); a(f"v_add_u32 v{vW+3}, 14336, v{vW+1}")
    def c_dma(half, tag):
        ops = []
        for par in range(2):
            for th in range(2):
                ops += [other(f"s_add_u32 m0, s{sM}, {half*32768+par*2048+th*1024}"),
                        other(f"s_add_u32 s{sU0+1}, s{sM2}, {half*512+par*1024}"),
                        vmem(f"buffer_load_dwordx4 v{vC+th}, s[{S_A}:{S_A+3}], s{sU0+1} offen lds", tag)]
        return ops
    ORDER = list(range(16))
    xpos = opts.get("xpos", 14)
    ORDER = ORDER[:xpos] + ["xa", "xb"] + ORDER[xpos:]
    NS = len(ORDER)
    def dma(i):
        k = ORDER[i]; slot = i % NSL
        if k in ("xa", "xb"):
            hb = 0 if k == "xa" else 1
            ops = []
            for par in range(2):
                for th in range(2):
                    ops += [other(f"s_add_u32 m0, s{sWm}, {slot*4096+par*2048+th*1024}"),
                            other(f"s_add_u32 s{sU0+1}, s{sSo}, {hb*32768+par*1024}"),
                            vmem(f"buffer_load_dwordx4 v{vC+th}, s[{S_X}:{S_X+3}], s{sU0+1} offen lds", f"D{i}")]
            return ops
        return [other(f"s_add_u32 m0, s{sWm}, {slot*4096}"), other(f"s_mov_b32 s{sS}, {k*32768}")] + \
               [vmem(f"buffer_load_dwordx4 v{vW+q}, s[{S_B}:{S_B+3}], s{sS} offen offset:{q*1024} lds", f"D{i}") for q in range(4)]
    def frag_reads(i):
        k = ORDER[i]; slot = i % NSL; dst = Wf[i & 1]
        if k in ("xa", "xb"):
            return [ds(f"ds_read_b128 {vr(dst+8*par+4*h,4)}, v{vXa+h} offset:{slot*4096+par*2048}", f"f{i}") for par in range(2) for h in range(2)]
        return [ds(f"ds_read_b64_tr_b16 {vr(dst+4*T+2*t,2)}, v{vTr+T} offset:{slot*4096+t*512}", f"f{i}") for T in range(4) for t in range(2)]
    def c_read(tile, k): return ds(f"ds_read_b128 {vr(Cf+4*tile,4)}, v{vCa+(k&1)} offset:{(k>>1)*8192+tile*2048}", f"cr{tile}")
    a("s_waitcnt lgkmcnt(0)")
    st(1)
    if opts.get("gprio", 1): a("s_setprio 1")
    pro = c_dma(0, "C0") + [other("s_barrier")] + dma(0)
    for op in pro: a(op.render())
    a(f"v_and_b32 v{t0}, 15, v1")
    a(f"v_lshrrev_b32 v{t1}, 1, v{t0}")
    a(f"v_xor_b32 v{t1}, v{t1}, v{t2}")
    a(f"v_lshlrev_b32 v{vCa}, 7, v{t0}"); a(f"v_lshl_add_u32 v{vCa}, v{t1}, 4, v{vCa}")
    a(f"v_xor_b32 v{vCb}, 64, v{vCa}"); a(f"v_add_u32 v{vXa}, s{sWm}, v{vCa}"); a(f"v_add_u32 v{vXb}, s{sWm}, v{vCb}")
    a(f"v_lshrrev_b32 v{t1}, 2, v{t0}")
    a(f"v_lshl_add_u32 v{t3}, v{t2}, 3, v{t1}")
    a(f"v_lshlrev_b32 v{vTr}, 7, v{t3}")
    a(f"v_and_b32 v{t3}, 3, v{t0}"); a(f"v_lshl_add_u32 v{vTr}, v{t3}, 3, v{vTr}")
    a(f"v_lshrrev_b32 v{t1}, 1, v{t1}"); a(f"v_and_b32 v{t3}, 1, v{t2}"); a(f"v_lshl_add_u32 v{t1}, v{t3}, 1, v{t1}")
    a(f"v_lshl_add_u32 v{vTr}, v{t1}, 5, v{vTr}"); a(f"v_add_u32 v{vTr}, s{sWm}, v{vTr}")
    for T in range(1, 4): a(f"v_xor_b32 v{vTr+T}, {T*32}, v{vTr}")
    a(f"v_lshrrev_b32 v{t1}, 3, v{t0}"); a(f"v_sub_u32 v{t1}, v{t2}, v{t1}")
    a(f"v_bfe_u32 v{t3}, v{t0}, 1, 2"); a(f"v_lshl_add_u32 v{t1}, v{t1}, 2, v{t3}")
    a(f"v_and_b32 v{t3}, 1, v{t0}"); a(f"v_lshlrev_b32 v{t3}, 4, v{t3}"); a(f"v_mov_b32 v{t0}, 0x3f80"); a(f"v_lshlrev_b32 v{t3}, v{t3}, v{t0}")
    for hh in range(2):
        for d in range(4):
            a(f"v_cmp_eq_u32 vcc, {8*hh+d}, v{t1}"); a("s_nop 1"); a(f"v_cndmask_b32 v{sel[hh]+d}, 0, v{t3}, vcc")
    def step(i):
        k = ORDER[i]; slot = i & 1
        isx = k in ("xa", "xb")
        if isx:
            hb = 0 if k == "xa" else 1
            mm = [mfma(f"v_mfma_f32_16x16x32_bf16 {acc(T,2*hb+par)}, {vr(sel[T&1],4)}, {vr(Wf[slot]+8*par+4*(T>>1),4)}, {acc(T,2*hb+par)}") for par in range(2) for T in range(4)]
        else:
            c0 = (lambda T, tile: "0") if i == 0 else acc
            mm = [mfma(f"v_mfma_f32_16x16x32_bf16 {acc(T,tile)}, {vr(Wf[slot]+4*T,4)}, {vr(Cf+4*tile,4)}, {c0(T,tile)}") for tile in range(4) for T in range(4)]
        B = Block(mm); n = len(mm)
        head = [wait(lg=[f"f{i}"] + ([] if isx else ["cr0"]))]
        if k == 7: head += [wait(vm="C1"), other("s_barrier")]
        elif opts.get("abar") and i and i % opts["abar"] == 0: head += [other("s_barrier")]
        B.fix(-1, head)
        if not isx:
            for tile in range(1, 4): B.fix(4*tile-1, wait(lg=f"cr{tile}"))
        ops = dma(i+NSL) if i + NSL < NS else []
        if i == opts.get("c2pos", 1): ops = ops + c_dma(1, "C1")
        sc = n/16
        for q, op in enumerate(ops): B.put(q*0.6*sc*(6/max(6, len(ops))), op)
        if i + 1 < NS:
            B.put(5*sc, wait(vm=f"D{i+1}"))
            for q, op in enumerate(frag_reads(i+1)): B.put((5.5+q)*sc, op)
        if not isx and k < 15:
            for tile in range(4): B.put(4*tile+3.9, c_read(tile, k+1))
        return B.layout(cap=2, slack=1)
    if not opts.get("pair", 0):
        pre = [wait(vm="C0"), other("s_barrier")] + dma(1) + [c_read(t, 0) for t in range(4)] + [wait(vm="D0")] + frag_reads(0) + sum([dma(i) for i in range(2, NSL)], [])
        steps = sum([step(i) for i in range(NS)], [])
    else:
        assert xpos % 2 == 0 and NSL == 3
        W4 = [80, 96, 144, 160]; C2 = [112, 176]
        def fr(i):
            k = ORDER[i]; slot = i % NSL; dst = W4[i & 3]
            if k in ("xa", "xb"):
                return [ds(f"ds_read_b128 {vr(dst+8*par+4*h,4)}, v{vXa+h} offset:{slot*4096+par*2048}", f"f{i}") for par in range(2) for h in range(2)]
            return [ds(f"ds_read_b64_tr_b16 {vr(dst+4*T+2*t,2)}, v{vTr+T} offset:{slot*4096+t*512}", f"f{i}") for T in range(4) for t in range(2)]
        def cr(tile, k): return ds(f"ds_read_b128 {vr(C2[k&1]+4*tile,4)}, v{vCa+(k&1)} offset:{(k>>1)*8192+tile*2048}", f"c{tile}{k&1}")
        def pair(i):
            k = ORDER[i]; isx = k == "xa"
            if isx:
                mm = [mfma(f"v_mfma_f32_16x16x32_bf16 {acc(T,2*hb+par)}, {vr(sel[T&1],4)}, {vr(W4[(i+hb)&3]+8*par+4*(T>>1),4)}, {acc(T,2*hb+par)}") for hb in range(2) for par in range(2) for T in range(4)]
            else:
                mm = [mfma(f"v_mfma_f32_16x16x32_bf16 {acc(T,tile)}, {vr(W4[(i+h)&3]+4*T,4)}, {vr(C2[h]+4*tile,4)}, {'0' if i == 0 and h == (T&1) else acc(T,tile)}")
                      for tile in range(4) for T in range(4) for h in ((0, 1) if T % 2 == 0 else (1, 0))]
            B = Block(mm); sc = len(mm)/32
            head = [wait(lg=[f"f{i+1}"] + ([] if isx else ["c01"]))]
            if k == 6: head += [wait(vm="C1"), other("s_barrier")]
            B.fix(-1, head)
            if not isx:
                for tile in range(1, 4): B.fix(8*tile-1, wait(lg=f"c{tile}1"))
            ops = dma(i+4) if i + 4 < NS else []
            if i == 2*opts.get("c2pos", 1) - 2 + 0 and opts.get("c2pos", 1) >= 1: ops = ops + c_dma(1, "C1")
            for q, op in enumerate(ops): B.put(q*0.8*sc*(6/max(6, len(ops))), op)
            if i + 2 < NS:
                B.put(5*sc, wait(vm=f"D{i+2}"))
                for q, op in enumerate(fr(i+2)): B.put((5.5+q*0.9)*sc, op)
                if i + 5 < NS:
                    B.put(15*sc, wait(lg=f"f{i+2}"))
                    for q, op in enumerate(dma(i+5)): B.put((15.2+q*0.7)*sc, op)
                B.put(20*sc, wait(vm=f"D{i+3}"))
                for q, op in enumerate(fr(i+3)): B.put((20.5+q*0.9)*sc, op)
            if not isx and k < 14:
                for tile in range(4):
                    for h in range(2): B.put(8*tile+7.8+0.1*h, cr(tile, k+2+h))
            return B.layout(cap=2, slack=1)
        pre = [wait(vm="C0"), other("s_barrier")] + dma(1) + [cr(t, h) for t in range(2) for h in range(2)] + [wait(vm="D0")] + fr(0) + dma(2) + \
              [wait(lg="f0")] + dma(3) + [cr(t, h) for t in range(2, 4) for h in range(2)] + [wait(vm="D1")] + fr(1)
        steps = sum([pair(i) for i in range(0, NS, 2)], [])
    resolve([pro, pre, steps])
    st(2)
    if opts.get("fine"):
        a("s_waitcnt vmcnt(7)"); st(9); a("s_waitcnt vmcnt(4)"); st(10); a("s_waitcnt vmcnt(0)"); st(11)
    for op in merge_waits(pre): a(op.render())
    st(3)
    for op in merge_waits(steps):
        if opts.get("nomfma") and op.kind == "mfma": continue
        if opts.get("nocr") and op.kind == "ds" and op.tag.startswith("cr"): continue
        if opts.get("nods") and op.kind == "ds": continue
        a(op.render())
    if opts.get("gprio", 1): a("s_setprio 0")
    st(4)
    A = lambda T, tile, j: vAcc + (T*4+tile)*4 + j
    a("s_nop 7")
    vE = 4; vH = 5
    def part_stats():
        S_ = [6, 7, 8, 9]; Q_ = [10, 11, 12, 13]; M_ = [112, 114, 116, 118]; tp = 120
        TS = [96, 98, 100, 102]; TD = [104, 106, 108, 110]
        for tile in range(4): a(f"v_pk_add_f32 {vr(TS[tile],2)}, {vr(A(0,tile,0),2)}, {vr(A(0,tile,2),2)}")
        for tile in range(4): a(f"v_pk_mul_f32 {vr(TD[tile],2)}, {vr(A(0,tile,0),2)}, {vr(A(0,tile,0),2)}")
        for T in range(4):
            for j in (0, 2):
                if T >= 1:
                    for tile in range(4): a(f"v_pk_add_f32 {vr(TS[tile],2)}, {vr(TS[tile],2)}, {vr(A(T,tile,j),2)}")
                if (T, j) != (0, 0):
                    for tile in range(4): a(f"v_pk_fma_f32 {vr(TD[tile],2)}, {vr(A(T,tile,j),2)}, {vr(A(T,tile,j),2)}, {vr(TD[tile],2)}")
        for tile in range(4): a(f"v_add_f32 v{S_[tile]}, v{TS[tile]}, v{TS[tile]+1}")
        for tile in range(4): a(f"v_add_f32 v{Q_[tile]}, v{TD[tile]}, v{TD[tile]+1}")
        for tile in range(4): a(f"v_mul_f32 v{M_[tile]}, 0xbd800000, v{S_[tile]}")
        for tile in range(4): a(f"v_fmac_f32 v{Q_[tile]}, v{M_[tile]}, v{S_[tile]}")
        def merge(x, y, swap, n):
            a("s_nop 1")
            a(f"{swap} v{S_[x]}, v{S_[y]}"); a(f"{swap} v{Q_[x]}, v{Q_[y]}")
            a("s_nop 0")
            a(f"v_sub_f32 v{tp}, v{S_[x]}, v{S_[y]}"); a(f"v_add_f32 v{S_[x]}, v{S_[x]}, v{S_[y]}")
            a(f"v_mul_f32 v{tp+1}, {hex(f32bits(1.0/(2*n)))}, v{tp}"); a(f"v_add_f32 v{Q_[x]}, v{Q_[x]}, v{Q_[y]}")
            a(f"v_fmac_f32 v{Q_[x]}, v{tp}, v{tp+1}")
        merge(0, 2, "v_permlane32_swap_b32", 16); merge(1, 3, "v_permlane32_swap_b32", 16); merge(0, 1, "v_permlane16_swap_b32", 32)
        a(f"v_mov_b32 v7, v{Q_[0]}")
        a(f"v_lshlrev_b32 v8, 3, v1"); a(f"v_add_u32 v9, s{sWm}, v8")
        a(f"ds_write_b64 v9, v[6:7]")
        a(f"v_add_u32 v8, 65536, v8"); a(f"v_add_u32 v14, {65536+4*NSL*4096}, v8") if False else None
        a(f"v_add_u32 v14, {4*NSL*4096}, v8")
        st(5)
    def part_e():
        a(f"v_lshlrev_b32 v{vE}, 4, v1")
        a(f"s_lshr_b32 s{sU0}, s{sR}, 3"); a(f"s_lshl_b32 s{sU0}, s{sU0}, 19")
        a(f"s_and_b32 s{sU0+1}, s{sR}, 7"); a(f"s_lshl_b32 s{sU0+1}, s{sU0+1}, 10"); a(f"s_add_u32 s{sU0}, s{sU0}, s{sU0+1}")
        a(f"s_and_b32 s{sU0+1}, s{sW_}, 3"); a(f"s_lshl_b32 s{sU0+1}, s{sU0+1}, 14"); a(f"s_add_u32 s{sU0}, s{sU0}, s{sU0+1}")
        a(f"s_add_u32 s{sU0}, s{sU0}, {E_OFF}")
        P = [140+4*i for i in range(8)]
        a(f"s_cmp_ge_u32 s{sW_}, 4"); a(f"s_cbranch_scc1 {name}_eb")
        a("s_nop 1")
        k = 0
        for hb in range(2):
            for hp in range(2):
                for par in range(2):
                    d = P[k % 8]; k += 1; n = "-" if par else ""
                    for q in range(4):
                        T = 2*hp + (q >> 1); j = 2*(q & 1)
                        a(f"v_cvt_pk_bf16_f32 v{d+q}, {n}v{A(T,2*hb+par,j)}, {n}v{A(T,2*hb+par,j+1)}")
                    a(f"s_add_u32 s{sU0+1}, s{sU0}, {hb*262144 + (3 if par else 0)*65536 + hp*8192}")
                    a(f"buffer_store_dwordx4 {vr(d,4)}, v{vE}, s[{S_WS}:{S_WS+3}], s{sU0+1} offen")
        a(f"s_branch {name}_ej")
        a.label(f"{name}_eb")
        a("s_nop 1")
        k = 0
        for hb in range(2):
            for hp in range(2):
                for sg in range(2):
                    d = P[k % 8]; k += 1
                    for q in range(4):
                        T = 2*hp + (q >> 1); j = 2*(q & 1)
                        neg = " neg_lo:[0,1] neg_hi:[0,1]" if sg else ""
                        a(f"v_pk_add_f32 v[124:125], {vr(A(T,2*hb,j),2)}, {vr(A(T,2*hb+1,j),2)}{neg}")
                        a(f"v_cvt_pk_bf16_f32 v{d+q}, v124, v125")
                    a(f"s_add_u32 s{sU0+1}, s{sU0}, {hb*262144 + (1+sg)*65536 + hp*8192}")
                    a(f"buffer_store_dwordx4 {vr(d,4)}, v{vE}, s[{S_WS}:{S_WS+3}], s{sU0+1} offen")
        a.label(f"{name}_ej")
        st(6)
    mode = opts.get("efirst", 2)
    def rendezvous():
        a("s_waitcnt lgkmcnt(0)"); a("s_barrier")
        for i in range(8): a(f"ds_read_b64 {vr(80+2*i,2)}, v{8 if i < 4 else 14} offset:{(i&3)*NSL*4096}")
    if mode == 1: part_e(); part_stats(); rendezvous()
    elif mode == 0: part_stats(); part_e(); rendezvous()
    else:
        n0 = len(a.lines); part_stats(); SL = a.lines[n0:]; del a.lines[n0:]
        part_e(); EL = a.lines[n0:]; del a.lines[n0:]
        cut = [i for i, l in enumerate(SL) if l.startswith("s_nop 1")][0]
        SA, SB = SL[:cut], SL[cut:]
        k = 0
        for l in EL:
            if mode == 3 and (l.startswith(f"{name}_ej:")):
                for x in SB: a(x)
                rendezvous()
            a(l)
            if mode == 3 and l.startswith("s_cbranch_scc1") and l.endswith("_eb"):
                for x in SA + SB: a(x)
                rendezvous()
            if l.startswith("buffer_store"):
                q = k % 8; k += 1
                if q < 7 and (mode == 2 or k > 8):
                    for x in SA[q*len(SA)//7:(q+1)*len(SA)//7]: a(x)
        if mode == 2:
            for x in SB: a(x)
            rendezvous()
    a(f"v_and_b32 v6, 15, v1"); a(f"v_lshrrev_b32 v7, 4, v1")
    a(f"v_lshrrev_b32 v9, 1, v6"); a(f"v_and_b32 v9, 2, v9"); a(f"v_xor_b32 v9, v9, v7")
    a(f"v_lshlrev_b32 v{vH}, 6, v6"); a(f"v_lshl_add_u32 v{vH}, v9, 4, v{vH}")
    a(f"s_lshl_b32 s{sU0}, s{sR}, 12"); a(f"s_lshl_b32 s{sU0+1}, s{sW_}, 20"); a(f"s_add_u32 s{sU0}, s{sU0}, s{sU0+1}"); a(f"s_add_u32 s{sU0}, s{sU0}, {H_OFF}")
    a("s_waitcnt lgkmcnt(0)")
    for i in range(4): a(f"v_pk_add_f32 v[{96+2*i}:{97+2*i}], v[{80+4*i}:{81+4*i}], v[{82+4*i}:{83+4*i}]")
    a("v_pk_add_f32 v[96:97], v[96:97], v[98:99]"); a("v_pk_add_f32 v[100:101], v[100:101], v[102:103]")
    a("v_pk_add_f32 v[6:7], v[96:97], v[100:101]")
    a("v_mul_f32 v8, 0x3e000000, v6")
    for i in range(8): a(f"v_sub_f32 v{96+i}, v{80+2*i}, v8")
    a("v_pk_mul_f32 v[10:11], v[96:97], v[96:97]"); a("v_pk_mul_f32 v[12:13], v[98:99], v[98:99]")
    a("v_pk_fma_f32 v[10:11], v[100:101], v[100:101], v[10:11]"); a("v_pk_fma_f32 v[12:13], v[102:103], v[102:103], v[12:13]")
    a("v_pk_add_f32 v[10:11], v[10:11], v[12:13]"); a("v_add_f32 v9, v10, v11")
    a("v_fmac_f32 v7, 0x3c800000, v9")
    a(f"v_mov_b32 v10, {hex(f32bits(1e-5))}")
    a("v_fmac_f32 v10, 0x3b000000, v7")
    a("v_rsq_f32 v10, v10")
    a("v_mul_f32 v6, 0x3b000000, v6")
    a("v_mov_b32 v8, v6"); a("v_mov_b32 v12, v10"); a("s_nop 0")
    a("v_permlane32_swap_b32 v6, v8"); a("v_permlane32_swap_b32 v10, v12")
    a("v_mov_b32 v7, v6"); a("v_mov_b32 v9, v8"); a("v_mov_b32 v11, v10"); a("v_mov_b32 v13, v12")
    a("v_permlane16_swap_b32 v6, v7"); a("v_permlane16_swap_b32 v8, v9"); a("s_nop 0") if False else None
    a("v_permlane16_swap_b32 v10, v11"); a("v_permlane16_swap_b32 v12, v13")
    K = [80, 82, 84, 86]
    for tile in range(4): a(f"v_mul_f32 v{K[tile]}, {hex(f32bits(-LOG2E))}, v{10+tile}")
    for tile in range(4): a(f"v_mul_f32 v{K[tile]+1}, -v{6+tile}, v{K[tile]}")
    st(7)
    D = [96, 100, 104, 108]; kk = 0
    r8 = opts.get("hround", 1)
    if r8: a("s_mov_b32 s60, 0x00040004")
    if r8 == 2: a(f"s_mov_b32 s62, {hex(f32bits(1.0/(1.0 + 2.0**-7*0.4375/1.4427)))}"); a("s_mov_b32 s63, s62")
    for tile in range(4):
        k = K[tile]; hb, par = tile >> 1, tile & 1
        for hp in range(2):
            d = D[kk % 4]; kk += 1
            E2 = [112, 114, 116, 118] if False else [6, 8, 10, 12]
            for q in range(4):
                T = 2*hp + (q >> 1); j = 2*(q & 1); r = vr(A(T, tile, j), 2); e = E2[q]
                a(f"v_pk_fma_f32 {r}, {r}, {vr(k,2)}, {vr(k,2)} op_sel:[0,0,1] op_sel_hi:[1,0,1]")
                a(f"v_exp_f32 v{e}, v{A(T,tile,j)}"); a(f"v_exp_f32 v{e+1}, v{A(T,tile,j)+1}")
            for q in range(4):
                e = E2[q]
                if r8 == 2: a(f"v_pk_fma_f32 v[{e}:{e+1}], v[{e}:{e+1}], s[62:63], s[62:63]")
                else: a(f"v_pk_add_f32 v[{e}:{e+1}], v[{e}:{e+1}], 1.0 op_sel_hi:[1,0]")
                a(f"v_rcp_f32 v{e}, v{e}"); a(f"v_rcp_f32 v{e+1}, v{e+1}")
            for q in range(4):
                T = 2*hp + (q >> 1); j = 2*(q & 1); r = vr(A(T, tile, j), 2); e = E2[q]
                a(f"v_pk_mul_f32 v[{e}:{e+1}], v[{e}:{e+1}], {r}")
                a(f"v_cvt_pk_f16_f32 v{d+q}, v{e}, v{e+1}")
                if r8 == 1: a(f"v_pk_add_u16 v{d+q}, v{d+q}, s60")
                if r8: a(f"v_and_b32 v{d+q}, 0xfff8fff8, v{d+q}")
            a(f"s_add_u32 s{sU0+1}, s{sU0}, {hp*524288 + par*2048 + hb*1024}")
            a(f"buffer_store_dwordx4 {vr(d,4)}, v{vH}, s[{S_WS}:{S_WS+3}], s{sU0+1} offen")
    st(8)

def xf_touch(a, opts):
    if opts.get("xft", 0) != 1: return
    a(f"s_load_dwordx2 s[{S_F}:{S_F+1}], s[0:1], 0"); a(f"s_mov_b32 s{S_F+2}, {8*MB}"); a(f"s_mov_b32 s{S_F+3}, 0x20000")
    a(f"s_sub_u32 s72, s{sJ}, 16"); a(f"s_lshl_b32 s74, s{sXc}, 4"); a("s_add_u32 s72, s72, s74"); a("s_lshl_b32 s72, s72, 16")
    a(f"s_lshl_b32 s74, s{sW_}, 13"); a("s_add_u32 s72, s72, s74"); a("v_lshlrev_b32 v210, 7, v1")
    a("s_waitcnt lgkmcnt(0)")
    a(f"buffer_load_dword v213, v210, s[{S_F}:{S_F+3}], s72 offen")

def helper_touch(a, name, role, opts):
    duties = [("W", 16, 0, opts.get("nWa", 1), 1), ("W", 48, 131072, opts.get("nWb", 3), 0), ("C", 64, 0, opts.get("nC", 4), 0), ("X", 128, 0, opts.get("nX", 4), 0)]
    a(f"s_load_dwordx4 s[64:67], s[0:1], 16")
    a("v_lshlrev_b32 v210, 7, v1")
    a("v_and_b32 v211, 3, v1"); a("v_lshrrev_b32 v212, 2, v1"); a("v_lshlrev_b32 v211, 7, v211"); a("v_lshl_add_u32 v211, v212, 10, v211"); a("v_add_u32 v211, 512, v211")
    a(f"s_sub_u32 s72, s{sJ}, {16 if role == 'c' else 28}")
    a(f"s_lshl_b32 s73, s{sXc}, 20")
    a("s_waitcnt lgkmcnt(0)")
    a("s_mov_b32 s68, s66"); a("s_mov_b32 s69, s67"); a(f"s_mov_b32 s70, {MB//2}"); a("s_mov_b32 s71, 0x20000")
    a(f"s_mov_b32 s66, {8*MB}"); a("s_mov_b32 s67, 0x20000")
    rot = 0
    for di, (src, tot, off, nc, wt) in enumerate(duties):
        assert (tot - 12*nc) % 4 == 0 and tot >= 12*nc
        n = nc if role == "c" else (tot - 12*nc)//4
        first = 0 if role == "c" else 12*nc
        sh = 14 if src == "C" else 13
        srd, va = {"W": (68, 210), "C": (64, 211), "X": (S_X, 210)}[src]
        if n:
            a(f"s_sub_u32 s74, s{sW_}, {rot}"); a("s_and_b32 s74, s74, 7")
            a(f"s_mul_i32 s75, s72, {n}"); a("s_add_u32 s75, s75, s74"); a(f"s_lshl_b32 s75, s75, {sh}")
            a(f"s_add_u32 s75, s75, {off + (first << sh)}")
            if src != "W": a("s_add_u32 s75, s75, s73")
            for i in range((n+7)//8):
                part = n - 8*i < 8
                if part: a(f"s_cmp_ge_u32 s74, {n-8*i}"); a(f"s_cbranch_scc1 {name}_h{di}")
                a(f"buffer_load_dword v{213+(i&1)}, v{va}, s[{srd}:{srd+3}], s75 offen")
                if not part and 8*(i+1) < n: a(f"s_add_u32 s75, s75, {8 << sh}")
            if wt: a("s_waitcnt vmcnt(0)")
            if n % 8: a.label(f"{name}_h{di}")
            rot = (rot + n) & 7
            a("s_barrier")

def gen_c(a, name, st, opts):
    sDi, sNq, sCh, sAo, sBo, sZc, sM = sT, sT+1, sT+2, sT+3, sT+4, sT+5, sT+6
    sU0 = sT+8
    vA = 2
    vB = 5
    vAr = 8
    vBr = 10
    vZr = 12
    vAcc = 16
    vZf = 64
    Af = [72, 96]; Bf = [120 - 0, 0]
    SLOT = 40960
    acc = lambda dj, kt, nt: vr(vAcc + ((dj*2+kt)*2+nt)*4, 4)
    a(f"s_load_dwordx2 s[{S_A}:{S_A+1}], s[0:1], 40")
    a(f"s_load_dwordx2 s[{S_B}:{S_B+1}], s[0:1], 32")
    a(f"s_sub_u32 s{sNq}, s{sJ}, 16"); a(f"s_lshr_b32 s{sDi}, s{sNq}, 2"); a(f"s_and_b32 s{sNq}, s{sNq}, 3")
    a(f"s_mov_b32 s{S_A+2}, {9*MB//2}"); a(f"s_mov_b32 s{S_A+3}, 0x20000")
    a(f"s_mov_b32 s{S_B+2}, {MB//2}"); a(f"s_mov_b32 s{S_B+3}, 0x20000")
    a(f"s_lshl_b32 s{sCh}, s{sNq}, 1"); a(f"s_mul_i32 s{sU0}, s{sDi}, 3"); a(f"s_add_u32 s{sCh}, s{sCh}, s{sU0}"); a(f"s_and_b32 s{sCh}, s{sCh}, 7")
    t0, t1, t2, t3 = 116, 117, 118, 119
    a(f"v_lshrrev_b32 v{t0}, 3, v1"); a(f"v_and_b32 v{t1}, 7, v1"); a(f"v_lshrrev_b32 v{t2}, 4, v1")
    a(f"s_and_b32 s{sU0}, s{sW_}, 1"); a(f"s_lshl_b32 s{sU0}, s{sU0}, 2")
    a(f"v_xor_b32 v{t3}, v{t1}, v{t2}"); a(f"v_xor_b32 v{t3}, s{sU0}, v{t3}")
    a(f"v_lshlrev_b32 v{vA}, 10, v{t0}"); a(f"v_lshl_add_u32 v{vA}, v{t3}, 4, v{vA}")
    a(f"s_mul_i32 s{sU0}, s{sDi}, 1572864"); a(f"s_lshl_b32 s{sU0+1}, s{sXc}, 16"); a(f"s_add_u32 s{sU0}, s{sU0}, s{sU0+1}")
    a(f"s_lshl_b32 s{sU0+1}, s{sW_}, 13"); a(f"s_add_u32 s{sU0}, s{sU0}, s{sU0+1}")
    a(f"v_add_u32 v{vA}, s{sU0}, v{vA}")
    a(f"v_add_u32 v{vA+1}, 524288, v{vA}"); a(f"v_add_u32 v{vA+2}, 1048576, v{vA}")
    a(f"v_and_b32 v{t3}, 15, v1"); a(f"s_and_b32 s{sU0}, s{sW_}, 1"); a(f"s_lshl_b32 s{sU0}, s{sU0}, 3")
    a(f"v_lshlrev_b32 v{t0}, 1, v{t2}"); a(f"v_xor_b32 v{t0}, s{sU0}, v{t0}"); a(f"v_xor_b32 v{t0}, v{t0}, v{t3}")
    a(f"v_lshlrev_b32 v{vB}, 10, v{t2}"); a(f"v_lshl_add_u32 v{vB}, v{t0}, 4, v{vB}")
    a(f"s_lshl_b32 s{sU0}, s{sW_}, 13"); a(f"s_lshl_b32 s{sU0+1}, s{sNq}, 8"); a(f"s_add_u32 s{sU0}, s{sU0}, s{sU0+1}")
    a(f"v_add_u32 v{vB}, s{sU0}, v{vB}"); a(f"v_add_u32 v{vB+1}, 3072, v{vB}")
    a(f"s_lshl_b32 s{sM}, s{sW_}, 10")
    def dma(slot, tag):
        ops = [other(f"s_lshl_b32 s{sAo}, s{sCh}, 7"), other(f"s_lshl_b32 s{sBo}, s{sCh}, 16")]
        for dj in range(3):
            ops += [other(f"s_add_u32 m0, s{sM}, {slot*SLOT+dj*8192}"), other("s_nop 0"),
                    vmem(f"buffer_load_dwordx4 v{vA+dj}, s[{S_A}:{S_A+3}], s{sAo} offen lds", tag)]
        ops += [other(f"s_lshl_b32 s{sU0}, s{sM}, 1"), other(f"s_add_u32 m0, s{sU0}, {slot*SLOT+24576}"), other("s_nop 0")]
        ops += [vmem(f"buffer_load_dwordx4 v{vB+i}, s[{S_B}:{S_B+3}], s{sBo} offen offset:{i*1024} lds", tag) for i in range(2)]
        ops += [other(f"s_add_u32 s{sCh}, s{sCh}, 1"), other(f"s_and_b32 s{sCh}, s{sCh}, 7")]
        return ops
    a("s_waitcnt lgkmcnt(0)")
    st(1)
    pro = dma(0, "D0")
    for op in pro: a(op.render())
    a(f"v_lshrrev_b32 v{t1}, 1, v{t3}"); a(f"v_xor_b32 v{t1}, v{t1}, v{t2}")
    a(f"v_lshlrev_b32 v{vAr}, 7, v{t3}"); a(f"v_lshl_add_u32 v{vAr}, v{t1}, 4, v{vAr}")
    a(f"s_lshr_b32 s{sU0}, s{sW_}, 2"); a(f"s_lshl_b32 s{sU0+1}, s{sU0}, 12"); a(f"v_add_u32 v{vAr}, s{sU0+1}, v{vAr}")
    a(f"v_xor_b32 v{vAr+1}, 64, v{vAr}")
    a(f"v_lshrrev_b32 v{t0}, 2, v{t3}")
    a(f"v_and_b32 v{t1}, 3, v{t3}"); a(f"v_lshlrev_b32 v{t1}, 3, v{t1}"); a(f"v_add_u32 v{t1}, 24576, v{t1}")
    a(f"s_and_b32 s{sU0+1}, s{sW_}, 3"); a(f"s_lshl_b32 s{sU0+1}, s{sU0+1}, 1")
    a(f"v_lshl_add_u32 v{vBr}, v{t2}, 3, v{t0}"); a(f"v_lshl_add_u32 v{vBr}, v{vBr}, 8, v{t1}")
    a(f"v_and_b32 v{vBr+1}, 1, v{t2}"); a(f"v_lshl_add_u32 v{vBr+1}, v{vBr+1}, 2, v{t0}"); a(f"v_xor_b32 v{vBr+1}, s{sU0+1}, v{vBr+1}")
    a(f"v_lshl_add_u32 v{vBr}, v{vBr+1}, 5, v{vBr}"); a(f"v_xor_b32 v{vBr+1}, 32, v{vBr}")
    a(f"v_lshl_add_u32 v{vZr}, v{t2}, 2, v{t0}"); a(f"v_lshl_add_u32 v{vZr}, v{vZr}, 8, v{t1}")
    a(f"s_lshl_b32 s{sU0}, s{sU0}, 13"); a(f"s_add_u32 s{sU0}, s{sU0}, {3*SLOT-24576}"); a(f"v_add_u32 v{vZr}, s{sU0}, v{vZr}")
    a(f"v_lshrrev_b32 v{vZr+1}, 1, v{t2}"); a(f"v_lshl_add_u32 v{vZr+1}, v{vZr+1}, 2, v{t0}"); a(f"v_xor_b32 v{vZr+1}, s{sU0+1}, v{vZr+1}")
    a(f"v_lshl_add_u32 v{vZr}, v{vZr+1}, 5, v{vZr}"); a(f"v_xor_b32 v{vZr+1}, 32, v{vZr}")
    st(2)
    AF = [72, 96]
    BF = [120, 128]
    FS = [72, 136]
    def rd(c):
        out = []
        for h in range(2):
            b = FS[c & 1] + 32*h
            out += [ds(f"ds_read_b64_tr_b16 {vr(b+24+4*nt+2*t,2)}, v{vBr+nt} offset:{h*8192+t*1024}", f"r{h}b") for nt in range(2) for t in range(2)]
            out += [ds(f"ds_read_b128 {vr(b+4*(dj*2+kt),4)}, v{vAr+h} offset:{dj*8192+kt*2048}", f"r{h}" if dj or kt else f"r{h}a") for dj in range(3) for kt in range(2)]
        return out
    def mm(c):
        return [mfma(f"v_mfma_f32_16x16x32_bf16 {acc(dj,kt,nt)}, {vr(FS[c&1]+32*h+4*(dj*2+kt),4)}, {vr(FS[c&1]+32*h+24+4*nt,4)}, {'0' if c == 0 and h == nt else acc(dj,kt,nt)}")
                for dj in range(3) for kt in range(2) for nt in range(2) for h in ((0, 1) if nt == 0 else (1, 0))]
    zd = [other(f"s_lshl_b32 s{sU0}, s{sM}, 1"), other(f"s_add_u32 m0, s{sU0}, {3*SLOT}"), other(f"s_lshl_b32 s{sU0}, s{sXc}, 16"),
          other(f"s_cmp_lg_u32 s{sDi}, 1"), other(f"s_cbranch_scc1 {name}_nzd")] + \
         [other(f"buffer_load_dwordx4 v{vB+i}, s[{S_B}:{S_B+3}], s{sU0} offen offset:{i*1024} lds") for i in range(2)] + [other(f"{name}_nzd:")]
    r0 = rd(0)
    seq = [other("s_barrier ")] + dma(1, "D1") + [wait(vm="D0"), other("s_barrier")] + r0[:14] + zd + dma(2, "D2") + [wait(lg="r0")] + r0[14:]
    for c in range(8):
        B = Block(mm(c))
        if c < 7:
            step = SLOT if c % 3 < 2 else -2*SLOT
            B.fix(-1, [wait(lg="r1", vm=f"D{c+1}"), other("s_barrier")] + [other(f"v_add_u32 v{r}, {step & 0xffffffff}, v{r}") for r in (vBr, vBr+1)])
            rr = rd(c+1)
            B.put(0, [other(f"v_add_u32 v{vAr}, {step & 0xffffffff}, v{vAr}")])
            for q, r in enumerate((vAr+1,)): B.put(1+2*q+0.5, other(f"v_add_u32 v{r}, {step & 0xffffffff}, v{r}"))
            for q, op in enumerate(rr):
                if q == 14: B.put(q*1.05-0.1, wait(lg="r0a"))
                B.put(q*1.05, op)
            if c + 3 < 8:
                for q, op in enumerate(dma(c % 3, f"D{c+3}")): B.put(2+q*1.0, op)
            seq += B.layout(cap=2, slack=1)
        else:
            B.fix(-1, wait(lg="r1"))
            seq += B.layout()
    resolve([pro, seq])
    nb_ = 0
    def cst(k):
        if opts.get("cfine"):
            a("s_memrealtime s[94:95]"); a("s_memtime s[96:97]"); a("s_waitcnt lgkmcnt(0)"); a(f"v_writelane_b32 v250, s94, {16+k}"); a(f"v_writelane_b32 v250, s96, {32+k}")
    for op in merge_waits(seq):
        if op.text == "s_barrier":
            nb_ += 1
            if nb_ == 8: a("s_barrier"); xf_touch(a, opts); cst(nb_); continue
        if opts.get("cnomfma") and op.kind == "mfma": continue
        a(op.render())
        if op.text == "s_barrier": cst(nb_)
    st(4)
    A = lambda dj, kt, nt, j: vAcc + ((dj*2+kt)*2+nt)*4 + j
    U1, U2 = 72, 88
    for nt in range(2):
        for t in range(2): a(f"ds_read_b64_tr_b16 {vr(vZf+4*nt+2*t,2)}, v{vZr+nt} offset:{t*4096}")
    a("s_nop 3")
    a("v_mov_b32 v2, 0"); a("v_mov_b32 v3, 0")
    for kt in range(2):
        for nt in range(2):
            for j in (0, 2):
                o = (kt*2+nt)*4 + j
                g0, g1, g2 = [vr(A(dj, kt, nt, j), 2) for dj in range(3)]
                a(f"v_pk_add_f32 v[4:5], {g0}, {g2}")
                for r in (A(0, kt, nt, j), A(2, kt, nt, j)): a(f"v_max3_f32 v2, abs(v{r}), abs(v{r+1}), v2")
                a(f"v_pk_add_f32 {vr(U1+o,2)}, v[4:5], {g1}")
                a(f"v_pk_add_f32 {vr(U2+o,2)}, v[4:5], {g1} neg_lo:[0,1] neg_hi:[0,1]")
                for r in (U1+o, U2+o): a(f"v_max3_f32 v3, abs(v{r}), abs(v{r+1}), v3")
    a("v_mul_f32 v3, 0.5, v3"); a("v_max_f32 v2, v2, v3")
    for sh in (8, 4, 2, 1):
        a("s_nop 1"); a(f"v_max_f32_dpp v2, v2, v2 row_ror:{sh} row_mask:0xf bank_mask:0xf")
    a("v_mov_b32 v3, v2"); a("s_nop 1"); a("v_permlane32_swap_b32 v2, v3"); a("s_nop 0"); a("v_max_f32 v2, v2, v3")
    a("v_mov_b32 v3, v2"); a("s_nop 1"); a("v_permlane16_swap_b32 v2, v3"); a("s_nop 0"); a("v_max_f32 v2, v2, v3")
    MX = 3*SLOT + 16384
    a(f"s_lshl_b32 s{sU0}, s{sW_}, 2"); a(f"s_add_u32 s{sU0}, s{sU0}, {MX}"); a(f"v_mov_b32 v3, s{sU0}")
    a("ds_write_b32 v3, v2"); a(f"v_mov_b32 v3, {MX}")
    a("s_waitcnt lgkmcnt(0)"); a("s_barrier")
    a("ds_read_b128 v[4:7], v3"); a("ds_read_b128 v[8:11], v3 offset:16")
    a(f"s_lshl_b32 s{sU0}, s{sNq}, 1"); a(f"s_bfe_u32 s{sU0+1}, s{sW_}, 0x10001"); a(f"s_add_u32 s{sU0}, s{sU0}, s{sU0+1}")
    a(f"s_lshl_b32 s{sU0+1}, s{sXc}, 1"); a(f"s_lshr_b32 s{sU0+2}, s{sW_}, 2"); a(f"s_add_u32 s{sU0+1}, s{sU0+1}, s{sU0+2}")
    a(f"s_and_b32 s{sU0+2}, s{sW_}, 1"); a(f"s_lshl_b32 s{sU0+2}, s{sU0+2}, 11")
    a(f"s_mul_i32 s{sU0+3}, s{sU0}, 786432"); a(f"s_mul_i32 s{sU0+4}, s{sU0+1}, 12288"); a(f"s_add_u32 s{sU0+3}, s{sU0+3}, s{sU0+4}")
    a(f"s_lshl_b32 s{sU0+4}, s{sDi}, 12"); a(f"s_add_u32 s{sU0+3}, s{sU0+3}, s{sU0+4}"); a(f"s_add_u32 s{sU0+3}, s{sU0+3}, s{sU0+2}")
    a(f"s_add_u32 s{sU0+3}, s{sU0+3}, {U_OFF}")
    a(f"s_lshl_b32 s{sU0+4}, s{sU0}, 16"); a(f"s_lshl_b32 s{sU0+5}, s{sU0+1}, 12"); a(f"s_add_u32 s{sU0+4}, s{sU0+4}, s{sU0+5}")
    a(f"s_add_u32 s{sU0+4}, s{sU0+4}, s{sU0+2}"); a(f"s_add_u32 s{sU0+4}, s{sU0+4}, {Z_OFF}")
    a("v_lshlrev_b32 v12, 4, v1")
    a("s_waitcnt lgkmcnt(0)")
    a("v_max3_f32 v4, v4, v5, v6"); a("v_max3_f32 v4, v4, v7, v8"); a("v_max3_f32 v4, v4, v9, v10"); a("v_max_f32 v4, v4, v11")
    a("s_nop 0"); a(f"v_readfirstlane_b32 s{sU0+6}, v4"); a("s_nop 3")
    a(f"s_lshr_b32 s{sU0+6}, s{sU0+6}, 23")
    a(f"s_sub_u32 s{sU0+7}, 121, s{sU0+6}"); a(f"s_and_b32 s{sU0+7}, s{sU0+7}, 7")
    a(f"s_sub_u32 s{sU0+6}, 267, s{sU0+6}"); a(f"s_sub_u32 s{sU0+6}, s{sU0+6}, s{sU0+7}")
    a(f"s_max_u32 s{sU0+6}, s{sU0+6}, 18"); a(f"s_min_u32 s{sU0+6}, s{sU0+6}, 186")
    a(f"s_lshl_b32 s60, s{sU0+6}, 23"); a("s_mov_b32 s62, 0x00040004")
    a(f"v_mov_b32 v6, {hex(f32bits(-1.0/LOG2E))}"); a("v_mul_f32 v6, s60, v6"); a("v_mul_f32 v8, 0.5, v6")
    D = [104, 108, 112, 116]; kk = 0
    for p in range(4):
        for nt in range(2):
            d = D[kk % 4]; kk += 1
            for q in range(4):
                kt, j = q >> 1, 2*(q & 1)
                r = [A(0, kt, nt, j), U1+(kt*2+nt)*4+j, U2+(kt*2+nt)*4+j, A(2, kt, nt, j)][p]
                a(f"v_pk_mul_f32 v[4:5], {vr(r,2)}, v[{8 if p in (1, 2) else 6}:{9 if p in (1, 2) else 7}] op_sel_hi:[1,0]")
                a(f"v_cvt_pk_f16_f32 v{d+q}, v4, v5")
                if opts.get("wround", 1): a(f"v_pk_add_u16 v{d+q}, v{d+q}, s62"); a(f"v_and_b32 v{d+q}, 0xfff8fff8, v{d+q}")
            a(f"s_add_u32 s{sU0+5}, s{sU0+3}, {p*196608}")
            a(f"buffer_store_dwordx4 {vr(d,4)}, v12, s[{S_WS}:{S_WS+3}], s{sU0+5} offen offset:{nt*1024}")
    a(f"s_lshl_b32 s{sU0+5}, s{sNq}, 5"); a(f"s_lshl_b32 s{sU0+6}, s{sDi}, 3"); a(f"s_add_u32 s{sU0+5}, s{sU0+5}, s{sU0+6}")
    a(f"s_add_u32 s{sU0+5}, s{sU0+5}, s{sXc}"); a(f"s_lshl_b32 s{sU0+5}, s{sU0+5}, 2"); a(f"s_add_u32 s{sU0+5}, s{sU0+5}, {SCL_OFF}")
    a("v_mov_b32 v4, s60"); a("v_mov_b32 v5, 0")
    a(f"s_cmp_lg_u32 s{sW_}, 0"); a(f"s_cbranch_scc1 {name}_ns")
    a("s_mov_b64 exec, 1"); a(f"buffer_store_dword v4, v5, s[{S_WS}:{S_WS+3}], s{sU0+5} offen"); a("s_mov_b64 exec, -1")
    a.label(f"{name}_ns")
    a(f"s_cmp_lg_u32 s{sDi}, 1"); a(f"s_cbranch_scc1 {name}_nz")
    a(f"s_cmp_ge_u32 s{sXc}, 4"); a(f"s_cselect_b32 s61, 0x800000, 0"); a("s_sub_u32 s60, s60, s61")
    for i in range(8):
        a(f"v_lshlrev_b32 v4, 16, v{vZf+i}"); a(f"v_and_b32 v5, 0xffff0000, v{vZf+i}")
        a("v_mul_f32 v4, s60, v4"); a("v_mul_f32 v5, s60, v5")
        a(f"v_cvt_pk_bf16_f32 v{vZf+i}, v4, v5")
    for nt in range(2): a(f"buffer_store_dwordx4 {vr(vZf+4*nt,4)}, v12, s[{S_WS}:{S_WS+3}], s{sU0+4} offen offset:{nt*1024}")
    a.label(f"{name}_nz")
    st(8)

if __name__ == "__main__":
    import sys
    import k2
    opts = {}; out = "full.s"
    for x in sys.argv[1:]:
        if x.endswith(".s"): out = x
        elif "=" in x:
            k, v = x.split("="); opts[k] = float(v) if "." in v else int(v)
    stamp = 1 if ("stamp" in sys.argv or "stamp2" in sys.argv) else 3 if ("lite" in sys.argv or "lite2" in sys.argv) else 0
    a = Asm()
    a("; @launch kernel=cn_k1_kernel grid=(256,1,1) block=(512,1,1) lds=163840")
    a("; @launch kernel=cn_k2_kernel grid=(256,1,1) block=(256,1,1) lds=131072")
    a('.amdgcn_target "amdgcn-amd-amdhsa--gfx950"')
    gen_k1(a, "cn_k1_kernel", stamp=stamp, opts=opts)
    o2 = dict(lead=48, nv0=3, npre=4); o2.update(opts)
    opts.setdefault("st1", 1); opts.setdefault("st2", 1)
    k2.gen_k2(a, "cn_k2_kernel", stamp=(2 if ("stamp2" in sys.argv or "lite2" in sys.argv) else stamp), opts=o2)
    a(".text"); a("cn_code_end:"); a("s_endpgm")
    if opts.get("noH") or opts.get("noE"):
        keep = []
        for l in a.lines:
            if l.startswith("cn_k1_kernel_c:"): break
            keep.append(l)
        n = len(keep)
        for i in range(n):
            l = a.lines[i]
            if l.startswith("buffer_store_dwordx4") and ((opts.get("noH") and ", v5, " in l) or (opts.get("noE") and ", v4, " in l)): a.lines[i] = "s_nop 0"
    txt = a.text()
    pol1 = {0: "", 1: " sc1", 2: " sc0 sc1", 3: " nt", 4: " sc1 nt", 5: " sc0"}
    lines = []; ink2 = False
    for l in txt.split("\n"):
        if l.startswith("cn_k2_kernel:"): ink2 = True
        if l.startswith("buffer_store_dwordx4"): l += pol1[opts.get("st2" if ink2 else "st1", 0)]
        if l.startswith("buffer_load_dwordx4"):
            if l.endswith(" lds"): l = l[:-4] + pol1[opts.get("dm2" if ink2 else "dm1", 0)] + " lds"
            elif ink2: l += pol1[opts.get("ld2", 0)]
        lines.append(l)
    open(out, "w").write("\n".join(lines))
```

```python
from asmlib import *
from sched import *
from layouts import *

TILE = 21760
ROWB = 2176
S_H, S_WS, S_XF, S_OUT = 4, 8, 12, 16
sU, sE, sZ, sHA, sHB, sW, sCnt, sSgn = 20, 21, 22, 23, 24, 25, 26, 27
sInv = 28
sMask = 30
sO = 32
sP, sNB, sHBk, sR0 = 36, 37, 38, 39
sScl = 40
sT = 64
sFix = 80
sNinv = 82
vL = 1
vD = 8
vX, vY = 14, 15
vVA, vVB = 16, 56
vRaw = 96
vZ = 120
vXF = 136
vXU = 168
vOut = 232
vEW = 233
vER = 250
vT = 238
vSc = 254
aU, aE = 128, 224

def acc(o, f): return ar((o*4+f)*4, 4)

def gen_k2(a, name, stamp=False, opts=None):
    opts = opts or {}
    kernel_begin(a, name)
    a(f"s_cmp_ge_u32 s2, 256")
    a(f"s_cbranch_scc1 {name}_end")
    def st(k, dyn=None):
        if stamp == 3:
            if k == 0: a("s_memrealtime s[84:85]")
            if k == 16: a("s_memrealtime s[86:87]"); a("s_waitcnt lgkmcnt(0)"); a("v_writelane_b32 v7, s84, 0"); a("v_writelane_b32 v7, s86, 16")
            return
        if not stamp: return
        a("s_memrealtime s[84:85]"); a("s_memtime s[86:87]"); a("s_waitcnt lgkmcnt(0)")
        if dyn is None:
            a(f"v_writelane_b32 v7, s84, {k}"); a(f"v_writelane_b32 v237, s86, {k}")
        else:
            a(f"s_sub_u32 s88, {k}, s{dyn}"); a("s_lshl_b64 exec, 1, s88"); a("v_mov_b32 v7, s84"); a("v_mov_b32 v237, s86"); a("s_mov_b64 exec, -1")
    st(0)
    a(f"s_load_dwordx2 s[{S_XF}:{S_XF+1}], s[0:1], 0")
    a(f"s_load_dwordx2 s[{S_OUT}:{S_OUT+1}], s[0:1], 48")
    a(f"s_load_dwordx2 s[{S_WS}:{S_WS+1}], s[0:1], 64")
    if opts.get("icw2", 2):
        a(f"s_getpc_b64 s[{sT+4}:{sT+5}]")
        a.label(f"{name}_pc")
        if opts.get("icw2", 2) == 1:
            a(f"v_lshlrev_b32 v{vT}, 7, v0"); a(f"v_cmp_gt_u32 vcc, {name}_end-{name}_pc, v{vT}")
        else:
            a(f"s_lshr_b32 s{sT+6}, s2, 3"); NL = 9 if opts.get("unroll") else 3; a(f"s_mul_i32 s{sT+6}, s{sT+6}, {128*NL}")
            a(f"v_lshl_add_u32 v{vT}, v0, 7, s{sT+6}"); a(f"v_min_u32 v{vT}, {name}_end-{name}_pc, v{vT}"); a(f"v_cmp_gt_u32 vcc, {NL}, v0")
        a(f"s_and_saveexec_b64 s[{sT+6}:{sT+7}], vcc"); a(f"s_cbranch_execz {name}_nic")
        a(f"global_load_dword v{vXU}, v{vT}, s[{sT+4}:{sT+5}]")
        a.label(f"{name}_nic")
        a(f"s_mov_b64 exec, s[{sT+6}:{sT+7}]")
    a(f"v_lshrrev_b32 v{vT}, 6, v0")
    a(f"s_and_b32 s{sT}, s2, 7")
    a(f"v_readfirstlane_b32 s{sP}, v{vT}")
    a(f"s_lshr_b32 s{sT+1}, s2, 3")
    a(f"s_and_b32 s{sNB}, s{sT}, 1")
    a(f"s_lshl_b32 s{sNB}, s{sNB}, 2")
    a(f"s_and_b32 s{sT+2}, s{sT+1}, 3")
    a(f"s_or_b32 s{sNB}, s{sNB}, s{sT+2}")
    a(f"s_bfe_u32 s{sHBk}, s{sT+1}, 0x10002")
    a(f"s_lshr_b32 s{sT+2}, s{sT+1}, 3")
    a(f"s_lshr_b32 s{sT+3}, s{sT}, 1")
    a(f"s_lshl_b32 s{sT+3}, s{sT+3}, 2")
    a(f"s_add_u32 s{sT+3}, s{sT+3}, s{sT+2}")
    a(f"s_lshl_b32 s{sR0}, s{sT+3}, 3")
    a(f"v_and_b32 v{vT+1}, 63, v0")
    a(f"v_lshlrev_b32 v{vL}, 4, v{vT+1}")
    a(f"s_mul_i32 s{sT+4}, s{sP}, 340")
    a(f"s_lshl_b32 s{sT+8}, s{sR0}, 12"); a(f"s_lshl_b32 s{sT+5}, s{sHBk}, 10"); a(f"s_add_u32 s{sT+8}, s{sT+8}, s{sT+5}")
    a(f"s_lshl_b32 s{sT+5}, s{sHBk}, 2"); a(f"s_sub_u32 s{sT+5}, 68, s{sT+5}")
    a(f"s_and_b32 s{sT+6}, s{sR0}, 63")
    a(f"s_cmp_eq_u32 s{sT+6}, 0"); a(f"s_cselect_b32 s{sT+9}, 136, 0")
    a(f"s_cmp_eq_u32 s{sT+6}, 56"); a(f"s_movk_i32 s{sT+6}, 1400"); a(f"s_cselect_b32 s{sT+6}, 1224, s{sT+6}")
    a(f"s_sub_u32 s{sT+6}, s{sT+6}, s{sT+9}")
    a(f"s_movk_i32 s{sT+7}, 964"); a(f"s_movk_i32 s{sT+12}, 896"); a(f"s_movk_i32 s{sT+13}, -136")
    a(f"v_add_u32 v{vT+2}, s{sT+4}, v{vT+1}")
    a(f"v_mov_b32 v{vT+8}, 0x40000000")
    for q in range(1410): assert (q*964) >> 16 == q // 68
    def dma_off(j):
        q, z, r, o, t1, t2 = vT+2, vT+3, vT+4, vT+5, vT+6, vT+7
        if j: a(f"v_add_u32 v{q}, 64, v{q}")
        a(f"v_mul_u32_u24 v{z}, s{sT+7}, v{q}")
        a(f"v_lshl_add_u32 v{o}, v{q}, 4, s{sT+8}")
        a(f"v_lshrrev_b32 v{r}, 17, v{z}"); a(f"v_lshrrev_b32 v{z}, 16, v{z}")
        a(f"v_subrev_u32 v{t2}, s{sT+9}, v{q}")
        a(f"v_mad_i32_i24 v{t1}, v{r}, s{sT+13}, v{q}")
        a(f"v_cmp_gt_u32 s[{sT+10}:{sT+11}], s{sT+6}, v{t2}")
        a(f"v_subrev_u32 v{t1}, s{sT+5}, v{t1}")
        a(f"v_mad_u32_u24 v{o}, v{z}, s{sT+12}, v{o}")
        a(f"v_cmp_le_u32 vcc, 4, v{t1}")
        a(f"v_lshl_add_u32 v{o}, v{r}, 7, v{o}")
        if j in (1, 2, 3): a(f"s_sub_u32 s{sT+8}, s{sT+8}, 1024") if False else None
        a(f"s_and_b64 vcc, vcc, s[{sT+10}:{sT+11}]")
        if j & 3: a(f"v_subrev_u32 v{o}, {(j&3)*1024}, v{o}")
        a(f"v_cndmask_b32 v{vD+j}, v{vT+8}, v{o}, vcc")
    for j in range(6): dma_off(j)
    for j in range(1, 6): a(f"v_add_u32 v{vL+j}, {4096*j}, v{vL}")
    a(f"s_lshl_b32 s{sT+4}, s{sNB}, 2"); a(f"s_add_u32 s{sT+4}, s{sT+4}, s{sP}")
    a(f"s_mul_i32 s{sU}, s{sT+4}, 196608"); a(f"s_add_u32 s{sU}, s{sU}, {U_OFF}")
    a(f"s_lshl_b32 s{sT+4}, s{sT+3}, 1"); a(f"s_add_u32 s{sT+4}, s{sT+4}, s{sHBk}")
    a(f"s_lshl_b32 s{sT+4}, s{sT+4}, 2"); a(f"s_add_u32 s{sT+4}, s{sT+4}, s{sP}")
    a(f"s_lshl_b32 s{sE}, s{sT+4}, 16"); a(f"s_add_u32 s{sE}, s{sE}, {E_OFF}")
    a(f"s_add_u32 s{sT+4}, s{sP}, 1"); a(f"s_bfe_u32 s{sT+4}, s{sT+4}, 0x10001")
    a(f"s_lshl_b32 s{sT+4}, s{sT+4}, 15"); a(f"s_lshl_b32 s{sZ}, s{sNB}, 16")
    a(f"s_add_u32 s{sZ}, s{sZ}, s{sT+4}"); a(f"s_add_u32 s{sZ}, s{sZ}, {Z_OFF}")
    a(f"s_mul_i32 s{sW}, s{sP}, 5440"); a(f"s_add_u32 s{sW}, s{sW}, 0x10000")
    a(f"s_mov_b32 s{sMask}, 0xfffff"); a(f"s_mov_b32 s{sMask+1}, 0")
    a(f"s_mov_b64 s[{sFix}:{sFix+1}], 0")
    a("s_waitcnt lgkmcnt(0)")
    st(1)
    a(f"s_add_u32 s{S_H}, s{S_WS}, {H_OFF-4096}"); a(f"s_addc_u32 s{S_H+1}, s{S_WS+1}, 0")
    a(f"s_mov_b32 s{S_H+2}, {8*MB+4096}"); a(f"s_mov_b32 s{S_H+3}, 0x20000")
    a(f"s_mov_b32 s{S_WS+2}, 0x10000000"); a(f"s_mov_b32 s{S_WS+3}, 0x20000")
    a(f"s_mov_b32 s{S_XF+2}, {8*MB}"); a(f"s_mov_b32 s{S_XF+3}, 0x20000")
    a(f"s_mov_b32 s{S_OUT+2}, {8*MB}"); a(f"s_mov_b32 s{S_OUT+3}, 0x20000")
    a(f"s_lshr_b32 s{sScl}, s{sNB}, 1"); a(f"s_lshl_b32 s{sScl}, s{sScl}, 7"); a(f"s_add_u32 s{sScl}, s{sScl}, {SCL_OFF}")
    a(f"v_min_u32 v{vSc}, 23, v{vT+1}"); a(f"v_lshlrev_b32 v{vSc}, 2, v{vSc}")

    def dma_ops(j, soff, m0const, tag):
        ops = []
        if j in (0, 4): ops.append([other(f"s_add_u32 m0, s{sW}, {m0const + (4096 if j == 4 else 0)}")])
        ld = vmem(f"buffer_load_dwordx4 v{vD+j}, s[{S_H}:{S_H+3}], {soff} offen offset:{(j&3)*1024} lds", tag)
        if j == 5:
            ops.append([other(f"s_mov_b64 exec, s[{sMask}:{sMask+1}]"), ld, other("s_mov_b64 exec, -1")])
        else: ops.append([ld])
        return ops
    def u_load(X, k):
        kk = X*12 + k
        return vmem(f"buffer_load_dwordx4 {ar(aU+4*kk,4)}, v{vL+kk//4}, s[{S_WS}:{S_WS+3}], s{sU} offen offset:{(kk%4)*1024}", f"U{kk}")
    def e_load(o):
        return vmem(f"buffer_load_dwordx4 {ar(aE+4*o,4)}, v{vL+o//4}, s[{S_WS}:{S_WS+3}], s{sE} offen offset:{(o%4)*1024}", f"E{o}")
    def z_load(f):
        return vmem(f"buffer_load_dwordx4 {vr(vZ+4*f,4)}, v{vL}, s[{S_WS}:{S_WS+3}], s{sZ} offen offset:{f*1024}", f"Z{f}")
    def v_row(dst, r, half, k):
        rw = vRaw + 8*(k % 3)
        off = half*TILE + r*ROWB
        rd = [ds(f"ds_read_b128 {vr(rw,4)}, v{vX} offset:{off}", f"Ra{k%3}"), ds(f"ds_read_b128 {vr(rw+4,4)}, v{vY} offset:{off}", f"Rb{k%3}")]
        pk = [other(f"v_pk_fma_f16 v{dst+4*r+i}, v{rw+4+i}, s{sSgn}, v{rw+i}") for i in range(4)]
        return rd, wait(lg=f"Rb{k%3}"), pk
    def cm(X, di, f, o):
        V = vVA if X == 0 else vVB
        return mfma(f"v_mfma_f32_16x16x32_f16 {acc(o,f)}, {ar(aU+4*(X*12+di*4+f),4)}, {vr(V+4*(o+di),4)}, {acc(o,f)}")
    def conv(X, dis=(0, 1, 2)):
        return [cm(X, di, f, o) for f in range(4) for o in range(8) for di in (dis if o % 2 == 0 else dis[::-1])]
    def bpart():
        return [mfma(f"v_mfma_f32_16x16x32_bf16 {acc(o,f)}, {vr(vZ+4*f,4)}, {ar(aE+4*o,4)}, {acc(o,f)}") for f in range(4) for o in range(8)]
    def place_v(B, dst, half, lo, hi, k0):
        step = (hi - lo) / 10.0
        for r in range(10):
            rd, w, pk = v_row(dst, r, half, k0 + r)
            p = lo + r*step
            B.put(p, rd[0]); B.put(p+1, rd[1])
            lat = opts.get("lds_lat", 9)
            B.put(p+lat, [w, pk[0]])
            for i in range(1, 4): B.put(p+lat+i, pk[i])
            if opts.get("vand"):
                for i in range(4): B.put(p+lat+4+i, other(f"v_and_b32 v{dst+4*r+i}, s{sNinv+1}, v{dst+4*r+i}"))

    NM = 224
    LEAD = opts.get("lead", 64)
    ug = opts.get("ugroup", 2)
    HAD = opts.get("had", 0)
    def edf_items():
        it = []
        for j in range(6): it.append((HAD, ("HA", j)))
        for f in range(4):
            for di in range(3): it.append((24*f, ("U", di*4+f)))
        for j in range(6): it.append((96, ("HB", j)))
        for f in range(4):
            for di in range(3): it.append((96 + 24*f, ("U", 12+di*4+f)))
        for o in range(8): it.append((192, ("E", o)))
        for f in range(4): it.append((192 + 8*f, ("Z", f)))
        it.sort(key=lambda x: x[0])
        sp = NM / len(it)
        off = min(d - i*sp for i, (d, _) in enumerate(it)) - LEAD
        return [(off + i*sp, w) for i, (d, w) in enumerate(it)]
    def item_ops(w):
        k, j = w
        if k == "HA":
            g = dma_ops(j, f"s{sHA}", 0, f"HA{j}")
            if j == 0: g = [[other(f"s_xor_b32 s{sW}, s{sW}, 0x10000")]] + g
            if j == 5: g.append([other(f"s_add_u32 s{sHA}, s{sHA}, {1*MB}")])
        elif k == "HB":
            g = dma_ops(j, f"s{sHB}", TILE, f"HB{j}")
            if j == 5: g.append([other(f"s_add_u32 s{sHB}, s{sHB}, {1*MB}")])
        elif k == "U":
            g = [[u_load(j // 12, j % 12)]]
            if j == 23: g.append([other(f"s_add_u32 s{sU}, s{sU}, 24576")])
        elif k == "E":
            g = [[e_load(j)]]
            if j == 7: g.append([other(f"s_add_u32 s{sE}, s{sE}, 8192")])
        else:
            g = [[z_load(j)]]
            if j == 3: g.append([other(f"s_add_u32 s{sZ}, s{sZ}, 4096")])
        return g
    ITEMS = edf_items()
    WRAP = [w for p, w in ITEMS if p < 0]
    INIT = [w for p, w in ITEMS if p >= 0]

    def body(final):
        if not final:
            B = Block(conv(0) + conv(1) + bpart())
            for f in range(1, 4): B.fix(24*f-1, wait(vm=f"U{8+f}")); B.fix(96+24*f-1, wait(vm=f"U{20+f}"))
            if HAD: B.fix(-1, wait(vm="U8")); B.fix(HAD-1, [wait(vm="HA5"), other("s_barrier")])
            else: B.fix(-1, [wait(vm=["HA5", "U8"]), other("s_barrier")])
            B.fix(95, [wait(vm=["HB5", "U20"]), other("s_barrier")])
            B.fix(191, wait(vm=["E7", "Z0"]))
            for f in range(1, 4): B.fix(191+8*f, wait(vm=f"Z{f}"))
            place_v(B, vVB, 0, HAD, 84 - (5 if opts.get('vand') else 0), 0)
            place_v(B, vVA, 1, 96, 210 - (5 if opts.get('vand') else 0), 10)
            for p, w in ITEMS:
                for i, ops in enumerate(item_ops(w)): B.put((p % NM) + 0.9*i if (p % NM) + 0.9*i < NM-0.2 else NM-0.2, ops)
            B.put(220, other(f"v_xor_b32 v{vX}, 0x10000, v{vX}"))
            B.put(221, other(f"v_xor_b32 v{vY}, 0x10000, v{vY}"))
            B.put(223.9, other(f"s_sub_u32 s{sCnt}, s{sCnt}, 1"))
        else:
            tail = []
            for o in range(8):
                for f in range(4): tail += [cm(0, 2, f, o)] + [cm(1, di, f, o) for di in range(3)]
            B = Block(conv(0, (0, 1)) + tail)
            for f in range(1, 4): B.fix(16*f-1, wait(vm=[f"U{f}", f"U{4+f}"]))
            assert all(w[0] != "HA" for w in INIT)
            if HAD: B.fix(-1, wait(vm=["U0", "U4"])); B.fix(HAD-1, [wait(vm="HA5"), other("s_barrier")])
            else: B.fix(-1, [wait(vm=["HA5", "U0", "U4"]), other("s_barrier")])
            dl = lambda k: 16*(k % 4) if k < 8 else 64 + 4*(k % 4)
            rest = sorted([w for w in INIT if w[0] == "U"], key=lambda w: dl(w[1]))
            sp = opts.get("fin_sp", 3.5)
            for i, w in enumerate(rest):
                assert 1 + i*sp + 8 < dl(w[1]), (w, i)
                B.put(1 + i*sp, item_ops(w)[0])
            for f in range(4): B.fix(63+4*f, wait(vm=[f"U{k+f}" for k in (8, 12, 16, 20)]))
            place_v(B, vVB, 0, HAD, opts.get("fin_vhi", 92), 0)
            x0 = 1 + len(rest)*sp
            for i in range(8):
                B.put(x0 + 4*i, vmem(f"buffer_load_dwordx4 {vr(vXF+4*i,4)}, v{vOut}, s[{S_XF}:{S_XF+3}], s{sO+(i>>1)} offen offset:{(i&1)*1024}", f"XF{i}"))
            for o in range(7):
                for f in range(4): B.put(64+16*o+4*f+3+9, ex_write(o, f))
            for f in range(2): B.put(64+16*7+4*f+3+9-f, ex_write(7, f))
            hb = [f"HB{j}" for k, j in WRAP if k == "HB"][-1:]
            NH = opts.get("nhid", 2)
            b = [64 + 32*(ph+1) + 12 for ph in range(NH)]
            for ph in range(NH):
                B.put(b[ph], [wait(lg=f"W{2*ph+1}", vm=(hb if ph == 0 and hb else None)), other("s_barrier")])
            allops = [(ph, op) for ph in range(NH) for op in phase_ops(ph, False)]
            if NH == 0: B.put(100, [wait(vm=hb), other("s_barrier")] if hb else [other("s_barrier")])
            pos = 0
            for i, (ph, op) in enumerate(allops):
                pos = max(pos, b[ph] + 0.5)
                B.put(pos, op)
                pos += (191.0 - b[0]) / len(allops)
            NU = opts.get("unp", 0)
            if NU:
                for ph in range(NH, 4):
                    for i in range(8):
                        k = (ph-NH)*8 + i; p = NU + k*(190-NU)/(8*(4-NH))
                        ops = [other(f"v_lshlrev_b32 v{vXU+16*ph+2*i}, 16, v{vXF+8*ph+i}")]
                        if i == 0: ops = [wait(vm=f"XF{2*ph+1}")] + ops
                        B.put(p, ops); B.put(p+0.5, other(f"v_and_b32 v{vXU+16*ph+2*i+1}, 0xffff0000, v{vXF+8*ph+i}"))
        seq = B.layout(cap=1, slack=opts.get("slack", 3), capf=(lambda p: 2 if p >= 108 else 1) if final and opts.get("nhid", 2) else None)
        return seq, B
    def ex_write(o, f):
        return ds(f"ds_write_b128 v{vEW + (f&1) + 2*(o>>2)}, {acc(o,f)} offset:{(o&3)*16384 + (f>>1)*128}", f"W{o}")
    def phase_reads(ph, M):
        return [ds(f"ds_read_b128 {vr(M+8*src+4*e,4)}, v{vER+e+2*(ph>>1)} offset:{(ph&1)*32768+src*4096}", f"X{ph}") for src in range(4) for e in range(2)]
    def phase_ops(ph, packed, M=None, reads=True):
        pre = packed and opts.get("unp", 0)
        if M is None: M = vXU
        ops = phase_reads(ph, M) if reads else []
        y0 = vZ + 8*(ph & 1); y1 = y0 + 4
        for q in range(4):
            m0, m1, m2, m3 = [M+8*s_+2*q for s_ in range(4)]
            t, u = vT + 4*(q & 1), vT + 4*(q & 1) + 2
            x0_, x1_ = vXF + 8*ph + q, vXF + 8*ph + 4 + q
            unp = [other(f"v_lshlrev_b32 v{t}, 16, v{x0_}"), other(f"v_and_b32 v{t+1}, 0xffff0000, v{x0_}"),
                   other(f"v_lshlrev_b32 v{u}, 16, v{x1_}"), other(f"v_and_b32 v{u+1}, 0xffff0000, v{x1_}")]
            if packed:
                xa, xb = (vr(vXU+16*ph+2*q, 2), vr(vXU+16*ph+8+2*q, 2)) if pre else (vr(t, 2), vr(u, 2))
                ng = " neg_lo:[1,0,0] neg_hi:[1,0,0]"
                grp = ([] if pre else unp) + \
                      [other(f"v_pk_add_f32 {vr(m0,2)}, {vr(m0,2)}, {vr(m1,2)}"),
                       other(f"v_pk_add_f32 {vr(m3,2)}, {vr(m1,2)}, {vr(m3,2)} neg_lo:[0,1] neg_hi:[0,1]"),
                       other(f"v_pk_add_f32 {vr(m0,2)}, {vr(m0,2)}, {vr(m2,2)}"),
                       other(f"v_pk_add_f32 {vr(m3,2)}, {vr(m3,2)}, {vr(m2,2)} neg_lo:[0,1] neg_hi:[0,1]"),
                       other(f"v_pk_fma_f32 {vr(t,2)}, {vr(m0,2)}, s[{sInv}:{sInv+1}], {xa}"),
                       other(f"v_pk_fma_f32 {vr(u,2)}, {vr(m3,2)}, s[{sInv}:{sInv+1}], {xb}")]
                wl = 0 if pre else 4
            else:
                grp = unp + [other(f"v_fmac_f32 v{d+i}, s{sc}, v{m+i}") for d, sc, m in
                             ((t, sInv, m0), (u, sInv, m1), (t, sInv, m1), (u, sNinv, m2), (t, sInv, m2), (u, sNinv, m3)) for i in range(2)]
                wl = 4
            grp += [other(f"v_cvt_pk_bf16_f32 v{y0+q}, v{t}, v{t+1}"), other(f"v_cvt_pk_bf16_f32 v{y1+q}, v{u}, v{u+1}")]
            if q == 0:
                grp.insert(wl, wait(lg=f"X{ph}"))
                if not pre: grp.insert(0, wait(vm=f"XF{2*ph+1}"))
            ops += grp
        ops += [vmem(f"buffer_store_dwordx4 {vr(y0,4)}, v{vOut}, s[{S_OUT}:{S_OUT+3}], s{sO+ph} offen", "ST"),
                vmem(f"buffer_store_dwordx4 {vr(y1,4)}, v{vOut}, s[{S_OUT}:{S_OUT+3}], s{sO+ph} offen offset:1024", "ST")]
        return ops

    loop_seq, LB = body(False)
    fin_seq, FB = body(True)
    def flat(groups):
        out = []
        for ops in groups:
            out += ops
            if " m0," in (ops[-1].text or ""): out.append(other("s_nop 0"))
        return out
    pro = []
    a.label(f"{name}_reload")
    pro.append(other(f"s_mov_b32 s{sHA}, 0"))
    for j in range(6): pro += flat(dma_ops(j, f"s{sHA}", 0, f"H0{j}"))
    pro.append(vmem(f"buffer_load_dword v{vSc+1}, v{vSc}, s[{S_WS}:{S_WS+3}], s{sScl} offen", "SC"))
    pro.append(other(f"s_mov_b32 s{sHA}, {MB//2}"))
    pro.append(other(f"s_mov_b32 s{sHB}, {MB}"))
    ez = [("E", o) for o in range(8)] + [("Z", f) for f in range(4)]
    ez = [ez[8]] + ez[:8] + ez[9:]
    npre = opts.get("npre", 2)
    for w in ez[:npre]: pro += flat(item_ops(w))
    rows = [v_row(vVA, r, 0, r) for r in range(10)]
    pro2 = [wait(vm="SC"), other("s_barrier"),
            other(f"v_readfirstlane_b32 s{sT}, v{vSc+1}"), other("s_nop 1"),
            other(f"v_cmp_ne_u32 vcc, s{sT}, v{vSc+1}"),
            other(f"s_sub_u32 s{sInv}, 0x7f000000, s{sT}"), other(f"s_mov_b32 s{sInv+1}, s{sInv}"), other(f"s_xor_b32 s{sNinv}, s{sInv}, 0x80000000"),
            other(f"s_andn2_b64 vcc, vcc, s[{sFix}:{sFix+1}]"),
            other(f"s_cbranch_scc1 {name}_fix")]
    nv0 = opts.get("nv0", 6)
    pro2 += rows[0][0] + rows[1][0] + rows[2][0]
    rem = ez[npre:]
    for r in range(nv0):
        n0, n1 = r*len(rem)//nv0, (r+1)*len(rem)//nv0
        for w in rem[n0:n1]: pro2 += flat(item_ops(w))
        pro2 += [rows[r][1]] + rows[r][2]
        if r + 3 < 10: pro2 += rows[r+3][0]
    B0 = Block([mfma(f"v_mfma_f32_16x16x32_bf16 {acc(o,f)}, {vr(vZ+4*f,4)}, {ar(aE+4*o,4)}, 0") for f in range(4) for o in range(8)])
    B0.fix(-1, wait(vm=["E7", "Z0"]))
    for f in range(1, 4): B0.fix(8*f-1, wait(vm=f"Z{f}"))
    for r in range(nv0, 10):
        p = (r-nv0)*26.0/(10-nv0)
        B0.put(p, [rows[r][1], rows[r][2][0]])
        for i in range(1, 4): B0.put(p+i, rows[r][2][i])
        if r + 3 < 10:
            for i in range(2): B0.put(p+4+i, rows[r+3][0][i])
    for i, w in enumerate(WRAP):
        for k, ops in enumerate(item_ops(w)): B0.put(min(i*31.0/len(WRAP) + 0.3*k, 31.5), ops)
    B0.put(31.6, [other(f"v_xor_b32 v{vX}, 0x10000, v{vX}"), other(f"v_xor_b32 v{vY}, 0x10000, v{vY}")])
    if opts.get("xft2", 0):
        B0.put(31.7, vmem(f"buffer_load_dword v{vXU+1}, v{vXF}, s[{S_XF}:{S_XF+3}], s{sO} offen", "XT"))
    pro2 += B0.layout(cap=2, slack=1)
    epi = [other("s_nop 3"), ex_write(7, 2), other("s_nop 2"), ex_write(7, 3)]
    epi += [wait(lg="ALL"), other("s_barrier")]
    NH = opts.get("nhid", 2); MS = [vVA, vVA+32]
    epi += phase_reads(NH, MS[NH & 1])
    for ph in range(NH, 4):
        ops = phase_ops(ph, True, MS[ph & 1], reads=False)
        k = [i for i, op in enumerate(ops) if op.kind == "wait" and op.lg is not None][0] + 1
        epi += ops[:k] + (phase_reads(ph+1, MS[(ph+1) & 1]) if ph < 3 else []) + ops[k:]
    resolve([pro, pro2, loop_seq, loop_seq, loop_seq, fin_seq, epi])
    def fix_haz(seq):
        out = []
        for op in seq:
            if out and op.kind == "vmem" and op.text.endswith("lds") and out[-1].kind == "x" and " m0," in out[-1].text:
                out.append(other("s_nop 0"))
            out.append(op)
        return out
    loop_seq = fix_haz(loop_seq); pro2 = fix_haz(pro2)
    for op in pro: a(op.render())
    st(2)
    t_, g_ = vT, vT+1
    a(f"v_and_b32 v{t_}, 15, v0"); a(f"v_bfe_u32 v{g_}, v0, 4, 2")
    a(f"s_and_b32 s{sT}, s{sP}, 1"); a(f"s_xor_b32 s{sT}, s{sT}, 1")
    a(f"s_cmp_eq_u32 s{sP}, 2"); a(f"s_cselect_b32 s{sT+1}, 1, 0"); a(f"s_cselect_b32 s{sT+3}, 0, 1")
    a(f"s_cmp_lt_u32 s{sP}, 2"); a(f"s_cselect_b32 s{sT+2}, 1, 0")
    a(f"s_cmp_eq_u32 s{sP}, 1"); a(f"s_mov_b32 s{sSgn}, 0xbc00bc00"); a(f"s_cselect_b32 s{sSgn}, 0x3c003c00, s{sSgn}")
    for dst, par, du in ((vX, sT, sT+1), (vY, sT+2, sT+3)):
        a(f"v_add_u32 v{vT+2}, s{du}, v{t_}")
        a(f"v_subrev_u32 v{vT+3}, s{par}, v{vT+2}")
        a(f"v_lshrrev_b32 v{vT+3}, 1, v{vT+3}"); a(f"v_and_b32 v{vT+3}, 2, v{vT+3}")
        a(f"v_xor_b32 v{vT+3}, v{vT+3}, v{g_}")
        a(f"v_lshlrev_b32 v{vT+2}, 6, v{vT+2}"); a(f"v_lshl_add_u32 v{vT+2}, v{vT+3}, 4, v{vT+2}")
        a(f"s_mul_i32 s{sT+4}, s{par}, 1088"); a(f"s_add_u32 s{sT+4}, s{sT+4}, 0x10000")
        a(f"v_add_u32 v{dst}, s{sT+4}, v{vT+2}")
    a(f"s_lshl_b32 s{sT+4}, s{sP}, 12")
    a(f"v_and_b32 v{vT+2}, 7, v{t_}"); a(f"v_xor_b32 v{vT+2}, v{vT+2}, v{g_}")
    a(f"v_lshlrev_b32 v{vT+3}, 8, v{t_}"); a(f"v_add_u32 v{vT+3}, s{sT+4}, v{vT+3}")
    a(f"v_lshl_add_u32 v{vEW}, v{vT+2}, 4, v{vT+3}")
    a(f"v_xor_b32 v{vEW+1}, 64, v{vEW}")
    a(f"v_add_u32 v{vEW+2}, 0x10000, v{vEW}"); a(f"v_add_u32 v{vEW+3}, 0x10000, v{vEW+1}")
    a(f"v_bfe_u32 v{vT+2}, v0, 3, 3"); a(f"v_and_b32 v{vT+3}, 7, v0")
    a(f"v_lshlrev_b32 v{vT+4}, 1, v{vT+3}"); a(f"v_xor_b32 v{vT+4}, v{vT+4}, v{vT+2}")
    a(f"s_lshr_b32 s{sT+6}, s{sP}, 1"); a(f"s_and_b32 s{sT+7}, s{sP}, 1")
    a(f"s_lshl_b32 s{sT+4}, s{sT+6}, 14"); a(f"s_lshl_b32 s{sT+5}, s{sT+7}, 11"); a(f"s_add_u32 s{sT+4}, s{sT+4}, s{sT+5}")
    a(f"v_lshlrev_b32 v{vT+5}, 8, v{vT+2}"); a(f"v_add_u32 v{vT+5}, s{sT+4}, v{vT+5}")
    a(f"v_lshl_add_u32 v{vER}, v{vT+4}, 4, v{vT+5}"); a(f"v_xor_b32 v{vER+1}, 16, v{vER}")
    a(f"v_add_u32 v{vER+2}, 0x10000, v{vER}"); a(f"v_add_u32 v{vER+3}, 0x10000, v{vER+1}")
    a(f"v_lshlrev_b32 v{vOut}, 11, v{vT+2}"); a(f"v_lshl_add_u32 v{vOut}, v{vT+3}, 4, v{vOut}")
    a(f"s_add_u32 s{sT+4}, s{sT+6}, s{sR0}"); a(f"s_lshl_b32 s{sT+4}, s{sT+4}, 16")
    a(f"s_lshl_b32 s{sT+5}, s{sHBk}, 15"); a(f"s_add_u32 s{sT+4}, s{sT+4}, s{sT+5}")
    a(f"s_lshl_b32 s{sT+5}, s{sT+7}, 14"); a(f"s_add_u32 s{sT+4}, s{sT+4}, s{sT+5}")
    a(f"s_lshl_b32 s{sT+5}, s{sNB}, 7"); a(f"s_add_u32 s{sO}, s{sT+4}, s{sT+5}")
    for i in range(1, 4): a(f"s_add_u32 s{sO+i}, s{sO}, {i*131072}")
    a(f"v_and_b32 v{vT+2}, 15, v0"); a(f"v_bfe_u32 v{vT+3}, v0, 4, 2"); a(f"v_lshlrev_b32 v{vXF}, 10, v{vT+2}"); a(f"v_lshl_add_u32 v{vXF}, v{vT+3}, 17, v{vXF}")
    a(f"s_mov_b32 s{sCnt}, 6")
    if opts.get("vand"): a(f"s_mov_b32 s{sNinv+1}, {hex(opts['vand'])}")
    st(3)
    p2 = merge_waits(pro2)
    for op in p2[:2]: a(op.render())
    st(4)
    for op in p2[2:]: a(op.render())
    st(5)
    a(".p2align 6")
    a.label(f"{name}_loop")
    ls = merge_waits(loop_seq)
    if opts.get("x_nobar"): ls = [op if op.text != "s_barrier" else other("s_nop 0") for op in ls]
    if opts.get("x_novalu"): ls = [op for op in ls if not (op.text or "").startswith("v_pk_fma")]
    if opts.get("x_nods"): ls = [op for op in ls if op.kind != "ds"]
    if opts.get("x_novm"): ls = [op for op in ls if op.kind != "vmem"]
    if opts.get("x_nodma"): ls = [op for op in ls if not (op.kind == "vmem" and op.text.endswith("lds"))]
    if opts.get("unroll"):
        for it in range(7):
            for op in ls[:2]: a(op.render())
            if stamp == 2: st(6+it)
            for op in ls[2:]:
                if not (op.text or "").startswith(f"s_sub_u32 s{sCnt},"): a(op.render())
    else:
        for op in ls[:2]: a(op.render())
        if stamp == 2: st(12, sCnt)
        for op in ls[2:]: a(op.render())
        a(f"s_cbranch_scc0 {name}_loop")
    a.label(f"{name}_fin")
    fs = merge_waits(fin_seq)
    for op in fs[:2]: a(op.render())
    if stamp == 2: st(13)
    nm = 0
    for op in fs[2:]:
        a(op.render())
        if op.kind == "mfma":
            nm += 1
            if stamp == 2 and nm in (62, 80, 113, 160): a("s_waitcnt lgkmcnt(0)"); st({62: 17, 80: 18, 113: 19, 160: 20}[nm])
    ep = merge_waits(epi)
    nb = [i for i, op in enumerate(ep) if op.text == "s_barrier"][0] + 1
    for op in ep[:nb]: a(op.render())
    st(14)
    for op in ep[nb:]: a(op.render())
    st(15)
    if stamp:
        a("s_waitcnt vmcnt(0)")
        st(16)
        a(f"s_lshl_b32 s{sT}, s2, 2"); a(f"s_add_u32 s{sT}, s{sT}, s{sP}"); a(f"s_lshl_b32 s{sT}, s{sT}, 9"); a(f"s_add_u32 s{sT}, s{sT}, {24*MB}")
        a(f"v_lshrrev_b32 v2, 2, v{vL}")
        a(f"buffer_store_dword v7, v2, s[{S_WS}:{S_WS+3}], s{sT} offen")
        a(f"buffer_store_dword v237, v2, s[{S_WS}:{S_WS+3}], s{sT} offen offset:256")
    a.label(f"{name}_end")
    a("s_endpgm")
    a.label(f"{name}_fix")
    a("s_waitcnt vmcnt(0)")
    a(f"s_mov_b64 s[{sFix}:{sFix+1}], -1")
    assert npre <= 8
    a(f"s_mov_b32 s{sT+2}, s{sU}"); a(f"s_mov_b32 s{sT+3}, s{sZ}")
    a(f"s_lshl_b32 s{sT+4}, s2, 2"); a(f"s_add_u32 s{sT+4}, s{sT+4}, s{sP}"); a(f"s_mul_i32 s{sU}, s{sT+4}, {PRIV_STRIDE}")
    a(f"s_add_u32 s{sU}, s{sU}, {PRIV_OFF}"); a(f"s_add_u32 s{sZ}, s{sU}, 196608")
    a(f"s_mov_b32 s{sT+4}, s{sU}")
    for i in range(1, 24):
        a(f"v_readlane_b32 s{sT+5}, v{vSc+1}, {i}"); a("s_nop 0"); a(f"s_min_u32 s{sT}, s{sT}, s{sT+5}")
    a(f"v_subrev_u32 v{vT+8}, s{sT}, v{vSc+1}")
    a(f"v_cmp_eq_u32 vcc, 0, v{vT+8}")
    a(f"v_min_u32 v{vT+8}, 0x3f000000, v{vT+8}"); a(f"v_sub_u32 v{vT+8}, 0x3f800000, v{vT+8}")
    a(f"s_ff1_i32_b64 s{sT+5}, vcc"); a(f"s_min_u32 s{sT+5}, s{sT+5}, 23"); a(f"s_lshl_b32 s{sT+5}, s{sT+5}, 2")
    a(f"v_mov_b32 v{vSc}, s{sT+5}")
    a(f"s_mov_b32 s{sT+6}, 0")
    a.label(f"{name}_fixU")
    a(f"s_mul_hi_u32 s{sT+7}, s{sT+6}, 0x55555556")
    a(f"s_mul_i32 s{sT+8}, s{sT+7}, 3"); a(f"s_sub_u32 s{sT+8}, s{sT+6}, s{sT+8}")
    a(f"s_lshr_b32 s{sT+7}, s{sT+7}, 1"); a(f"s_lshl_b32 s{sT+8}, s{sT+8}, 3"); a(f"s_add_u32 s{sT+7}, s{sT+7}, s{sT+8}")
    a("s_nop 3")
    a(f"v_readlane_b32 s{sT+9}, v{vT+8}, s{sT+7}")
    for f in range(4): a(f"buffer_load_dwordx4 {vr(16+4*f,4)}, v{vL}, s[{S_WS}:{S_WS+3}], s{sT+2} offen offset:{f*1024}")
    a(f"v_cvt_f16_f32 v{vT+9}, s{sT+9}"); a("s_nop 0"); a(f"v_pack_b32_f16 v{vT+9}, v{vT+9}, v{vT+9}")
    a("s_waitcnt vmcnt(0)")
    for i in range(16): a(f"v_pk_mul_f16 v{16+i}, v{16+i}, v{vT+9}")
    for f in range(4): a(f"buffer_store_dwordx4 {vr(16+4*f,4)}, v{vL}, s[{S_WS}:{S_WS+3}], s{sT+4} offen offset:{f*1024}")
    a("s_waitcnt vmcnt(0)")
    a(f"s_add_u32 s{sT+2}, s{sT+2}, 4096"); a(f"s_add_u32 s{sT+4}, s{sT+4}, 4096"); a(f"s_add_u32 s{sT+6}, s{sT+6}, 1")
    a(f"s_cmp_lt_u32 s{sT+6}, 48"); a(f"s_cbranch_scc1 {name}_fixU")
    a(f"s_add_u32 s{sT+6}, s{sP}, 1"); a(f"s_bfe_u32 s{sT+6}, s{sT+6}, 0x10001"); a(f"s_lshl_b32 s{sT+6}, s{sT+6}, 3")
    a(f"s_add_u32 s{sT+10}, s{sT+6}, 8")
    a.label(f"{name}_fixZ")
    a(f"s_lshr_b32 s{sT+7}, s{sT+6}, 1"); a(f"s_add_u32 s{sT+7}, s{sT+7}, 8")
    a("s_nop 3")
    a(f"v_readlane_b32 s{sT+9}, v{vT+8}, s{sT+7}")
    for f in range(4): a(f"buffer_load_dwordx4 {vr(16+4*f,4)}, v{vL}, s[{S_WS}:{S_WS+3}], s{sT+3} offen offset:{f*1024}")
    a("s_waitcnt vmcnt(0)")
    for i in range(16):
        a(f"v_lshlrev_b32 v{vT+9}, 16, v{16+i}"); a(f"v_and_b32 v{vT+10}, 0xffff0000, v{16+i}")
        a(f"v_mul_f32 v{vT+9}, s{sT+9}, v{vT+9}"); a(f"v_mul_f32 v{vT+10}, s{sT+9}, v{vT+10}")
        a(f"v_cvt_pk_bf16_f32 v{16+i}, v{vT+9}, v{vT+10}")
    for f in range(4): a(f"buffer_store_dwordx4 {vr(16+4*f,4)}, v{vL}, s[{S_WS}:{S_WS+3}], s{sT+4} offen offset:{f*1024}")
    a("s_waitcnt vmcnt(0)")
    a(f"s_add_u32 s{sT+3}, s{sT+3}, 4096"); a(f"s_add_u32 s{sT+4}, s{sT+4}, 4096"); a(f"s_add_u32 s{sT+6}, s{sT+6}, 1")
    a(f"s_cmp_lt_u32 s{sT+6}, s{sT+10}"); a(f"s_cbranch_scc1 {name}_fixZ")
    a(f"s_mul_i32 s{sW}, s{sP}, 5440"); a(f"s_add_u32 s{sW}, s{sW}, 0x10000")
    a(f"s_branch {name}_reload")
    kernel_desc(a, name, 512, 102, 256)
    return LB, FB

if __name__ == "__main__":
    import sys
    a = Asm()
    a("; @launch kernel=k2_kernel grid=(256,1,1) block=(256,1,1) lds=131072")
    a('.amdgcn_target "amdgcn-amd-amdhsa--gfx950"')
    opts = {}
    out = "k2_only.s"
    for x in sys.argv[1:]:
        if x.endswith(".s"): out = x
        elif "=" in x:
            k, v = x.split("="); opts[k] = float(v) if "." in v else int(v)
    LB, FB = gen_k2(a, "k2_kernel", stamp=(2 if "stamp2" in sys.argv else 1 if "stamp" in sys.argv else 0), opts=opts)
    open(out, "w").write(a.text())
    print("loop gap load:", LB.hist)
    print("final gap load:", FB.hist)
```

```python
from asmlib import *
from sched import *
from layouts import *

TILE = 21760
ROWB = 2176
S_H, S_WS, S_XF, S_OUT = 4, 8, 12, 16
sU, sE, sZ, sHA, sHB, sW, sCnt, sSgn = 20, 21, 22, 23, 24, 25, 26, 27
sInv = 28
sMask = 30
sO = 32
sP, sNB, sHBk, sR0 = 36, 37, 38, 39
sScl = 40
sT = 64
sFix = 80
sNinv = 82
vL = 1
vD = 8
vX, vY = 14, 15
vVA, vVB = 16, 56
vRaw = 96
vZ = 120
vXF = 136
vXU = 168
vOut = 232
vEW = 233
vER = 250
vT = 238
vSc = 254
aU, aE = 128, 224

def acc(o, f): return ar((o*4+f)*4, 4)

def gen_k2(a, name, stamp=False, opts=None):
    opts = opts or {}
    kernel_begin(a, name)
    a(f"s_cmp_ge_u32 s2, 256")
    a(f"s_cbranch_scc1 {name}_end")
    def st(k, dyn=None):
        if stamp == 3:
            if k == 0: a("s_memrealtime s[84:85]")
            if k == 16: a("s_memrealtime s[86:87]"); a("s_waitcnt lgkmcnt(0)"); a("v_writelane_b32 v7, s84, 0"); a("v_writelane_b32 v7, s86, 16")
            return
        if not stamp: return
        a("s_memrealtime s[84:85]"); a("s_memtime s[86:87]"); a("s_waitcnt lgkmcnt(0)")
        if dyn is None:
            a(f"v_writelane_b32 v7, s84, {k}"); a(f"v_writelane_b32 v237, s86, {k}")
        else:
            a(f"s_sub_u32 s88, {k}, s{dyn}"); a("s_lshl_b64 exec, 1, s88"); a("v_mov_b32 v7, s84"); a("v_mov_b32 v237, s86"); a("s_mov_b64 exec, -1")
    st(0)
    a(f"s_load_dwordx2 s[{S_XF}:{S_XF+1}], s[0:1], 0")
    a(f"s_load_dwordx2 s[{S_OUT}:{S_OUT+1}], s[0:1], 48")
    a(f"s_load_dwordx2 s[{S_WS}:{S_WS+1}], s[0:1], 64")
    if opts.get("icw2", 2):
        a(f"s_getpc_b64 s[{sT+4}:{sT+5}]")
        a.label(f"{name}_pc")
        if opts.get("icw2", 2) == 1:
            a(f"v_lshlrev_b32 v{vT}, 7, v0"); a(f"v_cmp_gt_u32 vcc, {name}_end-{name}_pc, v{vT}")
        else:
            a(f"s_lshr_b32 s{sT+6}, s2, 3"); NL = 9 if opts.get("unroll") else 3; a(f"s_mul_i32 s{sT+6}, s{sT+6}, {128*NL}")
            a(f"v_lshl_add_u32 v{vT}, v0, 7, s{sT+6}"); a(f"v_min_u32 v{vT}, {name}_end-{name}_pc, v{vT}"); a(f"v_cmp_gt_u32 vcc, {NL}, v0")
        a(f"s_and_saveexec_b64 s[{sT+6}:{sT+7}], vcc"); a(f"s_cbranch_execz {name}_nic")
        a(f"global_load_dword v{vXU}, v{vT}, s[{sT+4}:{sT+5}]")
        a.label(f"{name}_nic")
        a(f"s_mov_b64 exec, s[{sT+6}:{sT+7}]")
    a(f"v_lshrrev_b32 v{vT}, 6, v0")
    a(f"s_and_b32 s{sT}, s2, 7")
    a(f"v_readfirstlane_b32 s{sP}, v{vT}")
    a(f"s_lshr_b32 s{sT+1}, s2, 3")
    a(f"s_and_b32 s{sNB}, s{sT}, 1")
    a(f"s_lshl_b32 s{sNB}, s{sNB}, 2")
    a(f"s_and_b32 s{sT+2}, s{sT+1}, 3")
    a(f"s_or_b32 s{sNB}, s{sNB}, s{sT+2}")
    a(f"s_bfe_u32 s{sHBk}, s{sT+1}, 0x10002")
    a(f"s_lshr_b32 s{sT+2}, s{sT+1}, 3")
    a(f"s_lshr_b32 s{sT+3}, s{sT}, 1")
    a(f"s_lshl_b32 s{sT+3}, s{sT+3}, 2")
    a(f"s_add_u32 s{sT+3}, s{sT+3}, s{sT+2}")
    a(f"s_lshl_b32 s{sR0}, s{sT+3}, 3")
    a(f"v_and_b32 v{vT+1}, 63, v0")
    a(f"v_lshlrev_b32 v{vL}, 4, v{vT+1}")
    a(f"s_mul_i32 s{sT+4}, s{sP}, 340")
    a(f"s_lshl_b32 s{sT+8}, s{sR0}, 12"); a(f"s_lshl_b32 s{sT+5}, s{sHBk}, 10"); a(f"s_add_u32 s{sT+8}, s{sT+8}, s{sT+5}")
    a(f"s_lshl_b32 s{sT+5}, s{sHBk}, 2"); a(f"s_sub_u32 s{sT+5}, 68, s{sT+5}")
    a(f"s_and_b32 s{sT+6}, s{sR0}, 63")
    a(f"s_cmp_eq_u32 s{sT+6}, 0"); a(f"s_cselect_b32 s{sT+9}, 136, 0")
    a(f"s_cmp_eq_u32 s{sT+6}, 56"); a(f"s_movk_i32 s{sT+6}, 1400"); a(f"s_cselect_b32 s{sT+6}, 1224, s{sT+6}")
    a(f"s_sub_u32 s{sT+6}, s{sT+6}, s{sT+9}")
    a(f"s_movk_i32 s{sT+7}, 964"); a(f"s_movk_i32 s{sT+12}, 896"); a(f"s_movk_i32 s{sT+13}, -136")
    a(f"v_add_u32 v{vT+2}, s{sT+4}, v{vT+1}")
    a(f"v_mov_b32 v{vT+8}, 0x40000000")
    for q in range(1410): assert (q*964) >> 16 == q // 68
    def dma_off(j):
        q, z, r, o, t1, t2 = vT+2, vT+3, vT+4, vT+5, vT+6, vT+7
        if j: a(f"v_add_u32 v{q}, 64, v{q}")
        a(f"v_mul_u32_u24 v{z}, s{sT+7}, v{q}")
        a(f"v_lshl_add_u32 v{o}, v{q}, 4, s{sT+8}")
        a(f"v_lshrrev_b32 v{r}, 17, v{z}"); a(f"v_lshrrev_b32 v{z}, 16, v{z}")
        a(f"v_subrev_u32 v{t2}, s{sT+9}, v{q}")
        a(f"v_mad_i32_i24 v{t1}, v{r}, s{sT+13}, v{q}")
        a(f"v_cmp_gt_u32 s[{sT+10}:{sT+11}], s{sT+6}, v{t2}")
        a(f"v_subrev_u32 v{t1}, s{sT+5}, v{t1}")
        a(f"v_mad_u32_u24 v{o}, v{z}, s{sT+12}, v{o}")
        a(f"v_cmp_le_u32 vcc, 4, v{t1}")
        a(f"v_lshl_add_u32 v{o}, v{r}, 7, v{o}")
        if j in (1, 2, 3): a(f"s_sub_u32 s{sT+8}, s{sT+8}, 1024") if False else None
        a(f"s_and_b64 vcc, vcc, s[{sT+10}:{sT+11}]")
        if j & 3: a(f"v_subrev_u32 v{o}, {(j&3)*1024}, v{o}")
        a(f"v_cndmask_b32 v{vD+j}, v{vT+8}, v{o}, vcc")
    for j in range(6): dma_off(j)
    for j in range(1, 6): a(f"v_add_u32 v{vL+j}, {4096*j}, v{vL}")
    a(f"s_lshl_b32 s{sT+4}, s{sNB}, 2"); a(f"s_add_u32 s{sT+4}, s{sT+4}, s{sP}")
    a(f"s_mul_i32 s{sU}, s{sT+4}, 196608"); a(f"s_add_u32 s{sU}, s{sU}, {U_OFF}")
    a(f"s_lshl_b32 s{sT+4}, s{sT+3}, 1"); a(f"s_add_u32 s{sT+4}, s{sT+4}, s{sHBk}")
    a(f"s_lshl_b32 s{sT+4}, s{sT+4}, 2"); a(f"s_add_u32 s{sT+4}, s{sT+4}, s{sP}")
    a(f"s_lshl_b32 s{sE}, s{sT+4}, 16"); a(f"s_add_u32 s{sE}, s{sE}, {E_OFF}")
    a(f"s_add_u32 s{sT+4}, s{sP}, 1"); a(f"s_bfe_u32 s{sT+4}, s{sT+4}, 0x10001")
    a(f"s_lshl_b32 s{sT+4}, s{sT+4}, 15"); a(f"s_lshl_b32 s{sZ}, s{sNB}, 16")
    a(f"s_add_u32 s{sZ}, s{sZ}, s{sT+4}"); a(f"s_add_u32 s{sZ}, s{sZ}, {Z_OFF}")
    a(f"s_mul_i32 s{sW}, s{sP}, 5440"); a(f"s_add_u32 s{sW}, s{sW}, 0x10000")
    a(f"s_mov_b32 s{sMask}, 0xfffff"); a(f"s_mov_b32 s{sMask+1}, 0")
    a(f"s_mov_b64 s[{sFix}:{sFix+1}], 0")
    a("s_waitcnt lgkmcnt(0)")
    st(1)
    a(f"s_add_u32 s{S_H}, s{S_WS}, {H_OFF-4096}"); a(f"s_addc_u32 s{S_H+1}, s{S_WS+1}, 0")
    a(f"s_mov_b32 s{S_H+2}, {8*MB+4096}"); a(f"s_mov_b32 s{S_H+3}, 0x20000")
    a(f"s_mov_b32 s{S_WS+2}, 0x10000000"); a(f"s_mov_b32 s{S_WS+3}, 0x20000")
    a(f"s_mov_b32 s{S_XF+2}, {8*MB}"); a(f"s_mov_b32 s{S_XF+3}, 0x20000")
    a(f"s_mov_b32 s{S_OUT+2}, {8*MB}"); a(f"s_mov_b32 s{S_OUT+3}, 0x20000")
    S48 = opts.get("scl48", 0); NSC = 48 if S48 else 24
    a(f"s_lshr_b32 s{sScl}, s{sNB}, 1"); a(f"s_lshl_b32 s{sScl}, s{sScl}, {8 if S48 else 7}"); a(f"s_add_u32 s{sScl}, s{sScl}, {SCL_OFF}")
    a(f"v_min_u32 v{vSc}, {NSC-1}, v{vT+1}"); a(f"v_lshlrev_b32 v{vSc}, 2, v{vSc}")

    def dma_ops(j, soff, m0const, tag):
        ops = []
        if j in (0, 4): ops.append([other(f"s_add_u32 m0, s{sW}, {m0const + (4096 if j == 4 else 0)}")])
        ld = vmem(f"buffer_load_dwordx4 v{vD+j}, s[{S_H}:{S_H+3}], {soff} offen offset:{(j&3)*1024} lds", tag)
        if j == 5:
            ops.append([other(f"s_mov_b64 exec, s[{sMask}:{sMask+1}]"), ld, other("s_mov_b64 exec, -1")])
        else: ops.append([ld])
        return ops
    def u_load(X, k):
        kk = X*12 + k
        return vmem(f"buffer_load_dwordx4 {ar(aU+4*kk,4)}, v{vL+kk//4}, s[{S_WS}:{S_WS+3}], s{sU} offen offset:{(kk%4)*1024}", f"U{kk}")
    def e_load(o):
        return vmem(f"buffer_load_dwordx4 {ar(aE+4*o,4)}, v{vL+o//4}, s[{S_WS}:{S_WS+3}], s{sE} offen offset:{(o%4)*1024}", f"E{o}")
    def z_load(f):
        return vmem(f"buffer_load_dwordx4 {vr(vZ+4*f,4)}, v{vL}, s[{S_WS}:{S_WS+3}], s{sZ} offen offset:{f*1024}", f"Z{f}")
    def v_row(dst, r, half, k):
        rw = vRaw + 8*(k % 3)
        off = half*TILE + r*ROWB
        rd = [ds(f"ds_read_b128 {vr(rw,4)}, v{vX} offset:{off}", f"Ra{k%3}"), ds(f"ds_read_b128 {vr(rw+4,4)}, v{vY} offset:{off}", f"Rb{k%3}")]
        pk = [other(f"v_pk_fma_f16 v{dst+4*r+i}, v{rw+4+i}, s{sSgn}, v{rw+i}") for i in range(4)]
        return rd, wait(lg=f"Rb{k%3}"), pk
    def cm(X, di, f, o):
        V = vVA if X == 0 else vVB
        return mfma(f"v_mfma_f32_16x16x32_f16 {acc(o,f)}, {ar(aU+4*(X*12+di*4+f),4)}, {vr(V+4*(o+di),4)}, {acc(o,f)}")
    def conv(X, dis=(0, 1, 2)):
        return [cm(X, di, f, o) for f in range(4) for o in range(8) for di in (dis if o % 2 == 0 else dis[::-1])]
    def bpart():
        return [mfma(f"v_mfma_f32_16x16x32_bf16 {acc(o,f)}, {vr(vZ+4*f,4)}, {ar(aE+4*o,4)}, {acc(o,f)}") for f in range(4) for o in range(8)]
    def place_v(B, dst, half, lo, hi, k0):
        step = (hi - lo) / 10.0
        for r in range(10):
            rd, w, pk = v_row(dst, r, half, k0 + r)
            p = lo + r*step
            B.put(p, rd[0]); B.put(p+1, rd[1])
            lat = opts.get("lds_lat", 9)
            B.put(p+lat, [w, pk[0]])
            for i in range(1, 4): B.put(p+lat+i, pk[i])
            if opts.get("vand"):
                for i in range(4): B.put(p+lat+4+i, other(f"v_and_b32 v{dst+4*r+i}, s{sNinv+1}, v{dst+4*r+i}"))

    NM = 224
    LEAD = opts.get("lead", 64)
    ug = opts.get("ugroup", 2)
    BM = opts.get("bmerge", 1)
    HAD = opts.get("had", 0)
    def edf_items():
        it = []
        for j in range(6): it.append((HAD, ("HA", j)))
        for f in range(4):
            for di in range(3): it.append((24*f, ("U", di*4+f)))
        for j in range(6): it.append((96, ("HB", j)))
        if BM:
            for f in range(4):
                for di in range(3): it.append((96 + 32*f, ("U", 12+di*4+f)))
                it.append((96 + 32*f, ("Z", f)))
            for o in range(8): it.append((96 + 16*(o//4), ("E", o)))
        else:
            for f in range(4):
                for di in range(3): it.append((96 + 24*f, ("U", 12+di*4+f)))
            for o in range(8): it.append((192, ("E", o)))
            for f in range(4): it.append((192 + 8*f, ("Z", f)))
        it.sort(key=lambda x: x[0])
        sp = NM / len(it)
        off = min(d - i*sp for i, (d, _) in enumerate(it)) - LEAD
        return [(off + i*sp, w) for i, (d, w) in enumerate(it)]
    def item_ops(w):
        k, j = w
        if k == "HA":
            g = dma_ops(j, f"s{sHA}", 0, f"HA{j}")
            if j == 0: g = [[other(f"s_xor_b32 s{sW}, s{sW}, 0x10000")]] + g
            if j == 5: g.append([other(f"s_add_u32 s{sHA}, s{sHA}, {1*MB}")])
        elif k == "HB":
            g = dma_ops(j, f"s{sHB}", TILE, f"HB{j}")
            if j == 5: g.append([other(f"s_add_u32 s{sHB}, s{sHB}, {1*MB}")])
        elif k == "U":
            g = [[u_load(j // 12, j % 12)]]
            if j == 23: g.append([other(f"s_add_u32 s{sU}, s{sU}, 24576")])
        elif k == "E":
            g = [[e_load(j)]]
            if j == 7: g.append([other(f"s_add_u32 s{sE}, s{sE}, 8192")])
        else:
            g = [[z_load(j)]]
            if j == 3: g.append([other(f"s_add_u32 s{sZ}, s{sZ}, 4096")])
        return g
    ITEMS = edf_items()
    WRAP = [w for p, w in ITEMS if p < 0]
    INIT = [w for p, w in ITEMS if p >= 0]

    def body(final):
        if not final:
            if BM:
                bp = bpart(); second = []
                for f in range(4):
                    for o in range(8):
                        ch = [cm(1, di, f, o) for di in range(3)] + [bp[f*8+o]]
                        second += ch if o % 2 == 0 else ch[::-1]
                B = Block(conv(0) + second)
                for f in range(1, 4): B.fix(24*f-1, wait(vm=f"U{8+f}")); B.fix(96+32*f-1, wait(vm=[f"U{20+f}", f"Z{f}"]))
                B.fix(95, [wait(vm=["HB5", "U20", "Z0", "E3"]), other("s_barrier")])
                B.fix(111, wait(vm="E7"))
            else:
                B = Block(conv(0) + conv(1) + bpart())
                for f in range(1, 4): B.fix(24*f-1, wait(vm=f"U{8+f}")); B.fix(96+24*f-1, wait(vm=f"U{20+f}"))
                B.fix(95, [wait(vm=["HB5", "U20"]), other("s_barrier")])
                B.fix(191, wait(vm=["E7", "Z0"]))
                for f in range(1, 4): B.fix(191+8*f, wait(vm=f"Z{f}"))
            if HAD: B.fix(-1, wait(vm="U8")); B.fix(HAD-1, [wait(vm="HA5"), other("s_barrier")])
            else: B.fix(-1, [wait(vm=["HA5", "U8"]), other("s_barrier")])
            assert all(w[0] in ("HA", "U", "HB") for w in WRAP)
            place_v(B, vVB, 0, HAD, 84 - (5 if opts.get('vand') else 0), 0)
            place_v(B, vVA, 1, 96, 210 - (5 if opts.get('vand') else 0), 10)
            for p, w in ITEMS:
                for i, ops in enumerate(item_ops(w)): B.put((p % NM) + 0.9*i if (p % NM) + 0.9*i < NM-0.2 else NM-0.2, ops)
            B.put(220, other(f"v_xor_b32 v{vX}, 0x10000, v{vX}"))
            B.put(221, other(f"v_xor_b32 v{vY}, 0x10000, v{vY}"))
            B.put(223.9, other(f"s_sub_u32 s{sCnt}, s{sCnt}, 1"))
        else:
            tail = []
            for o in range(8):
                for f in range(4): tail += [cm(0, 2, f, o)] + [cm(1, di, f, o) for di in range(3)]
            B = Block(conv(0, (0, 1)) + tail)
            for f in range(1, 4): B.fix(16*f-1, wait(vm=[f"U{f}", f"U{4+f}"]))
            assert all(w[0] != "HA" for w in INIT)
            if HAD: B.fix(-1, wait(vm=["U0", "U4"])); B.fix(HAD-1, [wait(vm="HA5"), other("s_barrier")])
            else: B.fix(-1, [wait(vm=["HA5", "U0", "U4"]), other("s_barrier")])
            dl = lambda k: 16*(k % 4) if k < 8 else 64 + 4*(k % 4)
            rest = sorted([w for w in INIT if w[0] == "U"], key=lambda w: dl(w[1]))
            sp = opts.get("fin_sp", 3.5)
            for i, w in enumerate(rest):
                assert 1 + i*sp + 8 < dl(w[1]), (w, i)
                B.put(1 + i*sp, item_ops(w)[0])
            for f in range(4): B.fix(63+4*f, wait(vm=[f"U{k+f}" for k in (8, 12, 16, 20)]))
            place_v(B, vVB, 0, HAD, opts.get("fin_vhi", 92), 0)
            x0 = 1 + len(rest)*sp
            for i in range(8):
                B.put(x0 + 4*i, vmem(f"buffer_load_dwordx4 {vr(vXF+4*i,4)}, v{vOut}, s[{S_XF}:{S_XF+3}], s{sO+(i>>1)} offen offset:{(i&1)*1024}", f"XF{i}"))
            for o in range(7):
                for f in range(4): B.put(64+16*o+4*f+3+9, ex_write(o, f))
            for f in range(2): B.put(64+16*7+4*f+3+9-f, ex_write(7, f))
            hb = [f"HB{j}" for k, j in WRAP if k == "HB"][-1:]
            NH = opts.get("nhid", 2)
            b = [64 + 32*(ph+1) + 12 for ph in range(NH)]
            for ph in range(NH):
                B.put(b[ph], [wait(lg=f"W{2*ph+1}", vm=(hb if ph == 0 and hb else None)), other("s_barrier")])
            allops = [(ph, op) for ph in range(NH) for op in phase_ops(ph, False)]
            if NH == 0: B.put(100, [wait(vm=hb), other("s_barrier")] if hb else [other("s_barrier")])
            pos = 0
            for i, (ph, op) in enumerate(allops):
                pos = max(pos, b[ph] + 0.5)
                B.put(pos, op)
                pos += (191.0 - b[0]) / len(allops)
            NU = opts.get("unp", 0)
            if NU:
                for ph in range(NH, 4):
                    for i in range(8):
                        k = (ph-NH)*8 + i; p = NU + k*(190-NU)/(8*(4-NH))
                        ops = [other(f"v_lshlrev_b32 v{vXU+16*ph+2*i}, 16, v{vXF+8*ph+i}")]
                        if i == 0: ops = [wait(vm=f"XF{2*ph+1}")] + ops
                        B.put(p, ops); B.put(p+0.5, other(f"v_and_b32 v{vXU+16*ph+2*i+1}, 0xffff0000, v{vXF+8*ph+i}"))
        seq = B.layout(cap=1, slack=opts.get("slack", 3), capf=(lambda p: 2 if p >= 108 else 1) if final and opts.get("nhid", 2) else None)
        return seq, B
    def ex_write(o, f):
        return ds(f"ds_write_b128 v{vEW + (f&1) + 2*(o>>2)}, {acc(o,f)} offset:{(o&3)*16384 + (f>>1)*128}", f"W{o}")
    def phase_reads(ph, M):
        return [ds(f"ds_read_b128 {vr(M+8*src+4*e,4)}, v{vER+e+2*(ph>>1)} offset:{(ph&1)*32768+src*4096}", f"X{ph}") for src in range(4) for e in range(2)]
    def phase_ops(ph, packed, M=None, reads=True):
        pre = packed and opts.get("unp", 0)
        if M is None: M = vXU
        ops = phase_reads(ph, M) if reads else []
        y0 = vZ + 8*(ph & 1); y1 = y0 + 4
        for q in range(4):
            m0, m1, m2, m3 = [M+8*s_+2*q for s_ in range(4)]
            t, u = vT + 4*(q & 1), vT + 4*(q & 1) + 2
            x0_, x1_ = vXF + 8*ph + q, vXF + 8*ph + 4 + q
            unp = [other(f"v_lshlrev_b32 v{t}, 16, v{x0_}"), other(f"v_and_b32 v{t+1}, 0xffff0000, v{x0_}"),
                   other(f"v_lshlrev_b32 v{u}, 16, v{x1_}"), other(f"v_and_b32 v{u+1}, 0xffff0000, v{x1_}")]
            if packed:
                xa, xb = (vr(vXU+16*ph+2*q, 2), vr(vXU+16*ph+8+2*q, 2)) if pre else (vr(t, 2), vr(u, 2))
                ng = " neg_lo:[1,0,0] neg_hi:[1,0,0]"
                grp = ([] if pre else unp) + \
                      [other(f"v_pk_add_f32 {vr(m0,2)}, {vr(m0,2)}, {vr(m1,2)}"),
                       other(f"v_pk_add_f32 {vr(m3,2)}, {vr(m1,2)}, {vr(m3,2)} neg_lo:[0,1] neg_hi:[0,1]"),
                       other(f"v_pk_add_f32 {vr(m0,2)}, {vr(m0,2)}, {vr(m2,2)}"),
                       other(f"v_pk_add_f32 {vr(m3,2)}, {vr(m3,2)}, {vr(m2,2)} neg_lo:[0,1] neg_hi:[0,1]"),
                       other(f"v_pk_fma_f32 {vr(t,2)}, {vr(m0,2)}, s[{sInv}:{sInv+1}], {xa}"),
                       other(f"v_pk_fma_f32 {vr(u,2)}, {vr(m3,2)}, s[{sInv}:{sInv+1}], {xb}")]
                wl = 0 if pre else 4
            else:
                grp = unp + [other(f"v_fmac_f32 v{d+i}, s{sc}, v{m+i}") for d, sc, m in
                             ((t, sInv, m0), (u, sInv, m1), (t, sInv, m1), (u, sNinv, m2), (t, sInv, m2), (u, sNinv, m3)) for i in range(2)]
                wl = 4
            grp += [other(f"v_cvt_pk_bf16_f32 v{y0+q}, v{t}, v{t+1}"), other(f"v_cvt_pk_bf16_f32 v{y1+q}, v{u}, v{u+1}")]
            if q == 0:
                grp.insert(wl, wait(lg=f"X{ph}"))
                if not pre: grp.insert(0, wait(vm=f"XF{2*ph+1}"))
            ops += grp
        ops += [vmem(f"buffer_store_dwordx4 {vr(y0,4)}, v{vOut}, s[{S_OUT}:{S_OUT+3}], s{sO+ph} offen", "ST"),
                vmem(f"buffer_store_dwordx4 {vr(y1,4)}, v{vOut}, s[{S_OUT}:{S_OUT+3}], s{sO+ph} offen offset:1024", "ST")]
        return ops

    loop_seq, LB = body(False)
    fin_seq, FB = body(True)
    def flat(groups):
        out = []
        for ops in groups:
            out += ops
            if " m0," in (ops[-1].text or ""): out.append(other("s_nop 0"))
        return out
    pro = []
    a.label(f"{name}_reload")
    pro.append(other(f"s_mov_b32 s{sHA}, 0"))
    for j in range(6): pro += flat(dma_ops(j, f"s{sHA}", 0, f"H0{j}"))
    pro.append(vmem(f"buffer_load_dword v{vSc+1}, v{vSc}, s[{S_WS}:{S_WS+3}], s{sScl} offen", "SC"))
    pro.append(other(f"s_mov_b32 s{sHA}, {MB//2}"))
    pro.append(other(f"s_mov_b32 s{sHB}, {MB}"))
    ez = [("E", o) for o in range(8)] + [("Z", f) for f in range(4)]
    ez = [ez[8]] + ez[:8] + ez[9:]
    npre = opts.get("npre", 2)
    for w in ez[:npre]: pro += flat(item_ops(w))
    rows = [v_row(vVA, r, 0, r) for r in range(10)]
    pro2 = [wait(vm="SC"), other("s_barrier"),
            other(f"v_readfirstlane_b32 s{sT}, v{vSc+1}"), other("s_nop 1"),
            other(f"v_cmp_ne_u32 vcc, s{sT}, v{vSc+1}"),
            other(f"s_sub_u32 s{sInv}, 0x7f000000, s{sT}"), other(f"s_mov_b32 s{sInv+1}, s{sInv}"), other(f"s_xor_b32 s{sNinv}, s{sInv}, 0x80000000"),
            other(f"s_andn2_b64 vcc, vcc, s[{sFix}:{sFix+1}]"),
            other(f"s_cbranch_scc1 {name}_fix")]
    nv0 = opts.get("nv0", 6)
    pro2 += rows[0][0] + rows[1][0] + rows[2][0]
    rem = ez[npre:]
    for r in range(nv0):
        n0, n1 = r*len(rem)//nv0, (r+1)*len(rem)//nv0
        for w in rem[n0:n1]: pro2 += flat(item_ops(w))
        pro2 += [rows[r][1]] + rows[r][2]
        if r + 3 < 10: pro2 += rows[r+3][0]
    B0 = Block([mfma(f"v_mfma_f32_16x16x32_bf16 {acc(o,f)}, {vr(vZ+4*f,4)}, {ar(aE+4*o,4)}, 0") for f in range(4) for o in range(8)])
    B0.fix(-1, wait(vm=["E7", "Z0"]))
    for f in range(1, 4): B0.fix(8*f-1, wait(vm=f"Z{f}"))
    for r in range(nv0, 10):
        p = (r-nv0)*26.0/(10-nv0)
        B0.put(p, [rows[r][1], rows[r][2][0]])
        for i in range(1, 4): B0.put(p+i, rows[r][2][i])
        if r + 3 < 10:
            for i in range(2): B0.put(p+4+i, rows[r+3][0][i])
    for i, w in enumerate(WRAP):
        for k, ops in enumerate(item_ops(w)): B0.put(min(i*31.0/len(WRAP) + 0.3*k, 31.5), ops)
    B0.put(31.6, [other(f"v_xor_b32 v{vX}, 0x10000, v{vX}"), other(f"v_xor_b32 v{vY}, 0x10000, v{vY}")])
    if opts.get("xft2", 0):
        B0.put(31.7, vmem(f"buffer_load_dword v{vXU+1}, v{vXF}, s[{S_XF}:{S_XF+3}], s{sO} offen", "XT"))
    pro2 += B0.layout(cap=2, slack=1)
    epi = [other("s_nop 3"), ex_write(7, 2), other("s_nop 2"), ex_write(7, 3)]
    epi += [wait(lg="ALL"), other("s_barrier")]
    NH = opts.get("nhid", 2); MS = [vVA, vVA+32]
    epi += phase_reads(NH, MS[NH & 1])
    for ph in range(NH, 4):
        ops = phase_ops(ph, True, MS[ph & 1], reads=False)
        k = [i for i, op in enumerate(ops) if op.kind == "wait" and op.lg is not None][0] + 1
        epi += ops[:k] + (phase_reads(ph+1, MS[(ph+1) & 1]) if ph < 3 else []) + ops[k:]
    resolve([pro, pro2, loop_seq, loop_seq, loop_seq, fin_seq, epi])
    def fix_haz(seq):
        out = []
        for op in seq:
            if out and op.kind == "vmem" and op.text.endswith("lds") and out[-1].kind == "x" and " m0," in out[-1].text:
                out.append(other("s_nop 0"))
            out.append(op)
        return out
    loop_seq = fix_haz(loop_seq); pro2 = fix_haz(pro2)
    for op in pro: a(op.render())
    st(2)
    t_, g_ = vT, vT+1
    a(f"v_and_b32 v{t_}, 15, v0"); a(f"v_bfe_u32 v{g_}, v0, 4, 2")
    a(f"s_and_b32 s{sT}, s{sP}, 1"); a(f"s_xor_b32 s{sT}, s{sT}, 1")
    a(f"s_cmp_eq_u32 s{sP}, 2"); a(f"s_cselect_b32 s{sT+1}, 1, 0"); a(f"s_cselect_b32 s{sT+3}, 0, 1")
    a(f"s_cmp_lt_u32 s{sP}, 2"); a(f"s_cselect_b32 s{sT+2}, 1, 0")
    a(f"s_cmp_eq_u32 s{sP}, 1"); a(f"s_mov_b32 s{sSgn}, 0xbc00bc00"); a(f"s_cselect_b32 s{sSgn}, 0x3c003c00, s{sSgn}")
    for dst, par, du in ((vX, sT, sT+1), (vY, sT+2, sT+3)):
        a(f"v_add_u32 v{vT+2}, s{du}, v{t_}")
        a(f"v_subrev_u32 v{vT+3}, s{par}, v{vT+2}")
        a(f"v_lshrrev_b32 v{vT+3}, 1, v{vT+3}"); a(f"v_and_b32 v{vT+3}, 2, v{vT+3}")
        a(f"v_xor_b32 v{vT+3}, v{vT+3}, v{g_}")
        a(f"v_lshlrev_b32 v{vT+2}, 6, v{vT+2}"); a(f"v_lshl_add_u32 v{vT+2}, v{vT+3}, 4, v{vT+2}")
        a(f"s_mul_i32 s{sT+4}, s{par}, 1088"); a(f"s_add_u32 s{sT+4}, s{sT+4}, 0x10000")
        a(f"v_add_u32 v{dst}, s{sT+4}, v{vT+2}")
    a(f"s_lshl_b32 s{sT+4}, s{sP}, 12")
    a(f"v_and_b32 v{vT+2}, 7, v{t_}"); a(f"v_xor_b32 v{vT+2}, v{vT+2}, v{g_}")
    a(f"v_lshlrev_b32 v{vT+3}, 8, v{t_}"); a(f"v_add_u32 v{vT+3}, s{sT+4}, v{vT+3}")
    a(f"v_lshl_add_u32 v{vEW}, v{vT+2}, 4, v{vT+3}")
    a(f"v_xor_b32 v{vEW+1}, 64, v{vEW}")
    a(f"v_add_u32 v{vEW+2}, 0x10000, v{vEW}"); a(f"v_add_u32 v{vEW+3}, 0x10000, v{vEW+1}")
    a(f"v_bfe_u32 v{vT+2}, v0, 3, 3"); a(f"v_and_b32 v{vT+3}, 7, v0")
    a(f"v_lshlrev_b32 v{vT+4}, 1, v{vT+3}"); a(f"v_xor_b32 v{vT+4}, v{vT+4}, v{vT+2}")
    a(f"s_lshr_b32 s{sT+6}, s{sP}, 1"); a(f"s_and_b32 s{sT+7}, s{sP}, 1")
    a(f"s_lshl_b32 s{sT+4}, s{sT+6}, 14"); a(f"s_lshl_b32 s{sT+5}, s{sT+7}, 11"); a(f"s_add_u32 s{sT+4}, s{sT+4}, s{sT+5}")
    a(f"v_lshlrev_b32 v{vT+5}, 8, v{vT+2}"); a(f"v_add_u32 v{vT+5}, s{sT+4}, v{vT+5}")
    a(f"v_lshl_add_u32 v{vER}, v{vT+4}, 4, v{vT+5}"); a(f"v_xor_b32 v{vER+1}, 16, v{vER}")
    a(f"v_add_u32 v{vER+2}, 0x10000, v{vER}"); a(f"v_add_u32 v{vER+3}, 0x10000, v{vER+1}")
    a(f"v_lshlrev_b32 v{vOut}, 11, v{vT+2}"); a(f"v_lshl_add_u32 v{vOut}, v{vT+3}, 4, v{vOut}")
    a(f"s_add_u32 s{sT+4}, s{sT+6}, s{sR0}"); a(f"s_lshl_b32 s{sT+4}, s{sT+4}, 16")
    a(f"s_lshl_b32 s{sT+5}, s{sHBk}, 15"); a(f"s_add_u32 s{sT+4}, s{sT+4}, s{sT+5}")
    a(f"s_lshl_b32 s{sT+5}, s{sT+7}, 14"); a(f"s_add_u32 s{sT+4}, s{sT+4}, s{sT+5}")
    a(f"s_lshl_b32 s{sT+5}, s{sNB}, 7"); a(f"s_add_u32 s{sO}, s{sT+4}, s{sT+5}")
    for i in range(1, 4): a(f"s_add_u32 s{sO+i}, s{sO}, {i*131072}")
    a(f"v_and_b32 v{vT+2}, 15, v0"); a(f"v_bfe_u32 v{vT+3}, v0, 4, 2"); a(f"v_lshlrev_b32 v{vXF}, 10, v{vT+2}"); a(f"v_lshl_add_u32 v{vXF}, v{vT+3}, 17, v{vXF}")
    a(f"s_mov_b32 s{sCnt}, 6")
    if opts.get("vand"): a(f"s_mov_b32 s{sNinv+1}, {hex(opts['vand'])}")
    st(3)
    p2 = merge_waits(pro2)
    for op in p2[:2]: a(op.render())
    st(4)
    for op in p2[2:]: a(op.render())
    st(5)
    a(".p2align 6")
    a.label(f"{name}_loop")
    ls = merge_waits(loop_seq)
    if opts.get("x_nobar"): ls = [op if op.text != "s_barrier" else other("s_nop 0") for op in ls]
    if opts.get("x_novalu"): ls = [op for op in ls if not (op.text or "").startswith("v_pk_fma")]
    if opts.get("x_nods"): ls = [op for op in ls if op.kind != "ds"]
    if opts.get("x_novm"): ls = [op for op in ls if op.kind != "vmem"]
    if opts.get("x_nodma"): ls = [op for op in ls if not (op.kind == "vmem" and op.text.endswith("lds"))]
    if opts.get("unroll"):
        for it in range(7):
            for op in ls[:2]: a(op.render())
            if stamp == 2: st(6+it)
            for op in ls[2:]:
                if not (op.text or "").startswith(f"s_sub_u32 s{sCnt},"): a(op.render())
    else:
        for op in ls[:2]: a(op.render())
        if stamp == 2: st(12, sCnt)
        for op in ls[2:]: a(op.render())
        a(f"s_cbranch_scc0 {name}_loop")
    a.label(f"{name}_fin")
    fs = merge_waits(fin_seq)
    for op in fs[:2]: a(op.render())
    if stamp == 2: st(13)
    nm = 0
    for op in fs[2:]:
        a(op.render())
        if op.kind == "mfma":
            nm += 1
            if stamp == 2 and nm in (62, 80, 113, 160): a("s_waitcnt lgkmcnt(0)"); st({62: 17, 80: 18, 113: 19, 160: 20}[nm])
    ep = merge_waits(epi)
    nb = [i for i, op in enumerate(ep) if op.text == "s_barrier"][0] + 1
    for op in ep[:nb]: a(op.render())
    st(14)
    for op in ep[nb:]: a(op.render())
    st(15)
    if stamp:
        a("s_waitcnt vmcnt(0)")
        st(16)
        a(f"s_lshl_b32 s{sT}, s2, 2"); a(f"s_add_u32 s{sT}, s{sT}, s{sP}"); a(f"s_lshl_b32 s{sT}, s{sT}, 9"); a(f"s_add_u32 s{sT}, s{sT}, {24*MB}")
        a(f"v_lshrrev_b32 v2, 2, v{vL}")
        a(f"buffer_store_dword v7, v2, s[{S_WS}:{S_WS+3}], s{sT} offen")
        a(f"buffer_store_dword v237, v2, s[{S_WS}:{S_WS+3}], s{sT} offen offset:256")
    a.label(f"{name}_end")
    a("s_endpgm")
    a.label(f"{name}_fix")
    a("s_waitcnt vmcnt(0)")
    a(f"s_mov_b64 s[{sFix}:{sFix+1}], -1")
    assert npre <= 8
    a(f"s_mov_b32 s{sT+2}, s{sU}"); a(f"s_mov_b32 s{sT+3}, s{sZ}")
    a(f"s_lshl_b32 s{sT+4}, s2, 2"); a(f"s_add_u32 s{sT+4}, s{sT+4}, s{sP}"); a(f"s_mul_i32 s{sU}, s{sT+4}, {PRIV_STRIDE}")
    a(f"s_add_u32 s{sU}, s{sU}, {PRIV_OFF}"); a(f"s_add_u32 s{sZ}, s{sU}, 196608")
    a(f"s_mov_b32 s{sT+4}, s{sU}")
    for i in range(1, NSC):
        a(f"v_readlane_b32 s{sT+5}, v{vSc+1}, {i}"); a("s_nop 0"); a(f"s_min_u32 s{sT}, s{sT}, s{sT+5}")
    a(f"v_subrev_u32 v{vT+8}, s{sT}, v{vSc+1}")
    a(f"v_cmp_eq_u32 vcc, 0, v{vT+8}")
    a(f"v_min_u32 v{vT+8}, 0x3f000000, v{vT+8}"); a(f"v_sub_u32 v{vT+8}, 0x3f800000, v{vT+8}")
    a(f"s_ff1_i32_b64 s{sT+5}, vcc"); a(f"s_min_u32 s{sT+5}, s{sT+5}, {NSC-1}"); a(f"s_lshl_b32 s{sT+5}, s{sT+5}, 2")
    a(f"v_mov_b32 v{vSc}, s{sT+5}")
    a(f"s_mov_b32 s{sT+6}, 0")
    a.label(f"{name}_fixU")
    a(f"s_mul_hi_u32 s{sT+7}, s{sT+6}, 0x55555556")
    a(f"s_mul_i32 s{sT+8}, s{sT+7}, 3"); a(f"s_sub_u32 s{sT+8}, s{sT+6}, s{sT+8}")
    a(f"s_lshr_b32 s{sT+7}, s{sT+7}, 1"); a(f"s_lshl_b32 s{sT+8}, s{sT+8}, 3"); a(f"s_add_u32 s{sT+7}, s{sT+7}, s{sT+8}")
    if S48: a(f"s_mov_b32 s{sT+7}, s{sT+6}")
    a("s_nop 3")
    a(f"v_readlane_b32 s{sT+9}, v{vT+8}, s{sT+7}")
    for f in range(4): a(f"buffer_load_dwordx4 {vr(16+4*f,4)}, v{vL}, s[{S_WS}:{S_WS+3}], s{sT+2} offen offset:{f*1024}")
    a(f"v_cvt_f16_f32 v{vT+9}, s{sT+9}"); a("s_nop 0"); a(f"v_pack_b32_f16 v{vT+9}, v{vT+9}, v{vT+9}")
    a("s_waitcnt vmcnt(0)")
    for i in range(16): a(f"v_pk_mul_f16 v{16+i}, v{16+i}, v{vT+9}")
    for f in range(4): a(f"buffer_store_dwordx4 {vr(16+4*f,4)}, v{vL}, s[{S_WS}:{S_WS+3}], s{sT+4} offen offset:{f*1024}")
    a("s_waitcnt vmcnt(0)")
    a(f"s_add_u32 s{sT+2}, s{sT+2}, 4096"); a(f"s_add_u32 s{sT+4}, s{sT+4}, 4096"); a(f"s_add_u32 s{sT+6}, s{sT+6}, 1")
    a(f"s_cmp_lt_u32 s{sT+6}, 48"); a(f"s_cbranch_scc1 {name}_fixU")
    a(f"s_add_u32 s{sT+6}, s{sP}, 1"); a(f"s_bfe_u32 s{sT+6}, s{sT+6}, 0x10001"); a(f"s_lshl_b32 s{sT+6}, s{sT+6}, 3")
    a(f"s_add_u32 s{sT+10}, s{sT+6}, 8")
    a.label(f"{name}_fixZ")
    if S48: a(f"s_mul_i32 s{sT+7}, s{sT+6}, 3"); a(f"s_add_u32 s{sT+7}, s{sT+7}, 1")
    else: a(f"s_lshr_b32 s{sT+7}, s{sT+6}, 1"); a(f"s_add_u32 s{sT+7}, s{sT+7}, 8")
    a("s_nop 3")
    a(f"v_readlane_b32 s{sT+9}, v{vT+8}, s{sT+7}")
    for f in range(4): a(f"buffer_load_dwordx4 {vr(16+4*f,4)}, v{vL}, s[{S_WS}:{S_WS+3}], s{sT+3} offen offset:{f*1024}")
    a("s_waitcnt vmcnt(0)")
    for i in range(16):
        a(f"v_lshlrev_b32 v{vT+9}, 16, v{16+i}"); a(f"v_and_b32 v{vT+10}, 0xffff0000, v{16+i}")
        a(f"v_mul_f32 v{vT+9}, s{sT+9}, v{vT+9}"); a(f"v_mul_f32 v{vT+10}, s{sT+9}, v{vT+10}")
        a(f"v_cvt_pk_bf16_f32 v{16+i}, v{vT+9}, v{vT+10}")
    for f in range(4): a(f"buffer_store_dwordx4 {vr(16+4*f,4)}, v{vL}, s[{S_WS}:{S_WS+3}], s{sT+4} offen offset:{f*1024}")
    a("s_waitcnt vmcnt(0)")
    a(f"s_add_u32 s{sT+3}, s{sT+3}, 4096"); a(f"s_add_u32 s{sT+4}, s{sT+4}, 4096"); a(f"s_add_u32 s{sT+6}, s{sT+6}, 1")
    a(f"s_cmp_lt_u32 s{sT+6}, s{sT+10}"); a(f"s_cbranch_scc1 {name}_fixZ")
    a(f"s_mul_i32 s{sW}, s{sP}, 5440"); a(f"s_add_u32 s{sW}, s{sW}, 0x10000")
    a(f"s_branch {name}_reload")
    kernel_desc(a, name, 512, 102, 256)
    return LB, FB

if __name__ == "__main__":
    import sys
    a = Asm()
    a("; @launch kernel=k2_kernel grid=(256,1,1) block=(256,1,1) lds=131072")
    a('.amdgcn_target "amdgcn-amd-amdhsa--gfx950"')
    opts = {}
    out = "k2_only.s"
    for x in sys.argv[1:]:
        if x.endswith(".s"): out = x
        elif "=" in x:
            k, v = x.split("="); opts[k] = float(v) if "." in v else int(v)
    LB, FB = gen_k2(a, "k2_kernel", stamp=(2 if "stamp2" in sys.argv else 1 if "stamp" in sys.argv else 0), opts=opts)
    open(out, "w").write(a.text())
    print("loop gap load:", LB.hist)
    print("final gap load:", FB.hist)
```

```python
from asmlib import *
from sched import *
from layouts import *

LOG2E = 1.4426950408889634
def f32bits(x):
    import struct
    return struct.unpack("<I", struct.pack("<f", x))[0]

S_A, S_B, S_X, S_F, S_WS = 4, 8, 12, 16, 20
sW_, sJ, sXc = 24, 25, 26
sT = 28

def gen_k1(a, name, stamp=0, opts=None):
    opts = opts or {}
    kernel_begin(a, name)
    def st(k):
        if stamp == 3:
            MID = {0: 76, 4: 78, 5: 80, 6: 82, 7: 84, 8: 86, 15: 88, 3: 90, 2: 92}
            if k in MID and (k in (0, 15) or opts.get("mid")): a(f"s_memrealtime s[{MID[k]}:{MID[k]+1}]")
            if k == 15:
                a("s_waitcnt lgkmcnt(0)")
                for kk, r in MID.items(): a(f"v_writelane_b32 v250, s{r}, {kk}")
            return
        if not stamp: return
        a("s_memrealtime s[84:85]"); a("s_memtime s[86:87]"); a("s_waitcnt lgkmcnt(0)")
        a(f"v_writelane_b32 v250, s84, {k}"); a(f"v_writelane_b32 v251, s86, {k}")
    def st_flush():
        if not stamp: return
        a("s_waitcnt vmcnt(0)"); st(15)
        a(f"s_lshl_b32 s{sT}, s2, 3"); a(f"s_add_u32 s{sT}, s{sT}, s{sW_}"); a(f"s_lshl_b32 s{sT}, s{sT}, 9"); a(f"s_add_u32 s{sT}, s{sT}, {25*MB}")
        a("v_and_b32 v2, 63, v0"); a("v_lshlrev_b32 v2, 2, v2")
        a(f"buffer_store_dword v250, v2, s[{S_WS}:{S_WS+3}], s{sT} offen")
        a(f"buffer_store_dword v251, v2, s[{S_WS}:{S_WS+3}], s{sT} offen offset:256")
    a("s_cmp_ge_u32 s2, 256")
    a(f"s_cbranch_scc1 {name}_end")
    st(0)
    a(f"s_load_dwordx2 s[{S_WS}:{S_WS+1}], s[0:1], 64")
    a(f"s_load_dwordx2 s[{S_X}:{S_X+1}], s[0:1], 8")
    if opts.get("icw", 2) == 2:
        a("s_getpc_b64 s[74:75]")
        a.label(f"{name}_pc")
        NL = 14 if opts.get("unroll") else 8
        a("s_lshr_b32 s73, s2, 3"); a(f"s_mul_i32 s73, s73, {128*NL}")
        a("v_lshl_add_u32 v2, v0, 7, s73"); a(f"v_min_u32 v2, cn_code_end-{name}_pc-4, v2")
        a(f"v_cmp_gt_u32 vcc, {NL}, v0"); a("s_and_saveexec_b64 s[72:73], vcc"); a(f"s_cbranch_execz {name}_nic")
        a("global_load_dword v215, v2, s[74:75]")
        a.label(f"{name}_nic")
        a("s_mov_b64 exec, s[72:73]")
    a("v_lshrrev_b32 v1, 6, v0")
    a(f"s_and_b32 s{sXc}, s2, 7")
    a(f"v_readfirstlane_b32 s{sW_}, v1")
    a(f"s_lshr_b32 s{sJ}, s2, 3")
    if opts.get("wswap", 1): a(f"s_xor_b32 s{sW_}, s{sW_}, 4")
    a("v_and_b32 v1, 63, v0")
    a(f"s_mov_b32 s{S_WS+2}, 0x10000000"); a(f"s_mov_b32 s{S_WS+3}, 0x20000")
    a(f"s_mov_b32 s{S_X+2}, {8*MB}"); a(f"s_mov_b32 s{S_X+3}, 0x20000")
    a(f"s_cmp_ge_u32 s{sJ}, 28"); a(f"s_cbranch_scc1 {name}_pf")
    a(f"s_cmp_ge_u32 s{sJ}, 16"); a(f"s_cbranch_scc1 {name}_c")
    gen_a(a, name, st, opts)
    st_flush()
    a("s_endpgm")
    a.label(f"{name}_c")
    helper_touch(a, name + "_c", "c", opts)
    if opts.get("noc"): a("s_waitcnt vmcnt(0) lgkmcnt(0)"); st(1); st(2); st(4); st(8)
    else: gen_c(a, name, st, opts)
    st_flush()
    a("s_endpgm")
    a.label(f"{name}_pf")
    if opts.get("icw", 2) == 1:
        a("s_getpc_b64 s[74:75]")
        a.label(f"{name}_pc")
        a(f"s_sub_u32 s74, s74, {name}_pc-{name}"); a("s_subb_u32 s75, s75, 0")
        a(f"s_sub_u32 s73, s{sJ}, 28"); a(f"s_lshl_b32 s73, s73, 3"); a(f"s_add_u32 s73, s73, s{sW_}"); a("s_lshl_b32 s73, s73, 11")
        a("v_lshlrev_b32 v2, 5, v1"); a("v_add_u32 v2, s73, v2"); a(f"v_min_u32 v2, cn_code_end-{name}-4, v2")
        a("global_load_dword v3, v2, s[74:75]")
    helper_touch(a, name + "_p", "p", opts)
    if opts.get("xft", 0) == 2:
        a(f"s_load_dwordx2 s[{S_F}:{S_F+1}], s[0:1], 0"); a(f"s_mov_b32 s{S_F+2}, {8*MB}"); a(f"s_mov_b32 s{S_F+3}, 0x20000")
        a(f"s_sub_u32 s72, s{sJ}, 28"); a(f"s_lshl_b32 s74, s{sXc}, 2"); a("s_add_u32 s72, s72, s74"); a("s_lshl_b32 s72, s72, 18")
        a(f"s_lshl_b32 s74, s{sW_}, 15"); a("s_add_u32 s72, s72, s74"); a("s_waitcnt lgkmcnt(0)"); a("s_barrier")
        for i in range(4): a(f"buffer_load_dword v213, v210, s[{S_F}:{S_F+3}], s72 offen"); a("s_add_u32 s72, s72, 8192")
    else: xf_touch(a, opts)
    a("s_waitcnt vmcnt(0) lgkmcnt(0)")
    st_flush()
    a.label(f"{name}_end")
    a("s_endpgm")
    kernel_desc(a, name, 256 if stamp else 216, 100, 256 if stamp else 216)

def gen_a(a, name, st, opts):
    sR, sSo, sM, sWm, sS, sM2 = sT, sT+3, sT+4, sT+5, sT+7, sT+6
    sU0 = sT+8
    vC = 2
    vW = 4
    vTr = 8
    vCa, vCb, vXa, vXb = 12, 13, 14, 15
    vAcc = 16
    Wf = [80, 96]; Cf = 112; sel = [128, 132]
    acc = lambda T, tile: vr(vAcc + (T*4+tile)*4, 4)
    a(f"s_load_dwordx2 s[{S_A}:{S_A+1}], s[0:1], 16")
    a(f"s_load_dwordx2 s[{S_B}:{S_B+1}], s[0:1], 24")
    a(f"s_load_dwordx2 s[{S_F}:{S_F+1}], s[0:1], 0")
    a(f"s_lshl_b32 s{sR}, s{sXc}, 4"); a(f"s_add_u32 s{sR}, s{sR}, s{sJ}")
    a(f"s_mov_b32 s{S_A+2}, {8*MB}"); a(f"s_mov_b32 s{S_A+3}, 0x20000")
    a(f"s_mov_b32 s{S_B+2}, {MB//2}"); a(f"s_mov_b32 s{S_B+3}, 0x20000")
    a(f"s_mov_b32 s{S_F+2}, {8*MB}"); a(f"s_mov_b32 s{S_F+3}, 0x20000")
    t0, t1, t2, t3 = 136, 137, 138, 139
    a(f"v_lshrrev_b32 v{t0}, 3, v1")
    a(f"v_and_b32 v{t1}, 7, v1")
    a(f"v_lshrrev_b32 v{t2}, 4, v1")
    a(f"v_xor_b32 v{t3}, v{t1}, v{t2}")
    a(f"v_lshlrev_b32 v{vC}, 11, v{t0}"); a(f"v_lshl_add_u32 v{vC}, v{t3}, 4, v{vC}")
    a(f"v_xor_b32 v{vC+1}, 64, v{vC}"); a(f"v_add_u32 v{vC+1}, 16384, v{vC+1}")
    a(f"s_lshl_b32 s{sU0+2}, s{sR}, 16"); a(f"s_lshl_b32 s{sU0}, s{sW_}, 7"); a(f"s_add_u32 s{sSo}, s{sU0+2}, s{sU0}")
    NSL = opts.get("nsl", 3)
    a(f"s_mul_i32 s{sWm}, s{sW_}, {NSL*4096}"); a(f"s_add_u32 s{sWm}, s{sWm}, 65536")
    if opts.get("prio"):
        a(f"s_cmp_lt_u32 s{sW_}, 4"); a(f"s_cbranch_scc1 {name}_np"); a("s_setprio 1"); a.label(f"{name}_np")
    a(f"s_and_b32 s{sU0+1}, s{sW_}, 3"); a(f"s_lshr_b32 s{sU0+3}, s{sW_}, 2")
    a(f"s_lshl_b32 s{sM}, s{sU0+1}, 13"); a(f"s_lshl_b32 s{sU0+4}, s{sU0+3}, 12"); a(f"s_add_u32 s{sM}, s{sM}, s{sU0+4}")
    a(f"s_lshl_b32 s{sM2}, s{sU0+1}, 7"); a(f"s_lshl_b32 s{sU0+4}, s{sU0+3}, 15"); a(f"s_add_u32 s{sM2}, s{sM2}, s{sU0+4}"); a(f"s_add_u32 s{sM2}, s{sM2}, s{sU0+2}")
    a(f"v_and_b32 v{t3}, 1, v{t2}"); a(f"v_lshlrev_b32 v{t3}, 1, v{t3}"); a(f"v_xor_b32 v{t3}, v{t3}, v{t1}")
    a(f"v_lshlrev_b32 v{vW}, 10, v{t0}"); a(f"v_lshl_add_u32 v{vW}, v{t3}, 4, v{vW}"); a(f"v_add_u32 v{vW}, s{sU0}, v{vW}")
    a(f"v_xor_b32 v{vW+1}, 64, v{vW}"); a(f"v_add_u32 v{vW+1}, 7168, v{vW+1}")
    a(f"v_add_u32 v{vW+2}, 14336, v{vW}"); a(f"v_add_u32 v{vW+3}, 14336, v{vW+1}")
    def c_dma(half, tag):
        ops = []
        for par in range(2):
            for th in range(2):
                ops += [other(f"s_add_u32 m0, s{sM}, {half*32768+par*2048+th*1024}"),
                        other(f"s_add_u32 s{sU0+1}, s{sM2}, {half*512+par*1024}"),
                        vmem(f"buffer_load_dwordx4 v{vC+th}, s[{S_A}:{S_A+3}], s{sU0+1} offen lds", tag)]
        return ops
    CQ = opts.get("cq", 1)
    sMq, sOq = sT+1, sT+2
    if CQ:
        a(f"s_and_b32 s{sU0+1}, s{sW_}, 1"); a(f"s_lshr_b32 s{sU0+3}, s{sW_}, 1")
        a(f"s_lshl_b32 s{sMq}, s{sU0+1}, 13"); a(f"s_lshl_b32 s{sU0+4}, s{sU0+3}, 11"); a(f"s_add_u32 s{sMq}, s{sMq}, s{sU0+4}")
        a(f"s_lshl_b32 s{sOq}, s{sU0+1}, 7"); a(f"s_add_u32 s{sOq}, s{sOq}, s{sU0+2}")
        a(f"s_and_b32 s{sU0+4}, s{sU0+3}, 1"); a(f"s_lshl_b32 s{sU0+4}, s{sU0+4}, 10"); a(f"s_add_u32 s{sOq}, s{sOq}, s{sU0+4}")
        a(f"s_lshr_b32 s{sU0+4}, s{sU0+3}, 1"); a(f"s_lshl_b32 s{sU0+4}, s{sU0+4}, 15"); a(f"s_add_u32 s{sOq}, s{sOq}, s{sU0+4}")
    def q_dma(Q, tag):
        ops = []
        for th in range(2):
            ops += [other(f"s_add_u32 m0, s{sMq}, {Q*16384+th*1024}"), other(f"s_add_u32 s{sU0+1}, s{sOq}, {Q*256}"),
                    vmem(f"buffer_load_dwordx4 v{vC+th}, s[{S_A}:{S_A+3}], s{sU0+1} offen lds", tag)]
        return ops
    ORDER = list(range(16))
    xpos = opts.get("xpos", 14)
    ORDER = ORDER[:xpos] + ["xa", "xb"] + ORDER[xpos:]
    NS = len(ORDER)
    def dma(i):
        k = ORDER[i]; slot = i % NSL
        if k in ("xa", "xb"):
            hb = 0 if k == "xa" else 1
            ops = []
            for par in range(2):
                for th in range(2):
                    ops += [other(f"s_add_u32 m0, s{sWm}, {slot*4096+par*2048+th*1024}"),
                            other(f"s_add_u32 s{sU0+1}, s{sSo}, {hb*32768+par*1024}"),
                            vmem(f"buffer_load_dwordx4 v{vC+th}, s[{S_X}:{S_X+3}], s{sU0+1} offen lds", f"D{i}")]
            return ops
        return [other(f"s_add_u32 m0, s{sWm}, {slot*4096}"), other(f"s_mov_b32 s{sS}, {k*32768}")] + \
               [vmem(f"buffer_load_dwordx4 v{vW+q}, s[{S_B}:{S_B+3}], s{sS} offen offset:{q*1024} lds", f"D{i}") for q in range(4)]
    def frag_reads(i):
        k = ORDER[i]; slot = i % NSL; dst = Wf[i & 1]
        if k in ("xa", "xb"):
            return [ds(f"ds_read_b128 {vr(dst+8*par+4*h,4)}, v{vXa+h} offset:{slot*4096+par*2048}", f"f{i}") for par in range(2) for h in range(2)]
        return [ds(f"ds_read_b64_tr_b16 {vr(dst+4*T+2*t,2)}, v{vTr+T} offset:{slot*4096+t*512}", f"f{i}") for T in range(4) for t in range(2)]
    def c_read(tile, k): return ds(f"ds_read_b128 {vr(Cf+4*tile,4)}, v{vCa+(k&1)} offset:{(k>>1)*8192+tile*2048}", f"cr{tile}")
    a("s_waitcnt lgkmcnt(0)")
    st(1)
    if opts.get("gprio", 1): a("s_setprio 1")
    pro = (q_dma(0, "C0") if CQ else c_dma(0, "C0")) + [other("s_barrier")] + dma(0)
    for op in pro: a(op.render())
    a(f"v_and_b32 v{t0}, 15, v1")
    a(f"v_lshrrev_b32 v{t1}, 1, v{t0}")
    a(f"v_xor_b32 v{t1}, v{t1}, v{t2}")
    a(f"v_lshlrev_b32 v{vCa}, 7, v{t0}"); a(f"v_lshl_add_u32 v{vCa}, v{t1}, 4, v{vCa}")
    a(f"v_xor_b32 v{vCb}, 64, v{vCa}"); a(f"v_add_u32 v{vXa}, s{sWm}, v{vCa}"); a(f"v_add_u32 v{vXb}, s{sWm}, v{vCb}")
    a(f"v_lshrrev_b32 v{t1}, 2, v{t0}")
    a(f"v_lshl_add_u32 v{t3}, v{t2}, 3, v{t1}")
    a(f"v_lshlrev_b32 v{vTr}, 7, v{t3}")
    a(f"v_and_b32 v{t3}, 3, v{t0}"); a(f"v_lshl_add_u32 v{vTr}, v{t3}, 3, v{vTr}")
    a(f"v_lshrrev_b32 v{t1}, 1, v{t1}"); a(f"v_and_b32 v{t3}, 1, v{t2}"); a(f"v_lshl_add_u32 v{t1}, v{t3}, 1, v{t1}")
    a(f"v_lshl_add_u32 v{vTr}, v{t1}, 5, v{vTr}"); a(f"v_add_u32 v{vTr}, s{sWm}, v{vTr}")
    for T in range(1, 4): a(f"v_xor_b32 v{vTr+T}, {T*32}, v{vTr}")
    a(f"v_lshrrev_b32 v{t1}, 3, v{t0}"); a(f"v_sub_u32 v{t1}, v{t2}, v{t1}")
    a(f"v_bfe_u32 v{t3}, v{t0}, 1, 2"); a(f"v_lshl_add_u32 v{t1}, v{t1}, 2, v{t3}")
    a(f"v_and_b32 v{t3}, 1, v{t0}"); a(f"v_lshlrev_b32 v{t3}, 4, v{t3}"); a(f"v_mov_b32 v{t0}, 0x3f80"); a(f"v_lshlrev_b32 v{t3}, v{t3}, v{t0}")
    for hh in range(2):
        for d in range(4):
            a(f"v_cmp_eq_u32 vcc, {8*hh+d}, v{t1}"); a("s_nop 1"); a(f"v_cndmask_b32 v{sel[hh]+d}, 0, v{t3}, vcc")
    def step(i):
        k = ORDER[i]; slot = i & 1
        isx = k in ("xa", "xb")
        if isx:
            hb = 0 if k == "xa" else 1
            mm = [mfma(f"v_mfma_f32_16x16x32_bf16 {acc(T,2*hb+par)}, {vr(sel[T&1],4)}, {vr(Wf[slot]+8*par+4*(T>>1),4)}, {acc(T,2*hb+par)}") for par in range(2) for T in range(4)]
        else:
            c0 = (lambda T, tile: "0") if i == 0 else acc
            mm = [mfma(f"v_mfma_f32_16x16x32_bf16 {acc(T,tile)}, {vr(Wf[slot]+4*T,4)}, {vr(Cf+4*tile,4)}, {c0(T,tile)}") for tile in range(4) for T in range(4)]
        B = Block(mm); n = len(mm)
        head = [wait(lg=[f"f{i}"] + ([] if isx else ["cr0"]))]
        if k == 7: head += [wait(vm="C1"), other("s_barrier")]
        elif k == 3 and CQ: head += [wait(vm="CQ"), other("s_barrier")]
        elif opts.get("abar") and i and i % opts["abar"] == 0: head += [other("s_barrier")]
        B.fix(-1, head)
        if not isx:
            for tile in range(1, 4): B.fix(4*tile-1, wait(lg=f"cr{tile}"))
        ops = dma(i+NSL) if i + NSL < NS else []
        if CQ and i == opts.get("cqpos", 1): ops = q_dma(1, "CQ") + ops
        if i == opts.get("c2pos", 3 if CQ else 1): ops = ops + c_dma(1, "C1")
        sc = n/16
        for q, op in enumerate(ops): B.put(q*0.6*sc*(6/max(6, len(ops))), op)
        if i + 1 < NS:
            B.put(5*sc, wait(vm=f"D{i+1}"))
            for q, op in enumerate(frag_reads(i+1)): B.put((5.5+q)*sc, op)
        if not isx and k < 15:
            for tile in range(4): B.put(4*tile+3.9, c_read(tile, k+1))
        return B.layout(cap=2, slack=1)
    if not opts.get("pair", 0):
        pre = [wait(vm="C0"), other("s_barrier")] + dma(1) + [c_read(t, 0) for t in range(4)] + [wait(vm="D0")] + frag_reads(0) + sum([dma(i) for i in range(2, NSL)], [])
        steps = sum([step(i) for i in range(NS)], [])
    else:
        assert xpos % 2 == 0 and NSL == 3
        W4 = [80, 96, 144, 160]; C2 = [112, 176]
        def fr(i):
            k = ORDER[i]; slot = i % NSL; dst = W4[i & 3]
            if k in ("xa", "xb"):
                return [ds(f"ds_read_b128 {vr(dst+8*par+4*h,4)}, v{vXa+h} offset:{slot*4096+par*2048}", f"f{i}") for par in range(2) for h in range(2)]
            return [ds(f"ds_read_b64_tr_b16 {vr(dst+4*T+2*t,2)}, v{vTr+T} offset:{slot*4096+t*512}", f"f{i}") for T in range(4) for t in range(2)]
        def cr(tile, k): return ds(f"ds_read_b128 {vr(C2[k&1]+4*tile,4)}, v{vCa+(k&1)} offset:{(k>>1)*8192+tile*2048}", f"c{tile}{k&1}")
        def pair(i):
            k = ORDER[i]; isx = k == "xa"
            if isx:
                mm = [mfma(f"v_mfma_f32_16x16x32_bf16 {acc(T,2*hb+par)}, {vr(sel[T&1],4)}, {vr(W4[(i+hb)&3]+8*par+4*(T>>1),4)}, {acc(T,2*hb+par)}") for hb in range(2) for par in range(2) for T in range(4)]
            else:
                mm = [mfma(f"v_mfma_f32_16x16x32_bf16 {acc(T,tile)}, {vr(W4[(i+h)&3]+4*T,4)}, {vr(C2[h]+4*tile,4)}, {'0' if i == 0 and h == (T&1) else acc(T,tile)}")
                      for tile in range(4) for T in range(4) for h in ((0, 1) if T % 2 == 0 else (1, 0))]
            B = Block(mm); sc = len(mm)/32
            head = [wait(lg=[f"f{i+1}"] + ([] if isx else ["c01"]))]
            if k == 6: head += [wait(vm="C1"), other("s_barrier")]
            B.fix(-1, head)
            if not isx:
                for tile in range(1, 4): B.fix(8*tile-1, wait(lg=f"c{tile}1"))
            ops = dma(i+4) if i + 4 < NS else []
            if i == 2*opts.get("c2pos", 1) - 2 + 0 and opts.get("c2pos", 1) >= 1: ops = ops + c_dma(1, "C1")
            for q, op in enumerate(ops): B.put(q*0.8*sc*(6/max(6, len(ops))), op)
            if i + 2 < NS:
                B.put(5*sc, wait(vm=f"D{i+2}"))
                for q, op in enumerate(fr(i+2)): B.put((5.5+q*0.9)*sc, op)
                if i + 5 < NS:
                    B.put(15*sc, wait(lg=f"f{i+2}"))
                    for q, op in enumerate(dma(i+5)): B.put((15.2+q*0.7)*sc, op)
                B.put(20*sc, wait(vm=f"D{i+3}"))
                for q, op in enumerate(fr(i+3)): B.put((20.5+q*0.9)*sc, op)
            if not isx and k < 14:
                for tile in range(4):
                    for h in range(2): B.put(8*tile+7.8+0.1*h, cr(tile, k+2+h))
            return B.layout(cap=2, slack=1)
        pre = [wait(vm="C0"), other("s_barrier")] + dma(1) + [cr(t, h) for t in range(2) for h in range(2)] + [wait(vm="D0")] + fr(0) + dma(2) + \
              [wait(lg="f0")] + dma(3) + [cr(t, h) for t in range(2, 4) for h in range(2)] + [wait(vm="D1")] + fr(1)
        steps = sum([pair(i) for i in range(0, NS, 2)], [])
    resolve([pro, pre, steps])
    st(2)
    if opts.get("fine"):
        a("s_waitcnt vmcnt(7)"); st(9); a("s_waitcnt vmcnt(4)"); st(10); a("s_waitcnt vmcnt(0)"); st(11)
    for op in merge_waits(pre): a(op.render())
    st(3)
    for op in merge_waits(steps):
        if opts.get("nomfma") and op.kind == "mfma": continue
        if opts.get("nocr") and op.kind == "ds" and op.tag.startswith("cr"): continue
        if opts.get("nods") and op.kind == "ds": continue
        a(op.render())
    if opts.get("gprio", 1): a("s_setprio 0")
    st(4)
    A = lambda T, tile, j: vAcc + (T*4+tile)*4 + j
    a("s_nop 7")
    vE = 4; vH = 5
    def part_stats():
        S_ = [6, 7, 8, 9]; Q_ = [10, 11, 12, 13]; M_ = [112, 114, 116, 118]; tp = 120
        TS = [96, 98, 100, 102]; TD = [104, 106, 108, 110]
        for tile in range(4): a(f"v_pk_add_f32 {vr(TS[tile],2)}, {vr(A(0,tile,0),2)}, {vr(A(0,tile,2),2)}")
        for tile in range(4): a(f"v_pk_mul_f32 {vr(TD[tile],2)}, {vr(A(0,tile,0),2)}, {vr(A(0,tile,0),2)}")
        for T in range(4):
            for j in (0, 2):
                if T >= 1:
                    for tile in range(4): a(f"v_pk_add_f32 {vr(TS[tile],2)}, {vr(TS[tile],2)}, {vr(A(T,tile,j),2)}")
                if (T, j) != (0, 0):
                    for tile in range(4): a(f"v_pk_fma_f32 {vr(TD[tile],2)}, {vr(A(T,tile,j),2)}, {vr(A(T,tile,j),2)}, {vr(TD[tile],2)}")
        for tile in range(4): a(f"v_add_f32 v{S_[tile]}, v{TS[tile]}, v{TS[tile]+1}")
        for tile in range(4): a(f"v_add_f32 v{Q_[tile]}, v{TD[tile]}, v{TD[tile]+1}")
        for tile in range(4): a(f"v_mul_f32 v{M_[tile]}, 0xbd800000, v{S_[tile]}")
        for tile in range(4): a(f"v_fmac_f32 v{Q_[tile]}, v{M_[tile]}, v{S_[tile]}")
        def merge(x, y, swap, n):
            a("s_nop 1")
            a(f"{swap} v{S_[x]}, v{S_[y]}"); a(f"{swap} v{Q_[x]}, v{Q_[y]}")
            a("s_nop 0")
            a(f"v_sub_f32 v{tp}, v{S_[x]}, v{S_[y]}"); a(f"v_add_f32 v{S_[x]}, v{S_[x]}, v{S_[y]}")
            a(f"v_mul_f32 v{tp+1}, {hex(f32bits(1.0/(2*n)))}, v{tp}"); a(f"v_add_f32 v{Q_[x]}, v{Q_[x]}, v{Q_[y]}")
            a(f"v_fmac_f32 v{Q_[x]}, v{tp}, v{tp+1}")
        merge(0, 2, "v_permlane32_swap_b32", 16); merge(1, 3, "v_permlane32_swap_b32", 16); merge(0, 1, "v_permlane16_swap_b32", 32)
        a(f"v_mov_b32 v7, v{Q_[0]}")
        a(f"v_lshlrev_b32 v8, 3, v1"); a(f"v_add_u32 v9, s{sWm}, v8")
        a(f"ds_write_b64 v9, v[6:7]")
        a(f"v_add_u32 v8, 65536, v8"); a(f"v_add_u32 v14, {65536+4*NSL*4096}, v8") if False else None
        a(f"v_add_u32 v14, {4*NSL*4096}, v8")
        st(5)
    def part_e():
        a(f"v_lshlrev_b32 v{vE}, 4, v1")
        a(f"s_lshr_b32 s{sU0}, s{sR}, 3"); a(f"s_lshl_b32 s{sU0}, s{sU0}, 19")
        a(f"s_and_b32 s{sU0+1}, s{sR}, 7"); a(f"s_lshl_b32 s{sU0+1}, s{sU0+1}, 10"); a(f"s_add_u32 s{sU0}, s{sU0}, s{sU0+1}")
        a(f"s_and_b32 s{sU0+1}, s{sW_}, 3"); a(f"s_lshl_b32 s{sU0+1}, s{sU0+1}, 14"); a(f"s_add_u32 s{sU0}, s{sU0}, s{sU0+1}")
        a(f"s_add_u32 s{sU0}, s{sU0}, {E_OFF}")
        P = [140+4*i for i in range(8)]
        a(f"s_cmp_ge_u32 s{sW_}, 4"); a(f"s_cbranch_scc1 {name}_eb")
        a("s_nop 1")
        k = 0
        for hb in range(2):
            for hp in range(2):
                for par in range(2):
                    d = P[k % 8]; k += 1; n = "-" if par else ""
                    for q in range(4):
                        T = 2*hp + (q >> 1); j = 2*(q & 1)
                        a(f"v_cvt_pk_bf16_f32 v{d+q}, {n}v{A(T,2*hb+par,j)}, {n}v{A(T,2*hb+par,j+1)}")
                    a(f"s_add_u32 s{sU0+1}, s{sU0}, {hb*262144 + (3 if par else 0)*65536 + hp*8192}")
                    a(f"buffer_store_dwordx4 {vr(d,4)}, v{vE}, s[{S_WS}:{S_WS+3}], s{sU0+1} offen")
        a(f"s_branch {name}_ej")
        a.label(f"{name}_eb")
        a("s_nop 1")
        k = 0
        for hb in range(2):
            for hp in range(2):
                for sg in range(2):
                    d = P[k % 8]; k += 1
                    for q in range(4):
                        T = 2*hp + (q >> 1); j = 2*(q & 1)
                        neg = " neg_lo:[0,1] neg_hi:[0,1]" if sg else ""
                        a(f"v_pk_add_f32 v[124:125], {vr(A(T,2*hb,j),2)}, {vr(A(T,2*hb+1,j),2)}{neg}")
                        a(f"v_cvt_pk_bf16_f32 v{d+q}, v124, v125")
                    a(f"s_add_u32 s{sU0+1}, s{sU0}, {hb*262144 + (1+sg)*65536 + hp*8192}")
                    a(f"buffer_store_dwordx4 {vr(d,4)}, v{vE}, s[{S_WS}:{S_WS+3}], s{sU0+1} offen")
        a.label(f"{name}_ej")
        st(6)
    mode = opts.get("efirst", 2)
    def rendezvous():
        a("s_waitcnt lgkmcnt(0)"); a("s_barrier")
        for i in range(8): a(f"ds_read_b64 {vr(80+2*i,2)}, v{8 if i < 4 else 14} offset:{(i&3)*NSL*4096}")
    if mode == 1: part_e(); part_stats(); rendezvous()
    elif mode == 0: part_stats(); part_e(); rendezvous()
    else:
        n0 = len(a.lines); part_stats(); SL = a.lines[n0:]; del a.lines[n0:]
        part_e(); EL = a.lines[n0:]; del a.lines[n0:]
        cut = [i for i, l in enumerate(SL) if l.startswith("s_nop 1")][0]
        SA, SB = SL[:cut], SL[cut:]
        k = 0
        for l in EL:
            if mode == 3 and (l.startswith(f"{name}_ej:")):
                for x in SB: a(x)
                rendezvous()
            a(l)
            if mode == 3 and l.startswith("s_cbranch_scc1") and l.endswith("_eb"):
                for x in SA + SB: a(x)
                rendezvous()
            if l.startswith("buffer_store"):
                q = k % 8; k += 1
                if q < 7 and (mode == 2 or k > 8):
                    for x in SA[q*len(SA)//7:(q+1)*len(SA)//7]: a(x)
        if mode == 2:
            for x in SB: a(x)
            rendezvous()
    a(f"v_and_b32 v6, 15, v1"); a(f"v_lshrrev_b32 v7, 4, v1")
    a(f"v_lshrrev_b32 v9, 1, v6"); a(f"v_and_b32 v9, 2, v9"); a(f"v_xor_b32 v9, v9, v7")
    a(f"v_lshlrev_b32 v{vH}, 6, v6"); a(f"v_lshl_add_u32 v{vH}, v9, 4, v{vH}")
    a(f"s_lshl_b32 s{sU0}, s{sR}, 12"); a(f"s_lshl_b32 s{sU0+1}, s{sW_}, 20"); a(f"s_add_u32 s{sU0}, s{sU0}, s{sU0+1}"); a(f"s_add_u32 s{sU0}, s{sU0}, {H_OFF}")
    a("s_waitcnt lgkmcnt(0)")
    for i in range(4): a(f"v_pk_add_f32 v[{96+2*i}:{97+2*i}], v[{80+4*i}:{81+4*i}], v[{82+4*i}:{83+4*i}]")
    a("v_pk_add_f32 v[96:97], v[96:97], v[98:99]"); a("v_pk_add_f32 v[100:101], v[100:101], v[102:103]")
    a("v_pk_add_f32 v[6:7], v[96:97], v[100:101]")
    a("v_mul_f32 v8, 0x3e000000, v6")
    for i in range(8): a(f"v_sub_f32 v{96+i}, v{80+2*i}, v8")
    a("v_pk_mul_f32 v[10:11], v[96:97], v[96:97]"); a("v_pk_mul_f32 v[12:13], v[98:99], v[98:99]")
    a("v_pk_fma_f32 v[10:11], v[100:101], v[100:101], v[10:11]"); a("v_pk_fma_f32 v[12:13], v[102:103], v[102:103], v[12:13]")
    a("v_pk_add_f32 v[10:11], v[10:11], v[12:13]"); a("v_add_f32 v9, v10, v11")
    a("v_fmac_f32 v7, 0x3c800000, v9")
    a(f"v_mov_b32 v10, {hex(f32bits(1e-5))}")
    a("v_fmac_f32 v10, 0x3b000000, v7")
    a("v_rsq_f32 v10, v10")
    a("v_mul_f32 v6, 0x3b000000, v6")
    a("v_mov_b32 v8, v6"); a("v_mov_b32 v12, v10"); a("s_nop 0")
    a("v_permlane32_swap_b32 v6, v8"); a("v_permlane32_swap_b32 v10, v12")
    a("v_mov_b32 v7, v6"); a("v_mov_b32 v9, v8"); a("v_mov_b32 v11, v10"); a("v_mov_b32 v13, v12")
    a("v_permlane16_swap_b32 v6, v7"); a("v_permlane16_swap_b32 v8, v9"); a("s_nop 0") if False else None
    a("v_permlane16_swap_b32 v10, v11"); a("v_permlane16_swap_b32 v12, v13")
    K = [80, 82, 84, 86]
    for tile in range(4): a(f"v_mul_f32 v{K[tile]}, {hex(f32bits(-LOG2E))}, v{10+tile}")
    for tile in range(4): a(f"v_mul_f32 v{K[tile]+1}, -v{6+tile}, v{K[tile]}")
    st(7)
    D = [96, 100, 104, 108]; kk = 0
    r8 = opts.get("hround", 1)
    if r8: a("s_mov_b32 s60, 0x00040004")
    if r8 == 2: a(f"s_mov_b32 s62, {hex(f32bits(1.0/(1.0 + 2.0**-7*0.4375/1.4427)))}"); a("s_mov_b32 s63, s62")
    for tile in range(4):
        k = K[tile]; hb, par = tile >> 1, tile & 1
        for hp in range(2):
            d = D[kk % 4]; kk += 1
            E2 = [112, 114, 116, 118] if False else [6, 8, 10, 12]
            for q in range(4):
                T = 2*hp + (q >> 1); j = 2*(q & 1); r = vr(A(T, tile, j), 2); e = E2[q]
                a(f"v_pk_fma_f32 {r}, {r}, {vr(k,2)}, {vr(k,2)} op_sel:[0,0,1] op_sel_hi:[1,0,1]")
                a(f"v_exp_f32 v{e}, v{A(T,tile,j)}"); a(f"v_exp_f32 v{e+1}, v{A(T,tile,j)+1}")
            for q in range(4):
                e = E2[q]
                if r8 == 2: a(f"v_pk_fma_f32 v[{e}:{e+1}], v[{e}:{e+1}], s[62:63], s[62:63]")
                else: a(f"v_pk_add_f32 v[{e}:{e+1}], v[{e}:{e+1}], 1.0 op_sel_hi:[1,0]")
                a(f"v_rcp_f32 v{e}, v{e}"); a(f"v_rcp_f32 v{e+1}, v{e+1}")
            for q in range(4):
                T = 2*hp + (q >> 1); j = 2*(q & 1); r = vr(A(T, tile, j), 2); e = E2[q]
                a(f"v_pk_mul_f32 v[{e}:{e+1}], v[{e}:{e+1}], {r}")
                a(f"v_cvt_pk_f16_f32 v{d+q}, v{e}, v{e+1}")
                if r8 == 1: a(f"v_pk_add_u16 v{d+q}, v{d+q}, s60")
                if r8: a(f"v_and_b32 v{d+q}, 0xfff8fff8, v{d+q}")
            a(f"s_add_u32 s{sU0+1}, s{sU0}, {hp*524288 + par*2048 + hb*1024}")
            a(f"buffer_store_dwordx4 {vr(d,4)}, v{vH}, s[{S_WS}:{S_WS+3}], s{sU0+1} offen")
    st(8)

def xf_touch(a, opts):
    if opts.get("xft", 0) != 1: return
    a(f"s_load_dwordx2 s[{S_F}:{S_F+1}], s[0:1], 0"); a(f"s_mov_b32 s{S_F+2}, {8*MB}"); a(f"s_mov_b32 s{S_F+3}, 0x20000")
    a(f"s_sub_u32 s72, s{sJ}, 16"); a(f"s_lshl_b32 s74, s{sXc}, 4"); a("s_add_u32 s72, s72, s74"); a("s_lshl_b32 s72, s72, 16")
    a(f"s_lshl_b32 s74, s{sW_}, 13"); a("s_add_u32 s72, s72, s74"); a("v_lshlrev_b32 v210, 7, v1")
    a("s_waitcnt lgkmcnt(0)")
    a(f"buffer_load_dword v213, v210, s[{S_F}:{S_F+3}], s72 offen")

def helper_touch(a, name, role, opts):
    duties = [("W", 16, 0, opts.get("nWa", 1), 0 if opts.get("cq", 1) else 1)] + ([("Q", 32, 0, opts.get("nQ", 2), 1)] if opts.get("cq", 1) else []) + [("W", 48, 131072, opts.get("nWb", 3), 0), ("C", 64, 0, opts.get("nC", 4), 0), ("X", 128, 0, opts.get("nX", 4), 0)]
    a(f"s_load_dwordx4 s[64:67], s[0:1], 16")
    a("v_lshlrev_b32 v210, 7, v1")
    a("v_and_b32 v211, 3, v1"); a("v_lshrrev_b32 v212, 2, v1"); a("v_lshlrev_b32 v211, 7, v211"); a("v_lshl_add_u32 v211, v212, 10, v211"); a("v_add_u32 v211, 512, v211")
    a("v_and_b32 v209, 1, v1"); a("v_lshrrev_b32 v212, 1, v1"); a("v_lshlrev_b32 v209, 7, v209"); a("v_lshl_add_u32 v209, v212, 10, v209"); a("v_add_u32 v209, 256, v209")
    a(f"s_sub_u32 s72, s{sJ}, {16 if role == 'c' else 28}")
    a(f"s_lshl_b32 s73, s{sXc}, 20")
    a("s_waitcnt lgkmcnt(0)")
    a("s_mov_b32 s68, s66"); a("s_mov_b32 s69, s67"); a(f"s_mov_b32 s70, {MB//2}"); a("s_mov_b32 s71, 0x20000")
    a(f"s_mov_b32 s66, {8*MB}"); a("s_mov_b32 s67, 0x20000")
    rot = 0
    for di, (src, tot, off, nc, wt) in enumerate(duties):
        assert (tot - 12*nc) % 4 == 0 and tot >= 12*nc
        n = nc if role == "c" else (tot - 12*nc)//4
        first = 0 if role == "c" else 12*nc
        sh = {"C": 14, "Q": 15}.get(src, 13)
        srd, va = {"W": (68, 210), "C": (64, 211), "X": (S_X, 210), "Q": (64, 209)}[src]
        if n:
            a(f"s_sub_u32 s74, s{sW_}, {rot}"); a("s_and_b32 s74, s74, 7")
            a(f"s_mul_i32 s75, s72, {n}"); a("s_add_u32 s75, s75, s74"); a(f"s_lshl_b32 s75, s75, {sh}")
            a(f"s_add_u32 s75, s75, {off + (first << sh)}")
            if src != "W": a("s_add_u32 s75, s75, s73")
            for i in range((n+7)//8):
                part = n - 8*i < 8
                if part: a(f"s_cmp_ge_u32 s74, {n-8*i}"); a(f"s_cbranch_scc1 {name}_h{di}")
                a(f"buffer_load_dword v{213+(i&1)}, v{va}, s[{srd}:{srd+3}], s75 offen")
                if not part and 8*(i+1) < n: a(f"s_add_u32 s75, s75, {8 << sh}")
            if n % 8: a.label(f"{name}_h{di}")
            if wt: a("s_waitcnt vmcnt(0)")
            rot = (rot + n) & 7
            a("s_barrier")

def gen_c(a, name, st, opts):
    sDi, sNq, sCh, sAo, sBo, sZc, sM = sT, sT+1, sT+2, sT+3, sT+4, sT+5, sT+6
    sU0 = sT+8
    vA = 2
    vB = 5
    vAr = 8
    vBr = 10
    vZr = 12
    vAcc = 16
    vZf = 64
    Af = [72, 96]; Bf = [120 - 0, 0]
    SLOT = 40960
    acc = lambda dj, kt, nt: vr(vAcc + ((dj*2+kt)*2+nt)*4, 4)
    a(f"s_load_dwordx2 s[{S_A}:{S_A+1}], s[0:1], 40")
    a(f"s_load_dwordx2 s[{S_B}:{S_B+1}], s[0:1], 32")
    a(f"s_sub_u32 s{sNq}, s{sJ}, 16"); a(f"s_lshr_b32 s{sDi}, s{sNq}, 2"); a(f"s_and_b32 s{sNq}, s{sNq}, 3")
    a(f"s_mov_b32 s{S_A+2}, {9*MB//2}"); a(f"s_mov_b32 s{S_A+3}, 0x20000")
    a(f"s_mov_b32 s{S_B+2}, {MB//2}"); a(f"s_mov_b32 s{S_B+3}, 0x20000")
    a(f"s_lshl_b32 s{sCh}, s{sNq}, 1"); a(f"s_mul_i32 s{sU0}, s{sDi}, 3"); a(f"s_add_u32 s{sCh}, s{sCh}, s{sU0}"); a(f"s_and_b32 s{sCh}, s{sCh}, 7")
    t0, t1, t2, t3 = 116, 117, 118, 119
    a(f"v_lshrrev_b32 v{t0}, 3, v1"); a(f"v_and_b32 v{t1}, 7, v1"); a(f"v_lshrrev_b32 v{t2}, 4, v1")
    a(f"s_and_b32 s{sU0}, s{sW_}, 1"); a(f"s_lshl_b32 s{sU0}, s{sU0}, 2")
    a(f"v_xor_b32 v{t3}, v{t1}, v{t2}"); a(f"v_xor_b32 v{t3}, s{sU0}, v{t3}")
    a(f"v_lshlrev_b32 v{vA}, 10, v{t0}"); a(f"v_lshl_add_u32 v{vA}, v{t3}, 4, v{vA}")
    a(f"s_mul_i32 s{sU0}, s{sDi}, 1572864"); a(f"s_lshl_b32 s{sU0+1}, s{sXc}, 16"); a(f"s_add_u32 s{sU0}, s{sU0}, s{sU0+1}")
    a(f"s_lshl_b32 s{sU0+1}, s{sW_}, 13"); a(f"s_add_u32 s{sU0}, s{sU0}, s{sU0+1}")
    a(f"v_add_u32 v{vA}, s{sU0}, v{vA}")
    a(f"v_add_u32 v{vA+1}, 524288, v{vA}"); a(f"v_add_u32 v{vA+2}, 1048576, v{vA}")
    a(f"v_and_b32 v{t3}, 15, v1"); a(f"s_and_b32 s{sU0}, s{sW_}, 1"); a(f"s_lshl_b32 s{sU0}, s{sU0}, 3")
    a(f"v_lshlrev_b32 v{t0}, 1, v{t2}"); a(f"v_xor_b32 v{t0}, s{sU0}, v{t0}"); a(f"v_xor_b32 v{t0}, v{t0}, v{t3}")
    a(f"v_lshlrev_b32 v{vB}, 10, v{t2}"); a(f"v_lshl_add_u32 v{vB}, v{t0}, 4, v{vB}")
    a(f"s_lshl_b32 s{sU0}, s{sW_}, 13"); a(f"s_lshl_b32 s{sU0+1}, s{sNq}, 8"); a(f"s_add_u32 s{sU0}, s{sU0}, s{sU0+1}")
    a(f"v_add_u32 v{vB}, s{sU0}, v{vB}"); a(f"v_add_u32 v{vB+1}, 3072, v{vB}")
    a(f"s_lshl_b32 s{sM}, s{sW_}, 10")
    def dma(slot, tag):
        ops = [other(f"s_lshl_b32 s{sAo}, s{sCh}, 7"), other(f"s_lshl_b32 s{sBo}, s{sCh}, 16")]
        for dj in range(3):
            ops += [other(f"s_add_u32 m0, s{sM}, {slot*SLOT+dj*8192}"), other("s_nop 0"),
                    vmem(f"buffer_load_dwordx4 v{vA+dj}, s[{S_A}:{S_A+3}], s{sAo} offen lds", tag)]
        ops += [other(f"s_lshl_b32 s{sU0}, s{sM}, 1"), other(f"s_add_u32 m0, s{sU0}, {slot*SLOT+24576}"), other("s_nop 0")]
        ops += [vmem(f"buffer_load_dwordx4 v{vB+i}, s[{S_B}:{S_B+3}], s{sBo} offen offset:{i*1024} lds", tag) for i in range(2)]
        ops += [other(f"s_add_u32 s{sCh}, s{sCh}, 1"), other(f"s_and_b32 s{sCh}, s{sCh}, 7")]
        return ops
    a("s_waitcnt lgkmcnt(0)")
    st(1)
    pro = dma(0, "D0")
    for op in pro: a(op.render())
    a(f"v_lshrrev_b32 v{t1}, 1, v{t3}"); a(f"v_xor_b32 v{t1}, v{t1}, v{t2}")
    a(f"v_lshlrev_b32 v{vAr}, 7, v{t3}"); a(f"v_lshl_add_u32 v{vAr}, v{t1}, 4, v{vAr}")
    a(f"s_lshr_b32 s{sU0}, s{sW_}, 2"); a(f"s_lshl_b32 s{sU0+1}, s{sU0}, 12"); a(f"v_add_u32 v{vAr}, s{sU0+1}, v{vAr}")
    a(f"v_xor_b32 v{vAr+1}, 64, v{vAr}")
    a(f"v_lshrrev_b32 v{t0}, 2, v{t3}")
    a(f"v_and_b32 v{t1}, 3, v{t3}"); a(f"v_lshlrev_b32 v{t1}, 3, v{t1}"); a(f"v_add_u32 v{t1}, 24576, v{t1}")
    a(f"s_and_b32 s{sU0+1}, s{sW_}, 3"); a(f"s_lshl_b32 s{sU0+1}, s{sU0+1}, 1")
    a(f"v_lshl_add_u32 v{vBr}, v{t2}, 3, v{t0}"); a(f"v_lshl_add_u32 v{vBr}, v{vBr}, 8, v{t1}")
    a(f"v_and_b32 v{vBr+1}, 1, v{t2}"); a(f"v_lshl_add_u32 v{vBr+1}, v{vBr+1}, 2, v{t0}"); a(f"v_xor_b32 v{vBr+1}, s{sU0+1}, v{vBr+1}")
    a(f"v_lshl_add_u32 v{vBr}, v{vBr+1}, 5, v{vBr}"); a(f"v_xor_b32 v{vBr+1}, 32, v{vBr}")
    a(f"v_lshl_add_u32 v{vZr}, v{t2}, 2, v{t0}"); a(f"v_lshl_add_u32 v{vZr}, v{vZr}, 8, v{t1}")
    a(f"s_lshl_b32 s{sU0}, s{sU0}, 13"); a(f"s_add_u32 s{sU0}, s{sU0}, {3*SLOT-24576}"); a(f"v_add_u32 v{vZr}, s{sU0}, v{vZr}")
    a(f"v_lshrrev_b32 v{vZr+1}, 1, v{t2}"); a(f"v_lshl_add_u32 v{vZr+1}, v{vZr+1}, 2, v{t0}"); a(f"v_xor_b32 v{vZr+1}, s{sU0+1}, v{vZr+1}")
    a(f"v_lshl_add_u32 v{vZr}, v{vZr+1}, 5, v{vZr}"); a(f"v_xor_b32 v{vZr+1}, 32, v{vZr}")
    st(2)
    AF = [72, 96]
    BF = [120, 128]
    FS = [72, 136]
    def rd(c):
        out = []
        for h in range(2):
            b = FS[c & 1] + 32*h
            out += [ds(f"ds_read_b64_tr_b16 {vr(b+24+4*nt+2*t,2)}, v{vBr+nt} offset:{h*8192+t*1024}", f"r{h}b") for nt in range(2) for t in range(2)]
            out += [ds(f"ds_read_b128 {vr(b+4*(dj*2+kt),4)}, v{vAr+h} offset:{dj*8192+kt*2048}", f"r{h}" if dj or kt else f"r{h}a") for dj in range(3) for kt in range(2)]
        return out
    def mm(c):
        return [mfma(f"v_mfma_f32_16x16x32_bf16 {acc(dj,kt,nt)}, {vr(FS[c&1]+32*h+4*(dj*2+kt),4)}, {vr(FS[c&1]+32*h+24+4*nt,4)}, {'0' if c == 0 and h == nt else acc(dj,kt,nt)}")
                for dj in range(3) for kt in range(2) for nt in range(2) for h in ((0, 1) if nt == 0 else (1, 0))]
    zd = [other(f"s_lshl_b32 s{sU0}, s{sM}, 1"), other(f"s_add_u32 m0, s{sU0}, {3*SLOT}"), other(f"s_lshl_b32 s{sU0}, s{sXc}, 16"),
          other(f"s_cmp_lg_u32 s{sDi}, 1"), other(f"s_cbranch_scc1 {name}_nzd")] + \
         [other(f"buffer_load_dwordx4 v{vB+i}, s[{S_B}:{S_B+3}], s{sU0} offen offset:{i*1024} lds") for i in range(2)] + [other(f"{name}_nzd:")]
    r0 = rd(0)
    seq = [other("s_barrier ")] + dma(1, "D1") + [wait(vm="D0"), other("s_barrier")] + r0[:14] + zd + dma(2, "D2") + [wait(lg="r0")] + r0[14:]
    for c in range(8):
        B = Block(mm(c))
        if c < 7:
            step = SLOT if c % 3 < 2 else -2*SLOT
            B.fix(-1, [wait(lg="r1", vm=f"D{c+1}"), other("s_barrier")] + [other(f"v_add_u32 v{r}, {step & 0xffffffff}, v{r}") for r in (vBr, vBr+1)])
            rr = rd(c+1)
            B.put(0, [other(f"v_add_u32 v{vAr}, {step & 0xffffffff}, v{vAr}")])
            for q, r in enumerate((vAr+1,)): B.put(1+2*q+0.5, other(f"v_add_u32 v{r}, {step & 0xffffffff}, v{r}"))
            for q, op in enumerate(rr):
                if q == 14: B.put(q*1.05-0.1, wait(lg="r0a"))
                B.put(q*1.05, op)
            if c + 3 < 8:
                for q, op in enumerate(dma(c % 3, f"D{c+3}")): B.put(2+q*1.0, op)
            seq += B.layout(cap=2, slack=1)
        else:
            B.fix(-1, wait(lg="r1"))
            seq += B.layout()
    resolve([pro, seq])
    nb_ = 0
    def cst(k):
        if opts.get("cfine"):
            a("s_memrealtime s[94:95]"); a("s_memtime s[96:97]"); a("s_waitcnt lgkmcnt(0)"); a(f"v_writelane_b32 v250, s94, {16+k}"); a(f"v_writelane_b32 v250, s96, {32+k}")
    for op in merge_waits(seq):
        if op.text == "s_barrier":
            nb_ += 1
            if nb_ == 8: a("s_barrier"); xf_touch(a, opts); cst(nb_); continue
        if opts.get("cnomfma") and op.kind == "mfma": continue
        a(op.render())
        if op.text == "s_barrier": cst(nb_)
    st(4)
    A = lambda dj, kt, nt, j: vAcc + ((dj*2+kt)*2+nt)*4 + j
    U1, U2 = 72, 88
    for nt in range(2):
        for t in range(2): a(f"ds_read_b64_tr_b16 {vr(vZf+4*nt+2*t,2)}, v{vZr+nt} offset:{t*4096}")
    a("s_nop 3")
    a("v_mov_b32 v2, 0"); a("v_mov_b32 v3, 0")
    for kt in range(2):
        for nt in range(2):
            for j in (0, 2):
                o = (kt*2+nt)*4 + j
                g0, g1, g2 = [vr(A(dj, kt, nt, j), 2) for dj in range(3)]
                a(f"v_pk_add_f32 v[4:5], {g0}, {g2}")
                for r in (A(0, kt, nt, j), A(2, kt, nt, j)): a(f"v_max3_f32 v2, abs(v{r}), abs(v{r+1}), v2")
                a(f"v_pk_add_f32 {vr(U1+o,2)}, v[4:5], {g1}")
                a(f"v_pk_add_f32 {vr(U2+o,2)}, v[4:5], {g1} neg_lo:[0,1] neg_hi:[0,1]")
                for r in (U1+o, U2+o): a(f"v_max3_f32 v3, abs(v{r}), abs(v{r+1}), v3")
    a("v_mul_f32 v3, 0.5, v3"); a("v_max_f32 v2, v2, v3")
    for sh in (8, 4, 2, 1):
        a("s_nop 1"); a(f"v_max_f32_dpp v2, v2, v2 row_ror:{sh} row_mask:0xf bank_mask:0xf")
    a("v_mov_b32 v3, v2"); a("s_nop 1"); a("v_permlane32_swap_b32 v2, v3"); a("s_nop 0"); a("v_max_f32 v2, v2, v3")
    a("v_mov_b32 v3, v2"); a("s_nop 1"); a("v_permlane16_swap_b32 v2, v3"); a("s_nop 0"); a("v_max_f32 v2, v2, v3")
    MX = 3*SLOT + 16384
    a(f"s_lshl_b32 s{sU0}, s{sW_}, 2"); a(f"s_add_u32 s{sU0}, s{sU0}, {MX}"); a(f"v_mov_b32 v3, s{sU0}")
    a("ds_write_b32 v3, v2"); a(f"v_mov_b32 v3, {MX}")
    a("s_waitcnt lgkmcnt(0)"); a("s_barrier")
    a("ds_read_b128 v[4:7], v3"); a("ds_read_b128 v[8:11], v3 offset:16")
    a(f"s_lshl_b32 s{sU0}, s{sNq}, 1"); a(f"s_bfe_u32 s{sU0+1}, s{sW_}, 0x10001"); a(f"s_add_u32 s{sU0}, s{sU0}, s{sU0+1}")
    a(f"s_lshl_b32 s{sU0+1}, s{sXc}, 1"); a(f"s_lshr_b32 s{sU0+2}, s{sW_}, 2"); a(f"s_add_u32 s{sU0+1}, s{sU0+1}, s{sU0+2}")
    a(f"s_and_b32 s{sU0+2}, s{sW_}, 1"); a(f"s_lshl_b32 s{sU0+2}, s{sU0+2}, 11")
    a(f"s_mul_i32 s{sU0+3}, s{sU0}, 786432"); a(f"s_mul_i32 s{sU0+4}, s{sU0+1}, 12288"); a(f"s_add_u32 s{sU0+3}, s{sU0+3}, s{sU0+4}")
    a(f"s_lshl_b32 s{sU0+4}, s{sDi}, 12"); a(f"s_add_u32 s{sU0+3}, s{sU0+3}, s{sU0+4}"); a(f"s_add_u32 s{sU0+3}, s{sU0+3}, s{sU0+2}")
    a(f"s_add_u32 s{sU0+3}, s{sU0+3}, {U_OFF}")
    a(f"s_lshl_b32 s{sU0+4}, s{sU0}, 16"); a(f"s_lshl_b32 s{sU0+5}, s{sU0+1}, 12"); a(f"s_add_u32 s{sU0+4}, s{sU0+4}, s{sU0+5}")
    a(f"s_add_u32 s{sU0+4}, s{sU0+4}, s{sU0+2}"); a(f"s_add_u32 s{sU0+4}, s{sU0+4}, {Z_OFF}")
    a("v_lshlrev_b32 v12, 4, v1")
    a("s_waitcnt lgkmcnt(0)")
    a("v_max3_f32 v4, v4, v5, v6"); a("v_max3_f32 v4, v4, v7, v8"); a("v_max3_f32 v4, v4, v9, v10"); a("v_max_f32 v4, v4, v11")
    a("s_nop 0"); a(f"v_readfirstlane_b32 s{sU0+6}, v4"); a("s_nop 3")
    a(f"s_lshr_b32 s{sU0+6}, s{sU0+6}, 23")
    a(f"s_sub_u32 s{sU0+7}, 121, s{sU0+6}"); a(f"s_and_b32 s{sU0+7}, s{sU0+7}, 7")
    a(f"s_sub_u32 s{sU0+6}, 267, s{sU0+6}"); a(f"s_sub_u32 s{sU0+6}, s{sU0+6}, s{sU0+7}")
    a(f"s_max_u32 s{sU0+6}, s{sU0+6}, 18"); a(f"s_min_u32 s{sU0+6}, s{sU0+6}, 186")
    a(f"s_lshl_b32 s60, s{sU0+6}, 23"); a("s_mov_b32 s62, 0x00040004")
    a(f"v_mov_b32 v6, {hex(f32bits(-1.0/LOG2E))}"); a("v_mul_f32 v6, s60, v6"); a("v_mul_f32 v8, 0.5, v6")
    D = [104, 108, 112, 116]; kk = 0
    for p in range(4):
        for nt in range(2):
            d = D[kk % 4]; kk += 1
            for q in range(4):
                kt, j = q >> 1, 2*(q & 1)
                r = [A(0, kt, nt, j), U1+(kt*2+nt)*4+j, U2+(kt*2+nt)*4+j, A(2, kt, nt, j)][p]
                a(f"v_pk_mul_f32 v[4:5], {vr(r,2)}, v[{8 if p in (1, 2) else 6}:{9 if p in (1, 2) else 7}] op_sel_hi:[1,0]")
                a(f"v_cvt_pk_f16_f32 v{d+q}, v4, v5")
                if opts.get("wround", 1): a(f"v_pk_add_u16 v{d+q}, v{d+q}, s62"); a(f"v_and_b32 v{d+q}, 0xfff8fff8, v{d+q}")
            a(f"s_add_u32 s{sU0+5}, s{sU0+3}, {p*196608}")
            a(f"buffer_store_dwordx4 {vr(d,4)}, v12, s[{S_WS}:{S_WS+3}], s{sU0+5} offen offset:{nt*1024}")
    a(f"s_lshl_b32 s{sU0+5}, s{sNq}, 5"); a(f"s_lshl_b32 s{sU0+6}, s{sDi}, 3"); a(f"s_add_u32 s{sU0+5}, s{sU0+5}, s{sU0+6}")
    a(f"s_add_u32 s{sU0+5}, s{sU0+5}, s{sXc}"); a(f"s_lshl_b32 s{sU0+5}, s{sU0+5}, 2"); a(f"s_add_u32 s{sU0+5}, s{sU0+5}, {SCL_OFF}")
    a("v_mov_b32 v4, s60"); a("v_mov_b32 v5, 0")
    a(f"s_cmp_lg_u32 s{sW_}, 0"); a(f"s_cbranch_scc1 {name}_ns")
    a("s_mov_b64 exec, 1"); a(f"buffer_store_dword v4, v5, s[{S_WS}:{S_WS+3}], s{sU0+5} offen"); a("s_mov_b64 exec, -1")
    a.label(f"{name}_ns")
    a(f"s_cmp_lg_u32 s{sDi}, 1"); a(f"s_cbranch_scc1 {name}_nz")
    a(f"s_cmp_ge_u32 s{sXc}, 4"); a(f"s_cselect_b32 s61, 0x800000, 0"); a("s_sub_u32 s60, s60, s61")
    for i in range(8):
        a(f"v_lshlrev_b32 v4, 16, v{vZf+i}"); a(f"v_and_b32 v5, 0xffff0000, v{vZf+i}")
        a("v_mul_f32 v4, s60, v4"); a("v_mul_f32 v5, s60, v5")
        a(f"v_cvt_pk_bf16_f32 v{vZf+i}, v4, v5")
    for nt in range(2): a(f"buffer_store_dwordx4 {vr(vZf+4*nt,4)}, v12, s[{S_WS}:{S_WS+3}], s{sU0+4} offen offset:{nt*1024}")
    a.label(f"{name}_nz")
    st(8)

HEADER = """
ControlNet block, out = x_frozen + (h_in + conv3x3(silu(LN(h_in)))) @ w_z2 with h_in = x + c @ w_z1   (B=2, 64x64, C=512, bf16)
kernarg: 0 x_frozen, 8 x, 16 c, 24 w_z1, 32 w_z2, 40 w_conv, 48 out, 56 debug, 64 ws
w_z2 is folded into the taps: out = x_frozen + h_in @ w_z2 + conv3x3(h, w_conv @ w_z2); the 3-tap row filter runs as Winograd F(2,3).
Launch 1 (8 waves per workgroup), roles by (workgroup id >> 3):
  0..15   one image row: h_in by MFMA, LayerNorm + SiLU in fp32 -> H (fp16, scaled by -log2 e), E (bf16 h_in: even px, -odd px, sums, differences)
  16..27  a 64 x 128 tile of w_conv[di] @ w_z2 -> U (Winograd-transformed, fp16, power-of-two scale per tile, times -ln 2), Z (w_z2 fragments)
  28..31  only read lines the other workgroups need later (cache warm-up; placement affects speed only)
Launch 2 (4 waves = 4 Winograd positions): 8 x 32 px x 64 ch per workgroup. H goes through LDS, the input transform is one packed fp16 FMA,
  U/E/Z fragments come straight from memory; the positions are combined through LDS, x_frozen is added in fp32.
  If the tiles of a column block carry different scales, each wave first writes a private copy of its weights rescaled to the smallest one.
ws: 0 scales, 1 MB H, 9 MB E, 17 MB U, 23 MB Z, 32 MB private copies. Generated by a script, every instruction scheduled by hand-written rules.
"""

if __name__ == "__main__":
    import sys
    import k2
    opts = {}; out = "full.s"
    for x in sys.argv[1:]:
        if x.endswith(".s"): out = x
        elif "=" in x:
            k, v = x.split("="); opts[k] = float(v) if "." in v else int(v)
    stamp = 1 if ("stamp" in sys.argv or "stamp2" in sys.argv) else 3 if ("lite" in sys.argv or "lite2" in sys.argv) else 0
    a = Asm()
    for l in HEADER.strip("\n").split("\n"): a(("; " + l).rstrip())
    a("; @launch kernel=cn_k1_kernel grid=(256,1,1) block=(512,1,1) lds=163840")
    a("; @launch kernel=cn_k2_kernel grid=(256,1,1) block=(256,1,1) lds=131072")
    a('.amdgcn_target "amdgcn-amd-amdhsa--gfx950"')
    gen_k1(a, "cn_k1_kernel", stamp=stamp, opts=opts)
    o2 = dict(lead=44, had=8, nv0=3, npre=4); o2.update(opts)
    opts.setdefault("st1", 1); opts.setdefault("st2", 1)
    k2.gen_k2(a, "cn_k2_kernel", stamp=(2 if ("stamp2" in sys.argv or "lite2" in sys.argv) else stamp), opts=o2)
    a(".text"); a("cn_code_end:"); a("s_endpgm")
    if opts.get("noH") or opts.get("noE"):
        keep = []
        for l in a.lines:
            if l.startswith("cn_k1_kernel_c:"): break
            keep.append(l)
        n = len(keep)
        for i in range(n):
            l = a.lines[i]
            if l.startswith("buffer_store_dwordx4") and ((opts.get("noH") and ", v5, " in l) or (opts.get("noE") and ", v4, " in l)): a.lines[i] = "s_nop 0"
    txt = a.text()
    pol1 = {0: "", 1: " sc1", 2: " sc0 sc1", 3: " nt", 4: " sc1 nt", 5: " sc0"}
    lines = []; ink2 = False
    for l in txt.split("\n"):
        if l.startswith("cn_k2_kernel:"): ink2 = True
        if l.startswith("buffer_store_dwordx4"): l += pol1[opts.get("st2" if ink2 else "st1", 0)]
        if l.startswith("buffer_load_dwordx4"):
            if l.endswith(" lds"): l = l[:-4] + pol1[opts.get("dm2" if ink2 else "dm1", 0)] + " lds"
            elif ink2: l += pol1[opts.get("ld2", 0)]
        lines.append(l)
    open(out, "w").write("\n".join(lines))
```
